```python
import torch

def _softmax(x, axis=-1):
    return torch.softmax(x, dim=axis)
def _gelu(x):
    return torch.nn.functional.gelu(x, approximate="tanh")
def _silu(x):
    return torch.nn.functional.silu(x)
def _sigmoid(x):
    return torch.sigmoid(x)
def _layernorm(x, axis=-1, eps=1e-5):
    m = x.mean(dim=axis, keepdim=True)
    v = x.var(dim=axis, keepdim=True, unbiased=False)
    return (x - m) / torch.sqrt(v + eps)
def _scatter_add(tgt, idx, src, axis=0):
    return tgt.clone().index_add_(axis, idx, src)
def _segment_sum(src, seg, n):
    out = torch.zeros((n,) + src.shape[1:], dtype=src.dtype)
    return out.index_add_(0, seg, src)
def _pad(x, pw):
    flat = tuple(v for pair in reversed(pw) for v in pair)
    return torch.nn.functional.pad(x, flat)

kernel_name = 'gated_mix__sliding_local_dilated__grouped_kv_mqa__prompt'

def setup_inputs():

    _w = (lambda a: (lambda t: t.to(torch.bfloat16) if t.is_floating_point() else t)(torch.as_tensor(a)))
    def _A_setup():
        B, S, D = 1, 2048, 640
        return {
            "x": _w((lambda *s: torch.randn(*s, dtype=torch.bfloat16) * 0.05)(B, S, D)),
            "wqkv": _w((lambda *s: torch.randn(*s, dtype=torch.bfloat16) * 0.8)(D, 3 * D)),
            "wo": _w((lambda *s: torch.randn(*s, dtype=torch.bfloat16) * 0.05)(D, D)),
        }
    _A_in = _A_setup()

    def _B_setup():
        B, S, D, H = 1, 2048, 640, 32
        Dh = D // H
        return {
            "x": _w((lambda *s: torch.randn(*s, dtype=torch.bfloat16) * 0.05)(B, S, D)),
            "wq": _w((lambda *s: torch.randn(*s, dtype=torch.bfloat16) * 1.6)(D, H * Dh)),
            "wk": _w((lambda *s: torch.randn(*s, dtype=torch.bfloat16) * 1.6)(D, Dh)),
            "wv": _w((lambda *s: torch.randn(*s, dtype=torch.bfloat16) * 0.2)(D, Dh)),
            "wo": _w((lambda *s: torch.randn(*s, dtype=torch.bfloat16) * 0.2)(H * Dh, D)),
        }
    _B_in = _B_setup()

    return {
        "A_x": _A_in["x"],
        "A_wqkv": _A_in["wqkv"],
        "A_wo": _A_in["wo"],
        "B_x": _B_in["x"],
        "B_wq": _B_in["wq"],
        "B_wk": _B_in["wk"],
        "B_wv": _B_in["wv"],
        "B_wo": _B_in["wo"],
        "gate_w": _w((lambda *s: torch.randn(*s, dtype=torch.bfloat16) * 0.05)(640) * 16.0),
    }

def reference(A_x, A_wqkv, A_wo, B_x, B_wq, B_wk, B_wv, B_wo, gate_w):
    def _A_ref(x, wqkv, wo):
        B, S, D = x.shape
        H = 32; Dh = D // H
        W, dil = 8, 2
        qkv = (lambda x, *d: x.permute(*d))((x @ wqkv).reshape(B, S, 3, H, Dh), 2, 0, 3, 1, 4)
        q, k, v = qkv[0], qkv[1], qkv[2]
        scale = Dh ** -0.5
        pos = torch.arange(S)
        off = torch.arange(W) * dil
        idx = pos[:, None] - off[None, :]
        mask = idx >= 0
        idx_c = torch.where(mask, idx, 0).reshape(-1)
        kg = k[:, :, idx_c, :].reshape(B, H, S, W, Dh)
        vg = v[:, :, idx_c, :].reshape(B, H, S, W, Dh)
        logits = torch.einsum("bhsd,bhswd->bhsw", q, kg) * scale
        logits = torch.where(mask[None, None, :, :], logits, -1e9)
        attn = _softmax(logits, axis=-1)
        o = torch.einsum("bhsw,bhswd->bhsd", attn, vg)
        return (lambda x, *d: x.permute(*d))(o, 0, 2, 1, 3).reshape(B, S, D) @ wo

    def _B_ref(x, wq, wk, wv, wo):
        B, S, D = x.shape
        H = 32
        Dh = D // H
        q = (lambda x, *d: x.permute(*d))((x @ wq).reshape(B, S, H, Dh), 0, 2, 1, 3)
        k = x @ wk
        v = x @ wv
        scores = torch.einsum("bhqd,bkd->bhqk", q, k) * (Dh ** -0.5)
        p = _softmax(scores, axis=-1)
        o = torch.einsum("bhqk,bkd->bhqd", p, v)
        return (lambda x, *d: x.permute(*d))(o, 0, 2, 1, 3).reshape(B, S, H * Dh) @ wo

    x = A_x
    g = _sigmoid((x * gate_w).sum(-1, keepdims=True))
    a = _A_ref(x, A_wqkv, A_wo)
    b = _B_ref(x, B_wq, B_wk, B_wv, B_wo)
    return g * a + (1 - g) * b
```

```python
import re

def vr(a, n=1):
    return f"v{a}" if n == 1 else f"v[{a}:{a+n-1}]"
def sr(a, n=1):
    return f"s{a}" if n == 1 else f"s[{a}:{a+n-1}]"

_REG = re.compile(r"\b([vsa])(\d+)\b|\b([vsa])\[(\d+):(\d+)\]|\b(vcc|exec|m0|scc)\b")
def regs_of(op):
    out = set()
    for m in _REG.finditer(op):
        if m.group(1):
            out.add((m.group(1), int(m.group(2))))
        elif m.group(3):
            for i in range(int(m.group(4)), int(m.group(5)) + 1):
                out.add((m.group(3), i))
        else:
            out.add((m.group(6), 0))
    return out

TRANS = ("v_exp_f32", "v_log_f32", "v_rcp_f32", "v_rsq_f32", "v_sqrt_f32", "v_sin_f32", "v_cos_f32")

class Ins:
    def __init__(self, text):
        self.text = text
        t = text.split(";")[0].strip()
        self.label = None
        self.mn = ""
        self.ops = []
        self.wr = set(); self.rd = set()
        self.kind = "other"
        if not t or t.startswith("."):
            self.kind = "dir"; return
        if t.endswith(":"):
            self.kind = "label"; self.label = t[:-1]; return
        parts = t.split(None, 1)
        self.mn = mn = parts[0]
        rest = parts[1] if len(parts) > 1 else ""
        self.ops = ops = [o.strip() for o in rest.split(",")] if rest else []
        R = [regs_of(o) for o in ops]
        allr = set().union(*R) if R else set()
        if mn.startswith("v_mfma") or mn.startswith("v_smfmac"):
            self.kind = "mfma"
            self.wr = R[0]; self.A = R[1]; self.B = R[2]
            if mn.startswith("v_smfmac"):
                self.C = R[0]; self.idx = R[3]; self.rd = R[0] | R[1] | R[2] | R[3]
                self.AB = R[1] | R[2] | R[3]
            else:
                self.C = R[3]; self.rd = R[1] | R[2] | R[3]; self.AB = R[1] | R[2]
            self.passes = 8 if "32x32" in mn else 4
        elif mn.startswith("v_"):
            self.kind = "valu"
            self.trans = mn.replace("_e32", "").replace("_e64", "") in TRANS
            if mn.startswith("v_cmp"):
                self.wr = R[0]; self.rd = set().union(*R[1:])
                if mn.startswith("v_cmpx"): self.wr = self.wr | {("exec", 0)}
            elif mn.startswith("v_permlane") and "swap" in mn:
                self.wr = R[0] | R[1]; self.rd = R[0] | R[1]
            elif mn.startswith(("v_add_co", "v_sub_co", "v_addc_co", "v_subb_co", "v_subrev_co")):
                self.wr = R[0] | R[1]; self.rd = set().union(*R[2:])
            elif mn in ("v_nop",):
                pass
            else:
                self.wr = R[0]; self.rd = set().union(*R[1:]) if len(R) > 1 else set()
                if mn.startswith(("v_fmac", "v_dot2c", "v_pk_fmac", "v_writelane")) or "dpp" in mn or "sdwa" in t or "dpp" in t or "row_" in t:
                    self.rd = self.rd | R[0]
                if mn.startswith("v_cndmask") and len(ops) == 3:
                    self.rd = self.rd | {("vcc", 0)}
            self.dpp = ("row_" in t or "quad_perm" in t or "wave_" in t or "_dpp" in mn)
        elif mn.startswith("ds_"):
            self.kind = "ds"
            if mn.startswith(("ds_read", "ds_bpermute", "ds_permute", "ds_swizzle")) or "_rtn" in mn:
                self.wr = R[0]; self.rd = set().union(*R[1:])
            else:
                self.rd = allr
        elif mn.startswith(("buffer_", "global_", "flat_")):
            self.kind = "vmem"
            self.lds = bool(re.search(r"\blds\b", t)) or "load_lds" in mn
            if "load" in mn and not self.lds:
                self.wr = R[0]; self.rd = set().union(*R[1:])
            elif "atomic" in mn and "sc0" in t and mn.startswith("global"):
                self.wr = R[0]; self.rd = set().union(*R[1:])
            else:
                self.rd = allr
            if self.lds: self.rd = self.rd | {("m0", 0)}
            self.wide_store = ("store" in mn and ("x4" in mn or "x3" in mn))
            if self.wide_store:
                self.data = R[0] if mn.startswith("buffer") else R[1]
        elif mn.startswith("s_"):
            self.kind = "salu"
            if mn.startswith(("s_cmp", "s_cbranch", "s_branch", "s_waitcnt", "s_barrier", "s_nop", "s_setprio", "s_sleep", "s_endpgm", "s_bitcmp")):
                self.rd = allr
            else:
                self.wr = R[0] if R else set(); self.rd = set().union(*R[1:]) if len(R) > 1 else set()
                if "saveexec" in mn: self.wr = self.wr | {("exec", 0)}
    def states(self):
        if self.kind in ("dir", "label"): return 0
        if self.mn == "s_nop": return int(self.ops[0], 0) + 1
        return 1

def need(p, c):
    n = 0
    vw = {r for r in p.wr if r[0] in "va"}
    sw = {r for r in p.wr if r[0] in ("s", "vcc")}
    if p.kind == "valu":
        if c.kind == "mfma" and vw & c.rd: n = max(n, 2)
        if c.kind == "mfma" and ("exec", 0) in p.wr: n = max(n, 4)
        if c.kind == "valu":
            if p.trans and not c.trans and vw & (c.rd | c.wr): n = max(n, 1)
            if p.trans and vw & c.rd: n = max(n, 1)
            if c.mn.startswith(("v_readlane", "v_readfirstlane")) and vw & c.rd: n = max(n, 1)
            if c.mn.startswith("v_permlane") and vw & c.rd: n = max(n, 2)
            if c.dpp and vw & c.rd: n = max(n, 2)
            if c.dpp and ("exec", 0) in p.wr: n = max(n, 5)
            if sw & c.rd:
                n = max(n, 4 if c.mn.startswith(("v_readlane", "v_writelane")) else 2)
            if ("exec", 0) in p.wr and c.mn.startswith(("v_readlane", "v_readfirstlane", "v_writelane", "v_permlane")): n = max(n, 4)
        if p.mn.startswith("v_dot") and c.kind in ("valu", "ds", "vmem", "mfma") and vw & (c.rd | c.wr):
            same_c = (c.mn == p.mn and not (vw & (regs_of(c.ops[1]) | regs_of(c.ops[2]))))
            if not same_c: n = max(n, 3)
        if p.trans and c.kind in ("ds", "vmem") and vw & c.rd: n = max(n, 1)
        if c.kind == "vmem" and sw & c.rd: n = max(n, 5)
        if c.kind == "salu" and sw & c.rd: n = max(n, 1)
    if p.kind == "salu":
        if ("m0", 0) in p.wr and c.kind == "vmem" and getattr(c, "lds", False): n = max(n, 1)
    if p.kind == "vmem" and getattr(p, "wide_store", False):
        if c.wr & p.data: n = max(n, 2)
    if p.kind == "mfma":
        D = p.wr
        big = {4: 8, 8: 12}[p.passes]
        if c.kind == "mfma":
            if D & c.AB: n = max(n, big)
            if D & c.C:
                if not (c.C == D and c.passes == p.passes): n = max(n, {4: 6, 8: 10}[p.passes])
            elif D & c.wr:
                if not (c.wr == D and c.passes == p.passes): n = max(n, {4: 6, 8: 10}[p.passes])
        elif c.kind in ("valu", "ds", "vmem"):
            if D & (c.rd | c.wr): n = max(n, big)
            if c.kind == "valu" and p.C & c.wr: n = max(n, {4: 3, 8: 7}[p.passes])
    return n

class Asm:
    def __init__(self):
        self.ins = []
        self._uid = 0
    def __call__(self, text):
        for line in text.split("\n"):
            if line.strip():
                self.ins.append(Ins(line.strip()))
    def label(self, name):
        self.ins.append(Ins(name + ":"))
    def uid(self, p="L"):
        self._uid += 1
        return f"{p}_{self._uid}"
    def finalize(self, verbose=False):
        out = []
        W = 14
        for c in self.ins:
            if c.kind not in ("dir", "label"):
                dist = 0; req = 0
                for p in reversed(out):
                    if p.kind in ("dir", "label"): continue
                    if p.mn in ("s_branch", "s_endpgm"): break
                    n = need(p, c)
                    if n - dist > req: req = n - dist
                    dist += p.states()
                    if dist >= W: break
                if req > 0:
                    out.append(Ins(f"s_nop {req-1}"))
            out.append(c)
        pos = {i.label: k for k, i in enumerate(out) if i.kind == "label"}
        probs = []
        for k, b in enumerate(out):
            if b.mn.startswith(("s_cbranch", "s_branch")):
                tgt = pos.get(b.ops[0])
                if tgt is None: probs.append(f"missing label {b.ops[0]}"); continue
                hist = []
                d = 0
                for p in reversed(out[:k+1]):
                    if p.kind in ("dir", "label"): continue
                    if p is not b and p.mn in ("s_branch", "s_endpgm"): break
                    hist.append((p, d)); d += p.states()
                    if d >= W: break
                d2 = 0
                for c in out[tgt:]:
                    if c.kind in ("dir", "label"): continue
                    for p, dp in hist:
                        n = need(p, c)
                        if n > dp + d2:
                            probs.append(f"branch edge hazard: [{p.text}] -> [{c.text}] via {b.text}: need {n} have {dp+d2}")
                    d2 += c.states()
                    if d2 >= W or c.mn in ("s_branch", "s_endpgm"): break
        if probs:
            raise RuntimeError("\n".join(probs))
        lines = []
        for i in out:
            lines.append(i.text if i.kind in ("label",) or i.text.startswith(".") else "    " + i.text)
        return "\n".join(lines) + "\n"
```

```python
from asmlib import *

KNAME = "gated_mix__sliding_local_dilated__grouped_kv_mqa__prompt_kernel"
XM = 0; XH = 81920; R = 102400; MISC = R + 60416; LDS_SIZE = 163840
P0W = XH; GATE = R + 56320; QBUF = R + 46080
SLOT = [R+5120, R+15360, R+25600, R+46080, R+35840, XH, XH+10240, R+5120, R+15360, R+25600]
RING = [R, R+15360, R+30720]
QA = R; KA = R + 10240; VA = R + 23040
RED = R + 35840
ARING = [R, R+10240, R+20480]
FLW = 0; FREE = 64; FLX = 112; P0D = 116; KMAX = 120; GDONE = 124; ONES = 128; CNTG = 144
GBUF = 256; CNTA = 512; BWOL = 560; LA1 = 564; LA2 = 568; PAIR = 576; MB1 = 592; ACCA = 608; FBK = 624; MB2 = 628; MXB = 640; TAGO = 632
WS_EPOCH = 0; WS_GRAN = 0x1000; WS_K = 0x40000; WS_V = 0x60000; WS_FA = 0x80000; WS_FB = 0xA0000; WS_OAB = 0x100000
WS_DBG = 0x700000; WS_DUMP = 0x800000; WS_SIZE = 0x4000000
CSC = 0x3EA52FE3
import struct, math
def f32bits(x): return struct.unpack("<I", struct.pack("<f", x))[0]
CSC = f32bits(20 ** -0.5 * math.log2(math.e))
LOG2E = f32bits(math.log2(math.e))

sW = 3; sRB = 4; sHG = 5; sTAG = 6; sCNT = 7
sX = 40; sWQKV = 44; sAWO = 48; sWQ = 52; sWKV = 56; sBWO = 60; sGATE = 64; sOUT = 68; sWS = 72
sT = 76
sST = 88
vL = 1; vMISC = 2; vONE = 3; vT = 4

class Gen:
    def __init__(self, stamps=False, stop=None):
        self.a = Asm()
        self.stamps = stamps
        self.stop = stop
    def stamp(self, i):
        if self.stamps:
            self.a(f"s_memrealtime s[100:101]\ns_waitcnt lgkmcnt(0)\ns_mov_b32 s{sST+i}, s100")
    def srd(self, d, ptr, size):
        self.a(f"s_mov_b32 s{d}, s{ptr}\ns_mov_b32 s{d+1}, s{ptr+1}\ns_mov_b32 s{d+2}, {size}\ns_mov_b32 s{d+3}, 0x20000")
    def poll(self, off, val, prio=False, tmp=vT, st=sT):
        a = self.a; L = a.uid("Lp"); D = a.uid("Lpd")
        a(f"s_mov_b32 s{sCNT}, 0x20000")
        a.label(L)
        a(f"ds_read_b32 v{tmp}, v{vMISC} offset:{off}")
        a("s_waitcnt lgkmcnt(0)")
        if prio: a("s_setprio 2")
        a(f"v_readfirstlane_b32 s{st}, v{tmp}")
        if prio: a("s_setprio 0")
        a(f"s_cmp_ge_u32 s{st}, {val}")
        a(f"s_cbranch_scc1 {D}")
        a(f"s_sub_u32 s{sCNT}, s{sCNT}, 1")
        a(f"s_cmp_lg_u32 s{sCNT}, 0")
        a(f"s_cbranch_scc1 {L}")
        a.label(D)
    def signal(self, off):
        self.a(f"s_mov_b64 exec, 1\nds_add_u32 v{vMISC}, v{vONE} offset:{off}\ns_mov_b64 exec, -1")

    def prologue(self):
        a = self.a
        a(f"""
s_cmp_ge_u32 s2, 256
s_cbranch_scc1 L_end
s_load_dwordx16 s[16:31], s[0:1], 0
s_load_dwordx8 s[32:39], s[0:1], 64
""")
        if self.stamps:
            a(f"s_memrealtime s[100:101]")
        a(f"""
v_lshrrev_b32 v{vT}, 6, v0
v_and_b32 v{vL}, 63, v0
v_mov_b32 v{vMISC}, {MISC}
v_readfirstlane_b32 s{sW}, v{vT}
v_mov_b32 v{vONE}, 1
s_and_b32 s10, s2, 7
s_lshr_b32 s11, s2, 3
s_and_b32 s{sRB}, s11, 3
s_lshl2_add_u32 s{sRB}, s10, s{sRB}
s_lshr_b32 s{sHG}, s11, 2
s_and_b32 s12, s{sRB}, 1
s_mul_i32 s12, s12, 5
s_sub_u32 s13, 5, s12
s_lshr_b32 s14, s{sHG}, 1        ; tau
s_waitcnt lgkmcnt(0)
""")
        if self.stamps:
            a(f"s_mov_b32 s{sST}, s100")
        self.srd(sX, 16, 2621440)
        self.srd(sWS, 38, WS_SIZE)
        a(f"""
s_cmp_ge_u32 s{sW}, 4
s_cbranch_scc1 L_G
""")

    def x_voff(self, d0, rt_expr_sgpr, halo=False):
        a = self.a
        for e in range(2):
            a(f"""
v_lshrrev_b32 v{vT}, 3, v{vL}
v_add_u32 v{vT}, {8*e}, v{vT}
v_add_u32 v{vT}, s{rt_expr_sgpr}, v{vT}
v_mul_i32_i24 v{vT}, 1280, v{vT}
v_lshrrev_b32 v{vT+1}, 4, v{vL}
v_xor_b32 v{vT+1}, v{vT+1}, v{vL}
v_xor_b32 v{vT+1}, {4*e}, v{vT+1}
v_and_b32 v{vT+1}, 7, v{vT+1}
v_lshl_add_u32 v{d0+e}, v{vT+1}, 4, v{vT}
""")
    def xfrag_addr(self, d, base_const, row_sgpr_or_none, kstride, rot=True):
        a = self.a
        a(f"""
v_and_b32 v{vT}, 15, v{vL}
v_lshrrev_b32 v{vT+1}, 1, v{vT}
v_lshrrev_b32 v{vT+2}, 4, v{vL}
v_xor_b32 v{vT+1}, v{vT+1}, v{vT+2}
v_lshlrev_b32 v{vT+1}, 4, v{vT+1}
v_lshl_add_u32 v{vT}, v{vT}, 7, v{vT+1}
""")
        if row_sgpr_or_none is not None:
            a(f"s_lshl_b32 s{sT}, s{row_sgpr_or_none}, 11")
        else:
            a(f"s_mov_b32 s{sT}, 0")
        a(f"s_add_u32 s{sT}, s{sT}, {base_const}")
        if rot:
            a(f"s_mul_i32 s{sT+1}, s12, {kstride}\ns_mul_i32 s{sT+2}, s13, {kstride}")
        else:
            a(f"s_mov_b32 s{sT+1}, 0\ns_mov_b32 s{sT+2}, {5*kstride}")
        a(f"""
s_add_u32 s{sT+1}, s{sT+1}, s{sT}
s_add_u32 s{sT+2}, s{sT+2}, s{sT}
v_add_u32 v{d}, s{sT+1}, v{vT}
v_add_u32 v{d+2}, s{sT+2}, v{vT}
v_xor_b32 v{d+1}, 64, v{d}
v_xor_b32 v{d+3}, 64, v{d+2}
""")
    def tr_base(self, d, stride, swap=True):
        a = self.a
        if swap:
            a(f"""
v_lshrrev_b32 v{vT}, 5, v{vL}
v_lshlrev_b32 v{vT}, 4, v{vT}
v_bfe_u32 v{vT+1}, v{vL}, 2, 3
v_add_u32 v{vT}, v{vT}, v{vT+1}
""")
        else:
            a(f"""
v_lshrrev_b32 v{vT}, 4, v{vL}
v_lshlrev_b32 v{vT}, 3, v{vT}
v_bfe_u32 v{vT+1}, v{vL}, 2, 2
v_add_u32 v{vT}, v{vT}, v{vT+1}
""")
        a(f"""
v_mul_u32_u24 v{vT}, {stride}, v{vT}
v_and_b32 v{vT+1}, 3, v{vL}
v_lshl_add_u32 v{d}, v{vT+1}, 3, v{vT}
""")
    def w160_voff(self, d):
        a = self.a
        a(f"s_mul_i32 s{sT}, s{sHG}, 160")
        for p in range(5):
            a(f"""
v_add_u32 v{vT}, {64*p}, v{vL}
v_mul_u32_u24 v{vT+1}, 6554, v{vT}
v_lshrrev_b32 v{vT+1}, 16, v{vT+1}
v_mul_u32_u24 v{vT+2}, 10, v{vT+1}
v_sub_u32 v{vT}, v{vT}, v{vT+2}
v_and_b32 v{vT+2}, 0x13, v{vT+1}
v_and_b32 v{vT+3}, 4, v{vT+1}
v_lshl_or_b32 v{vT+2}, v{vT+3}, 1, v{vT+2}
v_and_b32 v{vT+3}, 8, v{vT+1}
v_lshrrev_b32 v{vT+3}, 1, v{vT+3}
v_or_b32 v{vT+2}, v{vT+2}, v{vT+3}
v_mul_u32_u24 v{vT+2}, 1280, v{vT+2}
v_lshl_add_u32 v{vT}, v{vT}, 4, v{vT+2}
v_add_u32 v{d+p}, s{sT}, v{vT}
""")
    def issue_w160(self, vbase, srd, s_koff, lds_base, npieces=10, p0=0):
        a = self.a
        for p in range(p0, p0 + npieces):
            if p == 5 or (p == p0 and p0 > 5):
                a(f"s_add_u32 s{sT+3}, s{s_koff}, 40960")
            so = s_koff if p < 5 else sT + 3
            a(f"s_mov_b32 m0, {lds_base + 1024*p}")
            a(f"buffer_load_dwordx4 v{vbase + p % 5}, s[{srd}:{srd+3}], s{so} offen lds")
```

```python
from gen1 import *

class Gen2(Gen):
    def m_pre(self):
        a = self.a
        vXO = 10; vXF = 12; vWa = 16; vWb = 17; vGa = 18; ACC = 20; FB = [48, 104]
        a(f"""
s_cmp_lg_u32 s{sW}, 0
s_cbranch_scc1 L_m_noinit
v_mov_b32 v{vT}, 0
v_mov_b32 v{vT+1}, 0
v_mov_b32 v{vT+2}, 0
v_mov_b32 v{vT+3}, 0
v_lshl_add_u32 v{vT+4}, v{vL}, 4, v{vMISC}
ds_write_b128 v{vT+4}, v[{vT}:{vT+3}]
v_mov_b32 v{vT}, 0x3f803f80
v_mov_b32 v{vT+1}, 0x3f803f80
ds_write_b64 v{vMISC}, v[{vT}:{vT+1}] offset:{ONES}
L_m_noinit:
s_lshl_b32 s{sT+4}, s{sRB}, 6
s_lshl_b32 s{sT+5}, s{sW}, 4
s_add_u32 s{sT+4}, s{sT+4}, s{sT+5}
""")
        self.x_voff(vXO, sT+4)
        self.xfrag_addr(vXF, XM, sW, 8192)
        self.tr_base(vWa, 160)
        a(f"""
v_add_u32 v{vWb}, {R+35840}, v{vWa}
v_add_u32 v{vWa}, {XH}, v{vWa}
v_lshrrev_b32 v{vT}, 4, v{vL}
v_lshlrev_b32 v{vT}, 4, v{vT}
s_lshl_b32 s{sT}, s12, 7
s_lshl_b32 s{sT+1}, s13, 7
s_add_u32 s{sT}, s{sT}, {GATE}
s_add_u32 s{sT+1}, s{sT+1}, {GATE}
v_add_u32 v{vGa}, s{sT}, v{vT}
v_add_u32 v{vGa+1}, s{sT+1}, v{vT}
""")
        for i in range(24):
            a(f"v_mov_b32 v{ACC+i}, 0")
        a("s_waitcnt lgkmcnt(0)\ns_barrier")
        self.stamp(1)
        a(f"""
s_cmp_eq_u32 s{sW}, s14
s_cbranch_scc1 L_m_nox
s_lshl_b32 s{sT+5}, s{sW}, 11
""")
        for hb, sb in ((0, 12), (1, 13)):
            a(f"""
s_lshl_b32 s{sT+6}, s{sb}, 7
s_lshl_b32 s{sT+7}, s{sb}, 13
s_add_u32 s{sT+7}, s{sT+7}, s{sT+5}
""")
            for i in range(5):
                for e in range(2):
                    a(f"s_add_u32 m0, s{sT+7}, {XM + i*8192 + e*1024}")
                    a(f"buffer_load_dwordx4 v{vXO+e}, s[{sX}:{sX+3}], s{sT+6} offen lds")
                if i < 4: a(f"s_add_u32 s{sT+6}, s{sT+6}, 128")
        a.label("L_m_nox")
        self.poll(FLX, 1)
        def reads(i):
            fb = FB[i & 1]
            xa = vXF + (2 if i >= 5 else 0); ga = vGa + (1 if i >= 5 else 0)
            sl = SLOT[i]
            wb, woff = (vWb, sl - (R+35840)) if sl >= R+35840 else (vWa, sl - XH)
            for hs in range(2):
                f = fb + hs*28
                a(f"ds_read_b128 v[{f}:{f+3}], v{xa+hs} offset:{(i%5)*8192}")
                for t in range(5):
                    ff = f + 4 + 4*t
                    a(f"ds_read_b64_tr_b16 v[{ff}:{ff+1}], v{wb} offset:{woff + hs*5120 + 32*t}")
                    a(f"ds_read_b64_tr_b16 v[{ff+2}:{ff+3}], v{wb} offset:{woff + hs*5120 + 32*t + 1280}")
                a(f"ds_read_b128 v[{f+24}:{f+27}], v{ga} offset:{(i%5)*128 + hs*64}")
        def mfmas(i, hs):
            f = FB[i & 1] + hs*28
            for t in range(6):
                a(f"v_mfma_f32_16x16x32_bf16 v[{ACC+4*t}:{ACC+4*t+3}], v[{f+4+4*t}:{f+7+4*t}], v[{f}:{f+3}], v[{ACC+4*t}:{ACC+4*t+3}]")
        need_free = {0, 1, 2, 3, 5, 6, 7}
        self.poll(FLW + 0, 1)
        a("s_waitcnt vmcnt(18)")
        reads(0)
        a("s_waitcnt lgkmcnt(0)")
        self.signal(FREE + 0)
        for i in range(10):
            mfmas(i, 0)
            if i < 9:
                self.poll(FLW + 4*(i+1), 1)
                a(f"s_waitcnt vmcnt({18 - 2*(i+1)})")
                reads(i+1)
            else:
                self.poll(FREE + 4*3, 4)
            mfmas(i, 1)
            if i < 9:
                a("s_waitcnt lgkmcnt(0)")
                if (i+1) in need_free: self.signal(FREE + 4*(i+1))
        self.stamp(2)
        a(f"""
s_mov_b32 s{sT}, {CSC}
v_and_b32 v{vT}, 15, v{vL}
v_lshrrev_b32 v{vT+1}, 4, v{vL}
s_lshl_b32 s{sT+1}, s{sW}, 4
v_add_u32 v{vT}, s{sT+1}, v{vT}
v_mul_u32_u24 v{vT+2}, 160, v{vT}
v_lshl_add_u32 v{vT+2}, v{vT+1}, 3, v{vT+2}
v_add_u32 v{vT+2}, {QBUF}, v{vT+2}
v_lshl_add_u32 v{vT+3}, v{vT}, 2, v{vMISC}
""")
        for t in range(5):
            c = ACC + 4*t
            for r in range(4): a(f"v_mul_f32 v{c+r}, s{sT}, v{c+r}")
            a(f"v_cvt_pk_bf16_f32 v{c}, v{c}, v{c+1}")
            a(f"v_cvt_pk_bf16_f32 v{c+1}, v{c+2}, v{c+3}")
            a(f"ds_write_b64 v{vT+2}, v[{c}:{c+1}] offset:{32*t}")
        g = ACC + 20
        a(f"""
v_mul_f32 v{g}, {0x80000000 | LOG2E}, v{g}
v_exp_f32 v{g}, v{g}
v_add_f32 v{g}, 1.0, v{g}
v_rcp_f32 v{g}, v{g}
s_mov_b64 exec, 0xffff
ds_write_b32 v{vT+3}, v{g} offset:{GBUF}
s_mov_b64 exec, -1
s_waitcnt lgkmcnt(0)
s_barrier
""")
        self.stamp(3)

    def g_pre(self):
        a = self.a
        vW5 = 10
        a.label("L_G")
        a(f"s_cmp_eq_u32 s{sW}, 7\ns_cbranch_scc1 L_P0")
        self.srd(sWQ, 24, 819200)
        a(f"""
s_cmp_lg_u32 s{sW}, 6
s_cbranch_scc1 L_nopf
s_getpc_b64 s[8:9]
L_pc0:
s_lshl_b32 s{sT}, s11, 11
v_lshlrev_b32 v{vT}, 7, v{vL}
v_add_u32 v{vT}, s{sT}, v{vT}
v_min_u32 v{vT}, L_code_end-L_pc0, v{vT}
v_mov_b32 v{vT+1}, s9
v_add_co_u32 v{vT}, vcc, s8, v{vT}
v_addc_co_u32 v{vT+1}, vcc, 0, v{vT+1}, vcc
s_mov_b64 exec, 0xffff
global_load_dword v9, v[{vT}:{vT+1}], off
s_mov_b64 exec, -1
L_nopf:
""")
        self.w160_voff(vW5)
        a("s_barrier")
        self.stamp(1)
        def koff(i):
            sb = 12 if i < 5 else 13
            a(f"s_add_u32 s{sT+4}, s{sb}, {i % 5}\ns_mul_i32 s{sT+4}, s{sT+4}, 81920")
        def issue(i):
            koff(i); self.issue_w160(vW5, sWQ, sT+4, SLOT[i])
        def landed(i, cnt):
            a(f"s_waitcnt vmcnt({cnt})"); self.signal(FLW + 4*i)
        a(f"s_cmp_eq_u32 s{sW}, 5\ns_cbranch_scc1 L_ld5\ns_cmp_eq_u32 s{sW}, 6\ns_cbranch_scc1 L_ld6")
        issue(0); issue(3); landed(0, 10); landed(3, 0)
        self.poll(P0D, 1); issue(6)
        self.poll(FREE + 4*2, 4); issue(9)
        landed(6, 10); landed(9, 0)
        a("s_branch L_g_join")
        a.label("L_ld5")
        issue(1); issue(4); landed(1, 10); landed(4, 0)
        self.poll(FREE + 0, 4); issue(7); landed(7, 0)
        a(f"s_lshl_b32 s{sT+4}, s{sRB}, 6\ns_sub_u32 s{sT+4}, s{sT+4}, 16")
        self.x_voff(16, sT+4)
        self.poll(FREE + 4*5, 4); self.poll(FREE + 4*6, 4)
        a(f"s_mov_b32 s{sT+6}, 0")
        for kb in range(10):
            for e in range(2):
                a(f"s_mov_b32 m0, {XH + kb*2048 + e*1024}")
                a(f"buffer_load_dwordx4 v{16+e}, s[{sX}:{sX+3}], s{sT+6} offen lds")
            if kb < 9: a(f"s_add_u32 s{sT+6}, s{sT+6}, 128")
        a("s_branch L_g_join")
        a.label("L_ld6")
        issue(2); landed(2, 0)
        self.poll(P0D, 1); issue(5)
        self.poll(FREE + 4*1, 4); issue(8)
        landed(5, 10); landed(8, 0)
        a("s_branch L_g_join")
        a.label("L_P0")
        vXO = 16; vLin = 18; vEP = 19; vXF = 20; vWp = 24; T0 = 28; T1 = 32; FB = [40, 64]
        a(f"""
v_mov_b32 v{vLin}, 0
buffer_load_dword v{vEP}, v{vLin}, s[{sWS}:{sWS+3}], 0 offen sc1
s_bitcmp1_b32 s{sHG}, 0
s_cselect_b32 s{sWKV}, s28, s26
s_cselect_b32 s{sWKV+1}, s29, s27
s_mov_b32 s{sWKV+2}, 25600
s_mov_b32 s{sWKV+3}, 0x20000
v_lshlrev_b32 v{vLin}, 4, v{vL}
""")
        self.srd(sGATE, 32, 1280)
        a(f"""
s_lshl_b32 s{sT+4}, s{sRB}, 6
s_lshl_b32 s{sT+5}, s14, 4
s_add_u32 s{sT+8}, s{sT+4}, s{sT+5}
""")
        self.x_voff(vXO, sT+8)
        ops = []
        a(f"s_mov_b32 m0, {GATE}")
        a(f"buffer_load_dwordx4 v{vLin}, s[{sGATE}:{sGATE+3}], 0 offen lds")
        a(f"buffer_load_dwordx4 v{vLin}, s[{sGATE}:{sGATE+3}], 0 offen offset:1024 lds")
        a(f"s_lshl_b32 s{sT+5}, s14, 11\ns_mov_b32 s{sT+6}, 0")
        n = 0; wp = 0; after = []
        for kb in range(10):
            for e in range(2):
                a(f"s_add_u32 m0, s{sT+5}, {XM + kb*8192 + e*1024}")
                a(f"buffer_load_dwordx4 v{vXO+e}, s[{sX}:{sX+3}], s{sT+6} offen lds"); n += 1
            if kb < 9: a(f"s_add_u32 s{sT+6}, s{sT+6}, 128")
            lim = min(25, -(-((kb+1)*2560 + 32) // 1024))
            while wp < lim:
                a(f"s_mov_b32 m0, {P0W + 1024*wp}")
                a(f"s_movk_i32 s{sT+7}, {1024*wp}")
                a(f"buffer_load_dwordx4 v{vLin}, s[{sWKV}:{sWKV+3}], s{sT+7} offen lds"); n += 1; wp += 1
            after.append(n)
        total = n
        a("s_barrier")
        self.stamp(1)
        self.xfrag_addr(vXF, XM, 14, 8192, rot=False)
        self.tr_base(vWp, 40, swap=False)
        a(f"v_add_u32 v{vWp}, {P0W}, v{vWp}")
        for i in range(8): a(f"v_mov_b32 v{T0+i}, 0")
        def reads(kb):
            fb = FB[kb & 1]
            xa = vXF + (2 if kb >= 5 else 0)
            for hs in range(2):
                f = fb + 12*hs
                a(f"ds_read_b128 v[{f}:{f+3}], v{xa+hs} offset:{(kb%5)*8192}")
                for t in range(2):
                    o = (2*kb+hs)*1280 + 32*t
                    a(f"ds_read_b64_tr_b16 v[{f+4+4*t}:{f+5+4*t}], v{vWp} offset:{o}")
                    a(f"ds_read_b64_tr_b16 v[{f+6+4*t}:{f+7+4*t}], v{vWp} offset:{o+160}")
        def loop(isV):
            a(f"s_waitcnt vmcnt({total-after[0]})")
            reads(0)
            for kb in range(10):
                if kb < 9:
                    a(f"s_waitcnt vmcnt({total-after[kb+1]})")
                    if kb == 8: self.signal(FLX)
                    reads(kb+1)
                    a("s_waitcnt lgkmcnt(10)")
                else:
                    a("s_waitcnt lgkmcnt(0)")
                    self.signal(P0D)
                fb = FB[kb & 1]
                for hs in range(2):
                    f = fb + 12*hs
                    for t, T in ((0, T0), (1, T1)):
                        xf = f"v[{f}:{f+3}]"; wf = f"v[{f+4+4*t}:{f+7+4*t}]"
                        A, B = (xf, wf) if isV else (wf, xf)
                        a(f"v_mfma_f32_16x16x32_bf16 v[{T}:{T+3}], {A}, {B}, v[{T}:{T+3}]")
        a(f"""
s_bitcmp1_b32 s{sHG}, 0
s_cbranch_scc1 L_P0V
""")
        loop(False)
        a(f"""
v_and_b32 v{vT}, 15, v{vL}
v_lshrrev_b32 v{vT+1}, 4, v{vL}
v_add_u32 v{vT}, s{sT+8}, v{vT}
v_mul_u32_u24 v{vT}, 40, v{vT}
v_lshl_add_u32 v{vT}, v{vT+1}, 3, v{vT}
s_mov_b32 s{sT}, {WS_K}
v_cvt_pk_bf16_f32 v{T0}, v{T0}, v{T0+1}
v_cvt_pk_bf16_f32 v{T0+1}, v{T0+2}, v{T0+3}
v_cvt_pk_bf16_f32 v{T1}, v{T1}, v{T1+1}
v_cvt_pk_bf16_f32 v{T1+1}, v{T1+2}, v{T1+3}
buffer_store_dwordx2 v[{T0}:{T0+1}], v{vT}, s[{sWS}:{sWS+3}], s{sT} offen sc1
v_mov_b32 v{vT+2}, 0
s_mov_b64 exec, 0xffff
buffer_store_dwordx2 v[{T1}:{T1+1}], v{vT}, s[{sWS}:{sWS+3}], s{sT} offen offset:32 sc1
v_dot2_f32_bf16 v{vT+2}, v{T1}, v{T1}, v{vT+2}
v_dot2_f32_bf16 v{vT+2}, v{T1+1}, v{T1+1}, v{vT+2}
s_mov_b64 exec, -1
v_dot2_f32_bf16 v{vT+2}, v{T0}, v{T0}, v{vT+2}
v_dot2_f32_bf16 v{vT+2}, v{T0+1}, v{T0+1}, v{vT+2}
v_mov_b32 v{vT+3}, v{vT+2}
v_permlane16_swap_b32 v{vT+2}, v{vT+3}
v_add_f32 v{vT+2}, v{vT+2}, v{vT+3}
v_mov_b32 v{vT+3}, v{vT+2}
v_permlane32_swap_b32 v{vT+2}, v{vT+3}
v_add_f32 v{vT+2}, v{vT+2}, v{vT+3}
v_max_f32_dpp v{vT+2}, v{vT+2}, v{vT+2} row_ror:8 row_mask:0xf bank_mask:0xf
v_max_f32_dpp v{vT+2}, v{vT+2}, v{vT+2} row_ror:4 row_mask:0xf bank_mask:0xf
v_max_f32_dpp v{vT+2}, v{vT+2}, v{vT+2} row_ror:2 row_mask:0xf bank_mask:0xf
v_max_f32_dpp v{vT+2}, v{vT+2}, v{vT+2} row_ror:1 row_mask:0xf bank_mask:0xf
v_mov_b32 v{vT+5}, v{vT+2}
s_branch L_P0pub
""")
        a.label("L_P0V")
        loop(True)
        a(f"""
v_and_b32 v{vT}, 15, v{vL}
v_lshrrev_b32 v{vT+1}, 5, v{vL}
v_mul_u32_u24 v{vT+1}, 336, v{vT+1}
v_lshl_add_u32 v{vT+1}, v{vT}, 4, v{vT+1}
v_bfe_u32 v{vT+2}, v{vL}, 4, 1
v_lshl_add_u32 v{vT+1}, v{vT+2}, 3, v{vT+1}
s_lshr_b32 s{sT}, s{sT+8}, 4
s_mul_i32 s{sT}, s{sT}, 672
s_add_u32 s{sT}, s{sT}, {WS_V}
v_cvt_pk_bf16_f32 v{T0}, v{T0}, v{T0+1}
v_cvt_pk_bf16_f32 v{T0+1}, v{T0+2}, v{T0+3}
v_cvt_pk_bf16_f32 v{T1}, v{T1}, v{T1+1}
v_cvt_pk_bf16_f32 v{T1+1}, v{T1+2}, v{T1+3}
buffer_store_dwordx2 v[{T0}:{T0+1}], v{vT+1}, s[{sWS}:{sWS+3}], s{sT} offen sc1
s_mov_b32 s{sT+2}, 0x00100010
s_mov_b32 s{sT+3}, 0x00100010
s_mov_b64 exec, s[{sT+2}:{sT+3}]
v_mov_b32 v{T1}, 0x3f803f80
v_mov_b32 v{T1+1}, 0x3f803f80
s_mov_b32 s{sT+2}, 0x001f001f
s_mov_b32 s{sT+3}, 0x001f001f
s_mov_b64 exec, s[{sT+2}:{sT+3}]
buffer_store_dwordx2 v[{T1}:{T1+1}], v{vT+1}, s[{sWS}:{sWS+3}], s{sT} offen offset:256 sc1
s_mov_b64 exec, -1
v_mov_b32 v{vT+5}, 0
""")
        a.label("L_P0pub")
        a(f"""
v_readfirstlane_b32 s{sTAG}, v{vEP}
s_mul_i32 s{sTAG}, s{sTAG}, 0x41C64E6D
s_add_u32 s{sTAG}, s{sTAG}, 0x3039
v_mov_b32 v{vT+4}, s{sTAG}
s_lshl_b32 s{sT}, s2, 3
s_add_u32 s{sT}, s{sT}, {WS_GRAN}
v_mov_b32 v{vT}, 0
s_waitcnt vmcnt(0)
s_mov_b64 exec, 1
buffer_store_dwordx2 v[{vT+4}:{vT+5}], v{vT}, s[{sWS}:{sWS+3}], s{sT} offen sc1
ds_write_b32 v{vMISC}, v{vT+4} offset:{TAGO}
s_mov_b64 exec, -1
""")
        self.stamp(2)
        self.w160_voff(vW5)
        self.poll(FREE + 4*7, 4)
        a(f"""
v_lshlrev_b32 v{vT}, 5, v{vL}
s_movk_i32 s{sT}, {WS_GRAN}
s_mov_b32 s{sCNT}, 0x8000
L_gpoll:
buffer_load_dwordx4 v[40:43], v{vT}, s[{sWS}:{sWS+3}], s{sT} offen sc1
buffer_load_dwordx4 v[44:47], v{vT}, s[{sWS}:{sWS+3}], s{sT} offen offset:16 sc1
s_waitcnt vmcnt(0)
v_cmp_eq_u32 vcc, s{sTAG}, v40
v_cmp_eq_u32 s[{sT+2}:{sT+3}], s{sTAG}, v42
v_cmp_eq_u32 s[{sT+4}:{sT+5}], s{sTAG}, v44
v_cmp_eq_u32 s[{sT+6}:{sT+7}], s{sTAG}, v46
s_and_b64 vcc, vcc, s[{sT+2}:{sT+3}]
s_and_b64 s[{sT+4}:{sT+5}], s[{sT+4}:{sT+5}], s[{sT+6}:{sT+7}]
s_and_b64 vcc, vcc, s[{sT+4}:{sT+5}]
s_cmp_eq_u64 vcc, -1
s_cbranch_scc1 L_gdone
s_sleep 4
s_sub_u32 s{sCNT}, s{sCNT}, 1
s_cmp_lg_u32 s{sCNT}, 0
s_cbranch_scc1 L_gpoll
L_gdone:
v_max3_f32 v41, v41, v43, v45
v_max_f32 v41, v41, v47
v_max_f32_dpp v41, v41, v41 row_ror:8 row_mask:0xf bank_mask:0xf
v_max_f32_dpp v41, v41, v41 row_ror:4 row_mask:0xf bank_mask:0xf
v_max_f32_dpp v41, v41, v41 row_ror:2 row_mask:0xf bank_mask:0xf
v_max_f32_dpp v41, v41, v41 row_ror:1 row_mask:0xf bank_mask:0xf
v_mov_b32 v42, v41
v_permlane16_swap_b32 v41, v42
v_max_f32 v41, v41, v42
v_mov_b32 v42, v41
v_permlane32_swap_b32 v41, v42
v_max_f32 v41, v41, v42
s_mov_b64 exec, 1
ds_write_b32 v{vMISC}, v41 offset:{KMAX}
s_cmp_lg_u32 s2, 0
s_cbranch_scc1 L_noepoch
v_mov_b32 v{vT}, 0
v_mov_b32 v{vT+4}, s{sTAG}
buffer_store_dword v{vT+4}, v{vT}, s[{sWS}:{sWS+3}], 0 offen sc1
L_noepoch:
s_mov_b64 exec, -1
""")
        a.label("L_g_join")
        a("s_waitcnt lgkmcnt(0)")
        self.stamp(2 if False else 4)
        a("s_barrier")
        self.stamp(3)
```

```python
from gen2 import *

S_ = [16, 32, 48, 64]; O_ = [80, 96, 112, 128]; Q_ = [144, 152, 160, 168]; K_ = [176, 184]; V_ = [192, 200]
vIDX = 208; vKa = 209; vKb = 210; vVa = 211; vG = 212
sK = 8; sV = 9
THR = f32bits(2.0 ** -64)

class Gen3(Gen2):
    def pollv(self, vaddr, off, val, tmp=vT, st=sT, prio=False):
        a = self.a; L = a.uid("Lp"); D = a.uid("Lpd")
        a(f"s_mov_b32 s{sCNT}, 0x20000")
        a.label(L)
        a(f"ds_read_b32 v{tmp}, v{vaddr} offset:{off}")
        a("s_waitcnt lgkmcnt(0)")
        a(f"v_readfirstlane_b32 s{st}, v{tmp}")
        a(f"s_cmp_ge_u32 s{st}, {val}")
        a(f"s_cbranch_scc1 {D}")
        a(f"s_sub_u32 s{sCNT}, s{sCNT}, 1\ns_cmp_lg_u32 s{sCNT}, 0\ns_cbranch_scc1 {L}")
        a.label(D)
    def loadK(self, b):
        k = K_[b]
        return [f"buffer_load_dwordx4 v[{k}:{k+3}], v{vKa}, s[{sWS}:{sWS+3}], s{sK} offen sc1",
                f"buffer_load_dwordx2 v[{k+4}:{k+5}], v{vKb}, s[{sWS}:{sWS+3}], s{sK} offen offset:32 sc1\ns_add_u32 s{sK}, s{sK}, 1280"]
    def loadV(self, b):
        v = V_[b]
        return [f"buffer_load_dwordx4 v[{v}:{v+3}], v{vVa}, s[{sWS}:{sWS+3}], s{sV} offen sc1",
                f"buffer_load_dwordx4 v[{v+4}:{v+7}], v{vVa}, s[{sWS}:{sWS+3}], s{sV} offen offset:672 sc1\ns_add_u32 s{sV}, s{sV}, 1344"]
    def qk(self, Sn, K, Q):
        return [f"v_mfma_f32_32x32x16_bf16 v[{Sn}:{Sn+15}], v[{K}:{K+3}], v[{Q}:{Q+3}], 0",
                f"v_mfma_f32_32x32x16_bf16 v[{Sn}:{Sn+15}], v[{K+4}:{K+7}], v[{Q+4}:{Q+7}], v[{Sn}:{Sn+15}]"]
    def pv(self, O, V, P):
        return [f"v_smfmac_f32_32x32x32_bf16 v[{O}:{O+15}], v[{V}:{V+3}], v[{P}:{P+7}], v{vIDX}",
                f"v_smfmac_f32_32x32x32_bf16 v[{O}:{O+15}], v[{V+4}:{V+7}], v[{P+8}:{P+15}], v{vIDX}"]
    def flag_poll(self, ws_base, tmp):
        a = self.a; L = a.uid("Lf"); D = a.uid("Lfd")
        a(f"""
v_and_b32 v{vT}, 7, v{vL}
v_lshlrev_b32 v{vT}, 7, v{vT}
s_lshl_b32 s{sT}, s{sRB}, 10
s_add_u32 s{sT}, s{sT}, {ws_base}
s_mov_b32 s{sCNT}, 0x8000
s_mov_b64 exec, 0xff
{L}:
buffer_load_dwordx4 v[{tmp}:{tmp+3}], v{vT}, s[{sWS}:{sWS+3}], s{sT} offen sc1
s_waitcnt vmcnt(0)
v_cmp_eq_u32 vcc, s{sTAG}, v{tmp}
v_cmp_eq_u32 s[{sT+2}:{sT+3}], s{sTAG}, v{tmp+1}
v_cmp_eq_u32 s[{sT+4}:{sT+5}], s{sTAG}, v{tmp+2}
v_cmp_eq_u32 s[{sT+6}:{sT+7}], s{sTAG}, v{tmp+3}
s_and_b32 s{sT+2}, s{sT+2}, vcc_lo
s_and_b32 s{sT+4}, s{sT+4}, s{sT+6}
s_and_b32 s{sT+2}, s{sT+2}, s{sT+4}
s_cmp_eq_u32 s{sT+2}, 0xff
s_cbranch_scc1 {D}
s_sleep 2
s_sub_u32 s{sCNT}, s{sCNT}, 1
s_cmp_lg_u32 s{sCNT}, 0
s_cbranch_scc1 {L}
{D}:
s_mov_b64 exec, -1
""")
    def flag_store(self, ws_base, widx_sgpr):
        a = self.a
        a(f"""
s_lshl_b32 s{sT}, s{sRB}, 3
s_add_u32 s{sT}, s{sT}, s{sHG}
s_lshl_b32 s{sT}, s{sT}, 7
s_lshl2_add_u32 s{sT}, s{widx_sgpr}, s{sT}
s_add_u32 s{sT}, s{sT}, {ws_base}
v_mov_b32 v{vT}, 0
v_mov_b32 v{vT+1}, s{sTAG}
s_waitcnt vmcnt(0)
s_mov_b64 exec, 1
buffer_store_dword v{vT+1}, v{vT}, s[{sWS}:{sWS+3}], s{sT} offen sc1
s_mov_b64 exec, -1
""")

    def m_main(self):
        a = self.a
        a(f"""
v_and_b32 v{vT}, 31, v{vL}
v_lshrrev_b32 v{vT+1}, 5, v{vL}
v_mul_u32_u24 v{vKb}, 40, v{vT}
v_lshl_add_u32 v{vKa}, v{vT+1}, 4, v{vKb}
v_mul_u32_u24 v{vT+2}, 336, v{vT+1}
v_lshl_add_u32 v{vVa}, v{vT}, 4, v{vT+2}
v_mov_b32 v{vT+3}, 0x7fffffff
v_cmp_lt_u32 vcc, 20, v{vT}
v_cndmask_b32 v{vVa}, v{vVa}, v{vT+3}, vcc
s_and_b32 s10, s{sW}, 1
s_mul_i32 s{sK}, s10, 40960
s_add_u32 s{sK}, s{sK}, {WS_K}
s_mul_i32 s{sV}, s10, 43008
s_add_u32 s{sV}, s{sV}, {WS_V}
""")
        for l in self.loadK(0) + self.loadV(0) + self.loadK(1): a(l)
        a(f"""
v_mul_u32_u24 v{vT+2}, 160, v{vT}
v_lshl_add_u32 v{vT+2}, v{vT+1}, 4, v{vT+2}
s_mul_i32 s{sT}, s{sW}, 40
s_xor_b32 s{sT+1}, s{sW}, 1
s_mul_i32 s{sT+1}, s{sT+1}, 40
s_add_u32 s{sT}, s{sT}, {QBUF}
s_add_u32 s{sT+1}, s{sT+1}, {QBUF}
v_add_u32 v10, s{sT}, v{vT+2}
v_add_u32 v11, s{sT+1}, v{vT+2}
v_lshl_add_u32 v12, v{vT}, 2, v{vMISC}
ds_read_b32 v13, v{vMISC} offset:{KMAX}
ds_read_b32 v14, v{vMISC} offset:{TAGO}
ds_read_b32 v{vG}, v12 offset:{GBUF}
ds_read_b32 v{vG+1}, v12 offset:{GBUF+128}
""")
        for b in range(4):
            q = Q_[b]; ad = 10 + (b >> 1); o = (b & 1) * 5120
            a(f"ds_read_b64 v[{q}:{q+1}], v{ad} offset:{o}\nds_read_b64 v[{q+2}:{q+3}], v{ad} offset:{o+8}")
            for r in range(4): a(f"v_mov_b32 v{q+4+r}, 0")
        a("s_mov_b32 exec_hi, 0")
        for b in range(4):
            q = Q_[b]; ad = 10 + (b >> 1); o = (b & 1) * 5120
            a(f"ds_read_b64 v[{q+4}:{q+5}], v{ad} offset:{o+32}")
        a("s_mov_b64 exec, -1")
        for i in range(64): a(f"v_mov_b32 v{O_[0]+i}, 0")
        for i in range(16): a(f"v_mov_b32 v{S_[3]+i}, 0")
        for i in range(8): a(f"v_mov_b32 v{V_[1]+i}, 0")
        for b in range(2):
            a(f"v_mov_b32 v{K_[b]+6}, 0x3f803f80\nv_mov_b32 v{K_[b]+7}, 0x3f80")
        a(f"v_mov_b32 v{vIDX}, 0xdddddddd")
        a("s_waitcnt lgkmcnt(0)")
        a(f"v_readfirstlane_b32 s{sTAG}, v14")
        a(f"v_sub_f32 v{vG}, 1.0, v{vG}\nv_sub_f32 v{vG+1}, 1.0, v{vG+1}")
        for b in range(4):
            q = Q_[b]; n = S_[0] + b
            a(f"v_mov_b32 v{n}, 0")
        for i in range(6):
            for b in range(4):
                q = Q_[b]; n = S_[0] + b
                a(f"v_dot2_f32_bf16 v{n}, v{q+i}, v{q+i}, v{n}")
        for b in range(4):
            a(f"v_mov_b32 v{S_[0]+4+b}, v{S_[0]+b}")
        for b in range(4):
            a(f"v_permlane32_swap_b32 v{S_[0]+b}, v{S_[0]+4+b}")
        for b in range(4):
            n = S_[0] + b
            a(f"v_add_f32 v{n}, v{n}, v{n+4}\nv_mul_f32 v{n}, v{n}, v13")
        for b in range(4): a(f"v_sqrt_f32 v{S_[0]+b}, v{S_[0]+b}")
        a("s_mov_b32 exec_hi, 0")
        for b in range(4):
            n = S_[0] + b
            a(f"v_mul_f32 v{n}, {f32bits(-(1.0 + 2.0**-6))}, v{n}")
            a(f"v_lshrrev_b32 v{Q_[b]+6}, 16, v{n}")
        a("s_mov_b64 exec, -1")
        a("s_waitcnt vmcnt(4)")
        for l in self.qk(S_[0], K_[0], Q_[0]): a(l)
        a(f"s_mov_b32 s{sCNT}, 16")
        self.stamp(4)
        a("s_nop 7")
        a(".p2align 6")
        a.label("L_mqa")
        for kb in range(2):
            for j in range(4):
                e = [f"v_exp_f32 v{S_[j]+i}, v{S_[j]+i}" for i in range(16)]
                m = self.qk(S_[(j+1) % 4], K_[kb if j < 3 else 1-kb], Q_[(j+1) % 4]) + self.pv(O_[(j+3) % 4], V_[kb if j > 0 else 1-kb], S_[(j+3) % 4])
                pre = [None]*4; post = [None]*4
                if j == 1:
                    pre[2] = "s_waitcnt vmcnt(2)"
                    lv = self.loadV(1-kb); post[2] = lv[0]; post[3] = lv[1]
                if j == 3:
                    pre[0] = "s_waitcnt vmcnt(2)"
                    lk = self.loadK(kb); post[0] = lk[0]; post[1] = lk[1]
                    if kb == 1:
                        post[2] = f"s_sub_u32 s{sCNT}, s{sCNT}, 1"
                        post[3] = f"s_cmp_lg_u32 s{sCNT}, 0"
                for x in range(4):
                    if pre[x]: a(pre[x])
                    a(m[x])
                    if post[x]: a(post[x])
                    for l in e[4*x:4*x+4]: a(l)
        a("s_cbranch_scc1 L_mqa")
        for l in self.pv(O_[3], V_[1], S_[3]): a(l)
        self.stamp(5)
        self.poll(GDONE, 4)
        a(f"""
s_mul_i32 s{sT+1}, s{sW}, 6144
s_xor_b32 s{sT+2}, s{sW}, 1
s_mul_i32 s{sT+3}, s{sT+2}, 6144
s_add_u32 s{sT+1}, s{sT+1}, {RED}
s_add_u32 s{sT+3}, s{sT+3}, {RED}
v_lshlrev_b32 v{vT+1}, 4, v{vL}
v_add_u32 v10, s{sT+1}, v{vT+1}
v_add_u32 v11, s{sT+3}, v{vT+1}
s_lshl_b32 s{sT+1}, s{sW}, 2
s_lshl_b32 s{sT+2}, s{sT+2}, 2
v_add_u32 v12, s{sT+1}, v{vMISC}
v_add_u32 v13, s{sT+2}, v{vMISC}
""")
        for b in range(2):
            for i in range(3):
                o = O_[2+b] + 4*i
                a(f"ds_write_b128 v10, v[{o}:{o+3}] offset:{(3*b+i)*1024}")
        a(f"s_waitcnt lgkmcnt(0)\ns_mov_b64 exec, 1\nds_add_u32 v12, v{vONE} offset:{PAIR}\ns_mov_b64 exec, -1")
        self.pollv(13, PAIR, 1)
        for b in range(2):
            for i in range(3):
                o = S_[b] + 4*i
                a(f"ds_read_b128 v[{o}:{o+3}], v11 offset:{(3*b+i)*1024}")
        a("s_waitcnt lgkmcnt(0)")
        for b in range(2):
            for i in range(12):
                a(f"v_add_f32 v{O_[b]+i}, v{O_[b]+i}, v{S_[b]+i}")
        for b in range(2):
            a(f"v_mov_b32 v{S_[2]+2*b}, v{O_[b]+8}\nv_mov_b32 v{S_[2]+2*b+1}, v{O_[b]+8}")
        for b in range(2):
            a(f"v_permlane32_swap_b32 v{S_[2]+2*b}, v{S_[2]+2*b+1}")
        a(f"""
v_min_f32 v{vT}, v{S_[2]+1}, v{S_[2]+3}
v_add_f32 v{vT+1}, v{S_[2]+1}, v{S_[2]+3}
s_mov_b32 s{sT}, {THR}
v_cmp_nle_f32 vcc, s{sT}, v{vT}
v_cmp_u_f32 s[{sT+2}:{sT+3}], v{vT+1}, v{vT+1}
s_or_b64 vcc, vcc, s[{sT+2}:{sT+3}]
s_cbranch_vccnz L_fallback
L_m_norm:
v_rcp_f32 v{S_[2]+1}, v{S_[2]+1}
v_rcp_f32 v{S_[2]+3}, v{S_[2]+3}
v_and_b32 v{vT}, 15, v{vL}
v_bfe_u32 v{vT+1}, v{vL}, 4, 1
v_mul_u32_u24 v{vT+1}, 40960, v{vT+1}
v_lshl_add_u32 v{vT}, v{vT}, 4, v{vT+1}
v_lshrrev_b32 v{vT+1}, 5, v{vL}
v_mul_u32_u24 v{vT+2}, 81920, v{vT+1}
v_add_u32 v11, v{vT}, v{vT+2}
v_xor_b32 v{vT+1}, s10, v{vT+1}
v_lshl_add_u32 v10, v{vT+1}, 8, v{vT}
v_mul_f32 v{S_[2]+1}, v{S_[2]+1}, v{vG}
v_mul_f32 v{S_[2]+3}, v{S_[2]+3}, v{vG+1}
s_mul_i32 s{sT+1}, s{sRB}, 163840
s_mul_i32 s{sT+2}, s{sHG}, 2560
s_add_u32 s{sT+1}, s{sT+1}, s{sT+2}
s_lshr_b32 s{sT+2}, s{sW}, 1
s_mul_i32 s{sT+2}, s{sT+2}, 1280
s_add_u32 s{sT+1}, s{sT+1}, s{sT+2}
s_add_u32 s{sT+1}, s{sT+1}, {WS_OAB + 80*256}
s_add_u32 s{sT+2}, s{sT+1}, 81920
""")
        for b in range(2):
            for i in range(12):
                a(f"v_mul_f32 v{O_[b]+i}, v{O_[b]+i}, v{S_[2]+2*b+1}")
        a(f"s_cmp_lg_u32 s10, 0\ns_cbranch_scc1 L_m_odd")
        def cvt(d, s): a(f"v_cvt_pk_bf16_f32 v{d}, v{s}, v{s+1}\nv_cvt_pk_bf16_f32 v{d+1}, v{s+2}, v{s+3}")
        for b in range(2):
            d = S_[b]
            cvt(d, O_[b]); cvt(d+2, O_[b]+4); cvt(d+4, O_[b]+8)
        for b in range(2):
            d = S_[b]
            a(f"v_permlane32_swap_b32 v{d}, v{d+2}\nv_permlane32_swap_b32 v{d+1}, v{d+3}")
        a(f"v_permlane32_swap_b32 v{S_[0]+4}, v{S_[1]+4}\nv_permlane32_swap_b32 v{S_[0]+5}, v{S_[1]+5}")
        for b in range(2):
            d = S_[b]
            a(f"buffer_store_dwordx4 v[{d}:{d+3}], v10, s[{sWS}:{sWS+3}], s{sT+1+b} offen sc1")
        a(f"buffer_store_dwordx2 v[{S_[0]+4}:{S_[0]+5}], v11, s[{sWS}:{sWS+3}], s{sT+1} offen offset:512 sc1")
        a("s_branch L_m_pub")
        a.label("L_m_odd")
        for b in range(2):
            d = S_[b]
            cvt(d, O_[b]); cvt(d+2, O_[b]+8); cvt(d+4, O_[b]+4)
        for b in range(2):
            d = S_[b]
            a(f"v_permlane32_swap_b32 v{d+2}, v{d+4}\nv_permlane32_swap_b32 v{d+3}, v{d+5}")
        for b in range(2):
            d = S_[b]
            a(f"v_permlane32_swap_b32 v{d+4}, v{d}\nv_permlane32_swap_b32 v{d+5}, v{d+1}")
        a(f"v_permlane32_swap_b32 v{S_[0]+4}, v{S_[1]+4}\nv_permlane32_swap_b32 v{S_[0]+5}, v{S_[1]+5}")
        for b in range(2):
            d = S_[b]
            a(f"buffer_store_dwordx4 v[{d}:{d+3}], v10, s[{sWS}:{sWS+3}], s{sT+1+b} offen offset:768 sc1")
        a(f"buffer_store_dwordx2 v[{S_[1]+4}:{S_[1]+5}], v11, s[{sWS}:{sWS+3}], s{sT+1} offen offset:520 sc1")
        a.label("L_m_pub")
        self.flag_store(WS_FB, sW)
        self.stamp(6)
        if self.stop == "oab":
            a("s_branch L_fin")
        else:
            self.m_post()
            a("s_branch L_fin")
        self.m_fallback()

    def m_post(self):
        a = self.a
        OF = 16; ACC = 96; WF = [120, 140]; vWb = 10; vAD = 12
        self.srd(sOUT, 34, 2621440)
        self.tr_base(vWb, 160)
        a(f"v_add_u32 v{vWb+1}, 51200, v{vWb}")
        for i in range(20): a(f"v_mov_b32 v{ACC+i}, 0")
        self.poll(BWOL, 4)
        def wreads(ks):
            wb = vWb + (1 if ks >= 10 else 0); o = (ks % 10) * 5120; f = WF[ks & 1]
            for t in range(5):
                a(f"ds_read_b64_tr_b16 v[{f+4*t}:{f+4*t+1}], v{wb} offset:{o+32*t}")
                a(f"ds_read_b64_tr_b16 v[{f+4*t+2}:{f+4*t+3}], v{wb} offset:{o+32*t+1280}")
        wreads(0)
        self.flag_poll(WS_FB, 160)
        self.stamp(7)
        a(f"""
v_lshlrev_b32 v{vAD}, 4, v{vL}
s_lshl2_add_u32 s{sT}, s{sRB}, s{sW}
s_mul_i32 s{sT}, s{sT}, 40960
s_add_u32 s{sT}, s{sT}, {WS_OAB + 20480}
""")
        for ks in range(20):
            if ks and ks % 4 == 0: a(f"s_add_u32 s{sT}, s{sT}, 4096")
            a(f"buffer_load_dwordx4 v[{OF+4*ks}:{OF+4*ks+3}], v{vAD}, s[{sWS}:{sWS+3}], s{sT} offen offset:{(ks%4)*1024} sc1")
        for ks in range(20):
            if ks < 19:
                wreads(ks+1)
                a(f"s_waitcnt vmcnt({19-ks}) lgkmcnt(10)")
            else:
                a(f"s_waitcnt vmcnt(0) lgkmcnt(0)")
            f = WF[ks & 1]
            for t in range(5):
                a(f"v_mfma_f32_16x16x32_bf16 v[{ACC+4*t}:{ACC+4*t+3}], v[{f+4*t}:{f+4*t+3}], v[{OF+4*ks}:{OF+4*ks+3}], v[{ACC+4*t}:{ACC+4*t+3}]")
        self.stamp(8)
        a(f"s_lshl_b32 s{sT+1}, s{sW}, 2\nv_add_u32 v13, s{sT+1}, v{vMISC}")
        self.pollv(13, ACCA, 1)
        a(f"s_mul_i32 s{sT+1}, s{sW}, 5120\ns_add_u32 s{sT+1}, s{sT+1}, {R+10240}\nv_add_u32 v13, s{sT+1}, v{vAD}")
        for t in range(5): a(f"ds_read_b128 v[{OF+4*t}:{OF+4*t+3}], v13 offset:{1024*t}")
        a(f"""
v_and_b32 v{vT}, 15, v{vL}
s_lshl_b32 s{sT+1}, s{sRB}, 6
s_lshl_b32 s{sT+2}, s{sW}, 4
s_add_u32 s{sT+1}, s{sT+1}, s{sT+2}
v_add_u32 v{vT}, s{sT+1}, v{vT}
v_mul_u32_u24 v{vT}, 1280, v{vT}
v_lshrrev_b32 v{vT+1}, 4, v{vL}
v_lshl_add_u32 v{vT+3}, v{vT+1}, 3, v{vT}
v_bfe_u32 v{vT+1}, v{vL}, 4, 1
v_lshl_add_u32 v{vT}, v{vT+1}, 5, v{vT}
v_lshrrev_b32 v{vT+1}, 5, v{vL}
v_lshl_add_u32 v{vT}, v{vT+1}, 4, v{vT}
s_mul_i32 s{sT+1}, s{sHG}, 160
s_waitcnt lgkmcnt(0)
""")
        for i in range(20): a(f"v_add_f32 v{ACC+i}, v{ACC+i}, v{OF+i}")
        for t in range(5):
            d = WF[0] + 2*t + (0 if t < 4 else 0)
            a(f"v_cvt_pk_bf16_f32 v{d}, v{ACC+4*t}, v{ACC+4*t+1}\nv_cvt_pk_bf16_f32 v{d+1}, v{ACC+4*t+2}, v{ACC+4*t+3}")
        for p in range(2):
            d = WF[0] + 4*p
            a(f"v_permlane16_swap_b32 v{d}, v{d+2}\nv_permlane16_swap_b32 v{d+1}, v{d+3}")
        for p in range(2):
            d = WF[0] + 4*p
            a(f"buffer_store_dwordx4 v[{d}:{d+3}], v{vT}, s[{sOUT}:{sOUT+3}], s{sT+1} offen offset:{64*p}")
        a(f"buffer_store_dwordx2 v[{WF[0]+8}:{WF[0]+9}], v{vT+3}, s[{sOUT}:{sOUT+3}], s{sT+1} offen offset:128")

    def m_fallback(self):
        a = self.a
        MX = S_[2] + 4
        a.label("L_fallback")
        a("s_mov_b32 exec_hi, 0")
        for b in range(2): a(f"v_mov_b32 v{Q_[b]+6}, 0\nv_mov_b32 v{Q_[b]+7}, 0")
        a("s_mov_b64 exec, -1")
        a(f"v_mov_b32 v{MX}, 0xff7fffff\nv_mov_b32 v{MX+1}, 0xff7fffff")
        a(f"s_mov_b32 s{sK}, {WS_K}\ns_mov_b32 s{sCNT}, 64\ns_waitcnt vmcnt(0)")
        a.label("L_fb1")
        for l in self.loadK(0): a(l)
        a("s_waitcnt vmcnt(0)")
        for b in range(2):
            for l in self.qk(S_[b], K_[0], Q_[b]): a(l)
        for b in range(2):
            for i in range(8):
                a(f"v_max3_f32 v{MX+b}, v{S_[b]+2*i}, v{S_[b]+2*i+1}, v{MX+b}")
        a(f"s_sub_u32 s{sCNT}, s{sCNT}, 1\ns_cmp_lg_u32 s{sCNT}, 0\ns_cbranch_scc1 L_fb1")
        for b in range(2):
            m = MX + b; t = MX + 2
            a(f"""
v_mov_b32 v{t}, v{m}
v_permlane32_swap_b32 v{m}, v{t}
v_max_f32 v{m}, v{m}, v{t}
v_sub_f32 v{m}, 0, v{m}
v_and_b32 v{t}, 0xffff0000, v{m}
v_sub_f32 v{m}, v{m}, v{t}
v_and_b32 v{t+1}, 0xffff0000, v{m}
v_sub_f32 v{m}, v{m}, v{t+1}
s_mov_b32 exec_hi, 0
v_lshrrev_b32 v{t}, 16, v{t}
v_or_b32 v{Q_[b]+6}, v{t}, v{t+1}
v_lshrrev_b32 v{Q_[b]+7}, 16, v{m}
s_mov_b64 exec, -1
""")
        for i in range(32): a(f"v_mov_b32 v{O_[0]+i}, 0")
        a(f"s_mov_b32 s{sK}, {WS_K}\ns_mov_b32 s{sV}, {WS_V}\ns_mov_b32 s{sCNT}, 64")
        a.label("L_fb2")
        for l in self.loadK(0) + self.loadV(0): a(l)
        a("s_waitcnt vmcnt(0)")
        for b in range(2):
            for l in self.qk(S_[b], K_[0], Q_[b]): a(l)
        for b in range(2):
            for i in range(16): a(f"v_exp_f32 v{S_[b]+i}, v{S_[b]+i}")
        for b in range(2):
            for l in self.pv(O_[b], V_[0], S_[b]): a(l)
        a(f"s_nop 15\ns_sub_u32 s{sCNT}, s{sCNT}, 1\ns_cmp_lg_u32 s{sCNT}, 0\ns_cbranch_scc1 L_fb2")
        for b in range(2):
            a(f"v_mov_b32 v{S_[2]+2*b}, v{O_[b]+8}\nv_mov_b32 v{S_[2]+2*b+1}, v{O_[b]+8}")
        for b in range(2):
            a(f"v_permlane32_swap_b32 v{S_[2]+2*b}, v{S_[2]+2*b+1}")
        a("s_nop 1\ns_branch L_m_norm")

    def g_main(self):
        a = self.a
        sU = 15
        vW5 = 10; vWO = 16; vXF = 20; vHF = 24; vWm = 28; vWh = 29; ACC = 32; XFR = 104; WR = 120; NF = 22
        a(f"s_sub_u32 s{sU}, s{sW}, 4")
        self.srd(sWQKV, 18, 2457600)
        a(f"ds_read_b32 v9, v{vMISC} offset:{TAGO}")
        a(f"s_mul_i32 s{sT}, s{sHG}, 160\ns_lshl_b32 s{sT+1}, s{sU}, 6")
        for i in range(4):
            a(f"""
v_add_u32 v{vT}, s{sT+1}, v{vL}
v_add_u32 v{vT}, {256*i}, v{vT}
v_mul_u32_u24 v{vT+1}, 2185, v{vT}
v_lshrrev_b32 v{vT+1}, 16, v{vT+1}
v_mul_u32_u24 v{vT+2}, 30, v{vT+1}
v_sub_u32 v{vT}, v{vT}, v{vT+2}
v_and_b32 v{vT+2}, 0x13, v{vT+1}
v_and_b32 v{vT+3}, 4, v{vT+1}
v_lshl_or_b32 v{vT+2}, v{vT+3}, 1, v{vT+2}
v_and_b32 v{vT+3}, 8, v{vT+1}
v_lshrrev_b32 v{vT+3}, 1, v{vT+3}
v_or_b32 v{vT+2}, v{vT+2}, v{vT+3}
v_mul_u32_u24 v{vT+2}, 3840, v{vT+2}
v_mul_u32_u24 v{vT+3}, 26, v{vT}
v_lshrrev_b32 v{vT+3}, 8, v{vT+3}
v_mul_u32_u24 v{vT+3}, 1120, v{vT+3}
v_lshl_add_u32 v{vT}, v{vT}, 4, v{vT+2}
v_add3_u32 v{vWO+i}, v{vT}, v{vT+3}, s{sT}
""")
        a(f"s_lshl_b32 s10, s{sU}, 10")
        def issue(s):
            sb = 12 if s < 10 else 13
            a(f"s_lshl_b32 s{sT+4}, s{sb}, 1\ns_add_u32 s{sT+4}, s{sT+4}, {s % 10}\ns_mul_i32 s{sT+4}, s{sT+4}, 122880")
            for i in range(4):
                if i == 3:
                    L = a.uid("Lsk")
                    a(f"s_cmp_eq_u32 s{sU}, 3\ns_cbranch_scc1 {L}")
                    a(f"s_add_u32 m0, s10, {RING[s % 3] + 4096*i}")
                    a(f"buffer_load_dwordx4 v{vWO+i}, s[{sWQKV}:{sWQKV+3}], s{sT+4} offen lds")
                    a.label(L)
                else:
                    a(f"s_add_u32 m0, s10, {RING[s % 3] + 4096*i}")
                    a(f"buffer_load_dwordx4 v{vWO+i}, s[{sWQKV}:{sWQKV+3}], s{sT+4} offen lds")
        issue(0); issue(1)
        self.xfrag_addr(vXF, XM, sU, 8192)
        self.xfrag_addr(vHF, XH, None, 2048)
        self.tr_base(vWm, 480)
        a(f"""
v_add_u32 v{vWm}, {R}, v{vWm}
s_mul_i32 s{sT}, s{sU}, 3
s_min_u32 s{sT}, s{sT}, 7
s_add_u32 s11, s{sT}, 5
s_lshl_b32 s{sT}, s11, 5
v_add_u32 v{vWh}, s{sT}, v{vWm}
s_waitcnt lgkmcnt(0)
v_readfirstlane_b32 s{sTAG}, v9
""")
        for i in range(72): a(f"v_mov_b32 v{ACC+i}, 0")
        self.stamp(5)
        def wfrag(n): return WR + 4 * (n % NF)
        def wread(s, j):
            n = 18*s + j; f = wfrag(n); so = RING[s % 3] - R
            base, o = (vWm, 32*j) if j < 15 else (vWh, 32*(j-15))
            a(f"ds_read_b64_tr_b16 v[{f}:{f+1}], v{base} offset:{so+o}")
            a(f"ds_read_b64_tr_b16 v[{f+2}:{f+3}], v{base} offset:{so+o+3840}")
        def xread(s):
            f = XFR + 8*(s & 1); kb = (s % 10) >> 1; hs = s & 1; sec = 2 if s >= 10 else 0
            a(f"ds_read_b128 v[{f}:{f+3}], v{vXF+sec+hs} offset:{kb*8192}")
            a(f"ds_read_b128 v[{f+4}:{f+7}], v{vHF+sec+hs} offset:{kb*2048}")
        def mfma(s, j):
            f = wfrag(18*s + j); x = XFR + 8*(s & 1) + (4 if j >= 15 else 0)
            a(f"v_mfma_f32_16x16x32_bf16 v[{ACC+4*j}:{ACC+4*j+3}], v[{f}:{f+3}], v[{x}:{x+3}], v[{ACC+4*j}:{ACC+4*j+3}]")
        AH = NF - 18
        for s in range(21):
            if s < 20:
                a(f"s_waitcnt vmcnt({3 if s < 19 else 0}) lgkmcnt(0)")
                self.signal(CNTG + 4*s)
            else:
                a("s_waitcnt lgkmcnt(0)")
                self.signal(GDONE)
            nm = 0
            if s > 0:
                for j in range(3): mfma(s-1, j)
                nm = 3
            if s < 20:
                self.poll(CNTG + 4*s, 4, prio=True)
                if s + 2 < 20: issue(s+2)
                xread(s)
                nr = 0
                lim = 18 if s == 0 else AH + nm
                while nr < lim: wread(s, nr); nr += 1
                while s > 0 and nm < 18:
                    mfma(s-1, nm); nm += 1
                    if nr < 18: wread(s, nr); nr += 1
            else:
                while nm < 18: mfma(s-1, nm); nm += 1
        self.stamp(6)
        a("s_setprio 2")
        self.poll(GDONE, 4)
        self.srd(sBWO, 30, 819200)
        self.srd(sAWO, 20, 819200)
        a(f"s_mul_i32 s{sT+4}, s{sU}, {5*40960}\ns_mul_i32 s{sT+5}, s{sU}, 25600")
        for ks in range(5):
            for p in range(5):
                a(f"s_add_u32 m0, s{sT+5}, {ks*5120 + p*1024}")
                a(f"buffer_load_dwordx4 v{vW5+p}, s[{sBWO}:{sBWO+3}], s{sT+4} offen lds")
            if ks < 4: a(f"s_add_u32 s{sT+4}, s{sT+4}, 40960")
        a(f"""
s_mov_b32 s{sT}, {CSC}
v_and_b32 v{vT}, 15, v{vL}
v_lshrrev_b32 v{vT+1}, 4, v{vL}
v_mul_u32_u24 v{vT}, 160, v{vT}
v_lshl_add_u32 v{vT}, v{vT+1}, 3, v{vT}
s_mul_i32 s{sT+1}, s{sU}, 2560
s_add_u32 s{sT+1}, s{sT+1}, {R}
v_add_u32 v{vT+1}, s{sT+1}, v{vT}
""")
        for j in range(15):
            c = ACC + 4*j
            if j < 5:
                for r in range(4): a(f"v_mul_f32 v{c+r}, s{sT}, v{c+r}")
            a(f"v_cvt_pk_bf16_f32 v{c}, v{c}, v{c+1}\nv_cvt_pk_bf16_f32 v{c+1}, v{c+2}, v{c+3}")
            off = [QA - R, KA - R + 2560, VA - R + 2560][j // 5] + 32*(j % 5)
            a(f"ds_write_b64 v{vT+1}, v[{c}:{c+1}] offset:{off}")
        for i in range(3):
            c = ACC + 60 + 4*i
            a(f"""
v_cvt_pk_bf16_f32 v{c}, v{c}, v{c+1}
v_cvt_pk_bf16_f32 v{c+1}, v{c+2}, v{c+3}
s_add_u32 s{sT+1}, s11, {i}
s_lshl_b32 s{sT+2}, s{sT+1}, 5
s_cmp_lt_u32 s{sT+1}, 10
s_cselect_b32 s{sT+3}, 0, {VA - 320 - (KA - 160)}
s_add_u32 s{sT+2}, s{sT+2}, s{sT+3}
s_add_u32 s{sT+2}, s{sT+2}, {KA - 160}
v_add_u32 v{vT+2}, s{sT+2}, v{vT}
ds_write_b64 v{vT+2}, v[{c}:{c+1}]
""")
        a("s_waitcnt lgkmcnt(0)")
        self.signal(LA1)
        self.local_attn(sU)
        self.stamp(8)
        if self.stop == "oab":
            return
        self.g_apart(sU)

    def local_attn(self, sU):
        a = self.a
        vQa = 16; vKa_ = 17; vVt = 19; vVo = 23; MK = 32
        QF = 48; KF = 64; VF = 96; SD = 128; PB = 160; OD = 176; TM = 208; GV = 224
        units = [(par, qh) for qh in range(2) for par in range(2)]
        BIG = f32bits(-1.0e30)
        a(f"""
v_and_b32 v{vT}, 15, v{vL}
v_lshrrev_b32 v{vT+1}, 4, v{vL}
s_mul_i32 s{sT}, s{sU}, 40
v_mul_u32_u24 v{vT+2}, 320, v{vT}
v_lshl_add_u32 v{vT+2}, v{vT+1}, 4, v{vT+2}
s_add_u32 s{sT+1}, s{sT}, {QA}
v_add_u32 v{vQa}, s{sT+1}, v{vT+2}
s_add_u32 s{sT+1}, s{sT}, {KA}
v_add_u32 v{vKa_}, s{sT+1}, v{vT+2}
v_min_u32 v{vT+3}, 7, v{vT}
v_mul_u32_u24 v{vT+3}, 320, v{vT+3}
v_lshl_add_u32 v{vT+3}, v{vT+1}, 4, v{vT+3}
v_add_u32 v{vKa_+1}, s{sT+1}, v{vT+3}
""")
        a(f"""
v_lshrrev_b32 v{vT+2}, 2, v{vL}
v_and_b32 v{vT+3}, 3, v{vL}
v_mul_u32_u24 v{vT+4}, 320, v{vT+2}
v_lshl_add_u32 v{vT+4}, v{vT+3}, 3, v{vT+4}
s_add_u32 s{sT+1}, s{sT}, {VA}
v_add_u32 v{vVt}, s{sT+1}, v{vT+4}
v_min_u32 v{vT+2}, 7, v{vT+2}
v_mul_u32_u24 v{vT+4}, 320, v{vT+2}
v_lshl_add_u32 v{vT+4}, v{vT+3}, 3, v{vT+4}
v_add_u32 v{vVt+1}, s{sT+1}, v{vT+4}
v_cmp_eq_u32 vcc, 0, v{vT+3}
""")
        for ui, (par, qh) in enumerate(units):
            o = (32*qh + par) * 160
            a(f"""
v_add_u32 v{vT+4}, {o+32}, v{vVt}
v_add_u32 v{vT+5}, {o+32+5120}, v{vVt+1}
v_mov_b32 v{vT+2}, {MISC+ONES}
v_cndmask_b32 v{vVo+2*ui}, v{vT+2}, v{vT+4}, vcc
v_cndmask_b32 v{vVo+2*ui+1}, v{vT+2}, v{vT+5}, vcc
""")
        a(f"""
s_cmp_eq_u32 s{sRB}, 0
s_cselect_b32 s{sT+2}, 8, 0
v_lshlrev_b32 v{vT+1}, 2, v{vT+1}
v_add_u32 v{vT+2}, 1, v{vT}
v_add_u32 v{vT+3}, 8, v{vT}
v_max_u32 v{vT+4}, s{sT+2}, v{vT+2}
v_mov_b32 v{TM}, {BIG}
""")
        for qh in range(2):
            lo = vT+4 if qh == 0 else vT+2
            for tl in range(2):
                for r in range(4):
                    d = MK + 8*qh + 4*tl + r
                    a(f"""
v_add_u32 v{vT+5}, {16*tl + r}, v{vT+1}
v_cmp_le_u32 vcc, v{lo}, v{vT+5}
v_cmp_le_u32 s[{sT+4}:{sT+5}], v{vT+5}, v{vT+3}
s_and_b64 vcc, vcc, s[{sT+4}:{sT+5}]
v_cndmask_b32 v{d}, v{TM}, 0, vcc
""")
        for i in range(16): a(f"v_mov_b32 v{QF+i}, 0")
        a(f"v_lshl_add_u32 v{vT+5}, v{vT}, 3, v{vMISC}")
        for ui, (par, qh) in enumerate(units):
            a(f"ds_read_b32 v{GV+ui}, v{vT+5} offset:{GBUF + 4*(32*qh+par)}")
        self.poll(LA1, 4)
        self.stamp(7)
        a("s_mov_b32 exec_hi, 0xffff")
        for ui, (par, qh) in enumerate(units):
            a(f"ds_read_b64 v[{QF+4*ui}:{QF+4*ui+1}], v{vQa} offset:{(32*qh+par)*160}")
        a("s_mov_b32 exec_hi, 0")
        for ui, (par, qh) in enumerate(units):
            a(f"ds_read_b64 v[{QF+4*ui+2}:{QF+4*ui+3}], v{vQa} offset:{(32*qh+par)*160+8}")
        a("s_mov_b64 exec, -1")
        for ui, (par, qh) in enumerate(units):
            o = (32*qh+par)*160
            for tl in range(2):
                f = KF + 8*ui + 4*tl
                a(f"ds_read_b64 v[{f}:{f+1}], v{vKa_+tl} offset:{o + 5120*tl}")
                a(f"ds_read_b64 v[{f+2}:{f+3}], v{vKa_+tl} offset:{o + 5120*tl + 8}")
        a("s_waitcnt lgkmcnt(0)")
        for ui, (par, qh) in enumerate(units):
            for tl in range(2):
                f = KF + 8*ui + 4*tl; d = SD + 8*ui + 4*tl; mk = MK + 8*qh + 4*tl
                a(f"v_mfma_f32_16x16x32_bf16 v[{d}:{d+3}], v[{f}:{f+3}], v[{QF+4*ui}:{QF+4*ui+3}], v[{mk}:{mk+3}]")
        for ui, (par, qh) in enumerate(units):
            o = (32*qh+par)*160; f = VF + 8*ui
            a(f"ds_read_b64_tr_b16 v[{f}:{f+1}], v{vVt} offset:{o}")
            a(f"ds_read_b64_tr_b16 v[{f+2}:{f+3}], v{vVt+1} offset:{o+5120}")
            a(f"ds_read_b64_tr_b16 v[{f+4}:{f+5}], v{vVo+2*ui}")
            a(f"ds_read_b64_tr_b16 v[{f+6}:{f+7}], v{vVo+2*ui+1}")
        U = range(4)
        for ui in U:
            d = SD + 8*ui; m = TM + 2*ui
            a(f"v_max3_f32 v{m}, v{d}, v{d+1}, v{d+2}\nv_max3_f32 v{m}, v{m}, v{d+3}, v{d+4}\nv_max3_f32 v{m}, v{m}, v{d+5}, v{d+6}\nv_max_f32 v{m}, v{m}, v{d+7}")
        for sw in ("v_permlane16_swap_b32", "v_permlane32_swap_b32"):
            for ui in U: a(f"v_mov_b32 v{TM+2*ui+1}, v{TM+2*ui}")
            for ui in U: a(f"{sw} v{TM+2*ui}, v{TM+2*ui+1}")
            for ui in U: a(f"v_max_f32 v{TM+2*ui}, v{TM+2*ui}, v{TM+2*ui+1}")
        for ui in U:
            for i in range(8): a(f"v_sub_f32 v{SD+8*ui+i}, v{SD+8*ui+i}, v{TM+2*ui}")
        for ui in U:
            for i in range(8): a(f"v_exp_f32 v{SD+8*ui+i}, v{SD+8*ui+i}")
        for ui in U:
            for i in range(4): a(f"v_cvt_pk_bf16_f32 v{PB+4*ui+i}, v{SD+8*ui+2*i}, v{SD+8*ui+2*i+1}")
        a("s_waitcnt lgkmcnt(0)")
        for ui in U:
            for tl in range(2):
                f = VF + 8*ui + 4*tl; d = OD + 8*ui + 4*tl
                a(f"v_mfma_f32_16x16x32_bf16 v[{d}:{d+3}], v[{f}:{f+3}], v[{PB+4*ui}:{PB+4*ui+3}], 0")
        a(f"v_lshrrev_b32 v{vT+1}, 4, v{vL}\nv_lshlrev_b32 v{vT+1}, 3, v{vT+1}\nv_sub_u32 v{vQa}, v{vQa}, v{vT+1}")
        for ui in U: a(f"v_mov_b32 v{TM+2*ui}, v{OD+8*ui+4}\nv_mov_b32 v{TM+2*ui+1}, v{OD+8*ui+4}")
        for ui in U: a(f"v_permlane16_swap_b32 v{TM+2*ui}, v{TM+2*ui+1}")
        for ui in U: a(f"v_rcp_f32 v{TM+2*ui+1}, v{TM+2*ui+1}")
        for ui in U: a(f"v_mul_f32 v{TM+2*ui+1}, v{TM+2*ui+1}, v{GV+ui}")
        for ui in U:
            for i in range(8): a(f"v_mul_f32 v{OD+8*ui+i}, v{OD+8*ui+i}, v{TM+2*ui+1}")
        for ui in U:
            for i in range(4): a(f"v_cvt_pk_bf16_f32 v{PB+4*ui+i}, v{OD+8*ui+2*i}, v{OD+8*ui+2*i+1}")
        for ui, (par, qh) in enumerate(units):
            a(f"ds_write_b64 v{vQa}, v[{PB+4*ui}:{PB+4*ui+1}] offset:{(32*qh+par)*160}")
        a("s_mov_b64 exec, 0xffff")
        for ui, (par, qh) in enumerate(units):
            a(f"ds_write_b64 v{vQa}, v[{PB+4*ui+2}:{PB+4*ui+3}] offset:{(32*qh+par)*160+32}")
        a("s_mov_b64 exec, -1\ns_waitcnt lgkmcnt(0)")
        self.signal(LA2)
        a(f"""
v_and_b32 v{vT+1}, 15, v{vL}
v_lshrrev_b32 v{vT+2}, 4, v{vL}
v_mul_u32_u24 v{vT+1}, 160, v{vT+1}
v_lshl_add_u32 v{vT+1}, v{vT+2}, 4, v{vT+1}
s_mul_i32 s{sT+1}, s{sU}, 2560
s_add_u32 s{sT+1}, s{sT+1}, {QA}
v_add_u32 v{vT+1}, s{sT+1}, v{vT+1}
v_lshlrev_b32 v{vT+2}, 4, v{vL}
s_lshl2_add_u32 s{sT+1}, s{sRB}, s{sU}
s_mul_i32 s{sT+1}, s{sT+1}, 40960
s_mul_i32 s{sT+2}, s{sHG}, 2560
s_add_u32 s{sT+1}, s{sT+1}, s{sT+2}
s_add_u32 s{sT+1}, s{sT+1}, {WS_OAB}
""")
        self.poll(LA2, 4)
        for i in range(3): a(f"ds_read_b128 v[{KF+4*i}:{KF+4*i+3}], v{vT+1} offset:{64*i}")
        a("s_waitcnt lgkmcnt(0)")
        self.signal(LA2)
        for i in range(3):
            if i == 2: a("s_mov_b32 exec_hi, 0")
            a(f"buffer_store_dwordx4 v[{KF+4*i}:{KF+4*i+3}], v{vT+2}, s[{sWS}:{sWS+3}], s{sT+1} offen offset:{1024*i} sc1")
        a("s_mov_b64 exec, -1")
        self.flag_store(WS_FA, sU)
        self.signal(BWOL)

    def g_apart(self, sU):
        a = self.a
        vW5 = 10; vWb = 16; vAD = 17; OF = 32; ACC = 112; WF = [136, 176]
        for i in range(3):
            L = [a.uid("Lq") for _ in range(4)]
            D = a.uid("Lqd")
            for u in range(4):
                p = min(u + 4*i, 9)
                if u < 3: a(f"s_cmp_lg_u32 s{sU}, {u}\ns_cbranch_scc1 {L[u]}")
                a(f"v_add_u32 v{20+i}, {40960 if p >= 5 else 0}, v{vW5 + p % 5}\ns_movk_i32 s{84+i}, {1024*p}")
                if u < 3: a(f"s_branch {D}\n{L[u]}:")
            a.label(D)
        def issue(s):
            a(f"s_mov_b32 s{sT+4}, {s*81920}")
            for i in range(3):
                a(f"s_add_u32 m0, s{84+i}, {ARING[s % 3]}")
                a(f"buffer_load_dwordx4 v{20+i}, s[{sAWO}:{sAWO+3}], s{sT+4} offen lds")
        self.tr_base(vWb, 160)
        a(f"v_add_u32 v{vWb}, {R}, v{vWb}")
        for i in range(20): a(f"v_mov_b32 v{ACC+i}, 0")
        self.poll(LA2, 8)
        issue(0); issue(1)
        self.flag_poll(WS_FA, 216)
        self.stamp(9)
        a(f"""
v_lshlrev_b32 v{vAD}, 4, v{vL}
s_lshl2_add_u32 s{sT}, s{sRB}, s{sU}
s_mul_i32 s{sT}, s{sT}, 40960
s_add_u32 s{sT}, s{sT}, {WS_OAB}
""")
        for ks in range(20):
            if ks and ks % 4 == 0: a(f"s_add_u32 s{sT}, s{sT}, 4096")
            a(f"buffer_load_dwordx4 v[{OF+4*ks}:{OF+4*ks+3}], v{vAD}, s[{sWS}:{sWS+3}], s{sT} offen offset:{(ks%4)*1024} sc1")
        a("s_setprio 0")
        for s in range(11):
            if s < 10:
                if s >= 2: a(f"s_waitcnt vmcnt({3 if s < 9 else 0})")
                a("s_waitcnt lgkmcnt(0)")
                self.signal(CNTA + 4*s)
            else:
                a("s_waitcnt lgkmcnt(0)")
            def mf(hs):
                f = WF[(s-1) & 1] + 20*hs; ks = 2*(s-1) + hs
                for t in range(5):
                    a(f"v_mfma_f32_16x16x32_bf16 v[{ACC+4*t}:{ACC+4*t+3}], v[{f+4*t}:{f+4*t+3}], v[{OF+4*ks}:{OF+4*ks+3}], v[{ACC+4*t}:{ACC+4*t+3}]")
            if s == 1: a("s_waitcnt vmcnt(3)")
            if s > 0: mf(0)
            if s < 10:
                self.poll(CNTA + 4*s, 4, prio=True)
                if s + 2 < 10: issue(s+2)
                for hs in range(2):
                    f = WF[s & 1] + 20*hs; o = ARING[s % 3] - R + hs*5120
                    for t in range(5):
                        a(f"ds_read_b64_tr_b16 v[{f+4*t}:{f+4*t+1}], v{vWb} offset:{o+32*t}")
                        a(f"ds_read_b64_tr_b16 v[{f+4*t+2}:{f+4*t+3}], v{vWb} offset:{o+32*t+1280}")
            if s > 0: mf(1)
        a(f"s_mul_i32 s{sT+1}, s{sU}, 5120\ns_add_u32 s{sT+1}, s{sT+1}, {R+10240}\nv_add_u32 v{vT+1}, s{sT+1}, v{vAD}")
        a(f"s_lshl_b32 s{sT+1}, s{sU}, 2\nv_add_u32 v{vT+2}, s{sT+1}, v{vMISC}")
        for t in range(5): a(f"ds_write_b128 v{vT+1}, v[{ACC+4*t}:{ACC+4*t+3}] offset:{1024*t}")
        a(f"s_waitcnt lgkmcnt(0)\ns_mov_b64 exec, 1\nds_add_u32 v{vT+2}, v{vONE} offset:{ACCA}\ns_mov_b64 exec, -1")
        self.stamp(10)
```

```python
import sys
from gen2 import *
try:
    from gen3 import Gen3 as G
except ImportError:
    G = Gen2

HEADER = open("gated_mix__sliding_local_dilated__grouped_kv_mqa__prompt.s.ref").read().split("; @launch")[0]

def dump_lds(g, lds_off, nbytes, ws_off, waves, first_wave=0):
    a = g.a
    a(f"""
v_lshlrev_b32 v20, 4, v{vL}
s_sub_u32 s{sT}, s{sW}, {first_wave}
s_lshl_b32 s{sT}, s{sT}, 10
v_add_u32 v20, s{sT}, v20
s_mul_i32 s{sT+1}, s2, {nbytes}
s_add_u32 s{sT+1}, s{sT+1}, {ws_off}
""")
    n = -(-nbytes // (1024*waves))
    for i in range(n):
        a(f"""
v_add_u32 v21, {lds_off + i*1024*waves}, v20
v_add_u32 v22, {i*1024*waves}, v20
v_cmp_gt_u32 vcc, {nbytes}, v22
s_and_saveexec_b64 s[{sT+2}:{sT+3}], vcc
ds_read_b128 v[24:27], v21
s_waitcnt lgkmcnt(0)
buffer_store_dwordx4 v[24:27], v22, s[{sWS}:{sWS+3}], s{sT+1} offen
s_mov_b64 exec, -1
s_waitcnt vmcnt(0)
""")

def build(stamps=False, stop=None):
    g = G(stamps=stamps, stop=stop)
    a = g.a
    g.prologue()
    g.m_pre()
    if stop == "pre":
        dump_lds(g, QBUF, 10240, WS_DUMP, 4)
        dump_lds(g, MISC, 1024, WS_DUMP + 0x400000, 4)
        a("s_branch L_fin")
    else:
        g.m_main()
        a("s_branch L_fin")
    g.g_pre()
    if stop != "pre":
        g.g_main()
    a.label("L_fin")
    if stamps:
        g.stamp(11)
        a(f"s_lshl_b32 s{sT}, s2, 3\ns_add_u32 s{sT}, s{sT}, s{sW}\ns_lshl_b32 s{sT}, s{sT}, 6\ns_add_u32 s{sT}, s{sT}, {WS_DBG}\nv_mov_b32 v4, 0")
        for q in range(3):
            for i in range(4): a(f"v_mov_b32 v{8+i}, s{sST+4*q+i}")
            a(f"s_mov_b64 exec, 1\nbuffer_store_dwordx4 v[8:11], v4, s[{sWS}:{sWS+3}], s{sT} offen offset:{16*q}\ns_mov_b64 exec, -1\ns_waitcnt vmcnt(0)")
    a.label("L_end")
    a("s_endpgm")
    a.label("L_code_end")
    body = a.finalize()
    return HEADER + f"""; @launch grid=(256,1,1) block=(512,1,1) lds={LDS_SIZE}
.amdgcn_target "amdgcn-amd-amdhsa--gfx950"
.text
.globl {KNAME}
.p2align 8
.type {KNAME},@function
{KNAME}:
{body}
.section .rodata,"a"
.p2align 6
.amdhsa_kernel {KNAME}
  .amdhsa_next_free_vgpr 256
  .amdhsa_next_free_sgpr 102
  .amdhsa_accum_offset 256
  .amdhsa_group_segment_fixed_size 0
  .amdhsa_kernarg_size 96
  .amdhsa_user_sgpr_count 2
  .amdhsa_user_sgpr_kernarg_segment_ptr 1
  .amdhsa_system_sgpr_workgroup_id_x 1
.end_amdhsa_kernel
"""
if __name__ == "__main__":
    import argparse
    ap = argparse.ArgumentParser()
    ap.add_argument("--stamps", action="store_true")
    ap.add_argument("--stop", default=None)
    ap.add_argument("-o", default="k.s")
    args = ap.parse_args()
    open(args.o, "w").write(build(args.stamps, args.stop))
    print("wrote", args.o)
```

```python
from asmlib import *
import struct, math

KNAME = "gated_mix__sliding_local_dilated__grouped_kv_mqa__prompt_kernel"
def f32bits(x): return struct.unpack("<I", struct.pack("<f", x))[0]
XM = 0; XH = 81920; R = 102400; MISC = R + 60416; LDS_SIZE = 163840
P0W = XH; GATE = R + 56320; QBUF = R + 46080
SLOT = [R+5120, R+15360, R+25600, R+46080, R+35840, XH, XH+10240, R+5120, R+15360, R+25600]
RING = [R, R+15360, R+30720]
QA = R; KA = R + 10240; VA = R + 23040
RED = R + 35840
ARING = [R, R+10240, R+20480]
ACCAREA = R + 10240
FLW = 0; FREE = 64; KVR = 40; P0D = 116; KMAX = 120; GDONE = 124; ONES = 128; CNTG = 144
SCR = R + 58368; GBUF = 256; CNTA = 512; BWOL = 560; LA1 = 564; LA2 = 568; PAIR = 576; ACCA = 608; TAGO = 632
WS_GRAN = 0x1000; WS_K = 0x40000; WS_V = 0x60000; WS_FA = 0x80000; WS_FB = 0xA0000; WS_OAB = 0x100000
WS_DBG = 0x700000; WS_DUMP = 0x800000; WS_SIZE = 0x4000000
CSC = f32bits(20 ** -0.5 * math.log2(math.e))
LOG2E = f32bits(math.log2(math.e))
THR = f32bits(2.0 ** -64)
sW = 3; sRB = 4; sHG = 5; sTAG = 6; sCNT = 7; sK = 8; sV = 9; sKA = 12; sKB = 13; sTAU = 14; sU = 15
sX = 40; sWQKV = 44; sAWO = 48; sWQ = 52; sWKV = 56; sBWO = 60; sGATE = 64; sOUT = 68; sWS = 72
sT = 76; sST = 88
vL = 1; vMISC = 2; vONE = 3; vSIG = 19; vT = 4
vW5 = 10; vXO = 15; vLin = 17
S_ = [20, 36, 52, 68]; O_ = [84, 100, 116, 132]; Q_ = [148, 154, 160, 166]; K_ = [172, 178, 184, 190]; V_ = [196, 204, 212, 220]
vIDX = 228; vKa = 229; vKb = 230; vVa = 231; vG = 232; vE = 234

import os
EXP = os.environ.get('EXP', '')
GPOLL_AFTER = 5
GP = int(os.environ.get('GP', '0'))
gWO = 20; gXF = 24; gHF = 26; gWm = 28; gFL = 29; ACCG = 32; GF = [104, 148]
lQa = 192; lKa = 193; lVt = 195; lVo = 197; lMK = 208; lPA = 205; lPH = 224

class Gen:
    def __init__(self, stamps=0, stop=None):
        self.a = Asm(); self.stamps = stamps; self.stop = stop; self.ool = []
    def stamp(self, i):
        if self.stamps: self.a(f"s_memrealtime s[100:101]\ns_waitcnt lgkmcnt(0)\ns_mov_b32 s{sST+i}, s100")
    def cstamp(self, i):
        if self.stamps: self.a(f"s_memtime s[100:101]\ns_waitcnt lgkmcnt(0)\ns_mov_b32 s{sST+i}, s100")
    def srd(self, d, ptr, size):
        self.a(f"s_mov_b32 s{d}, s{ptr}\ns_mov_b32 s{d+1}, s{ptr+1}\ns_mov_b32 s{d+2}, {size}\ns_mov_b32 s{d+3}, 0x20000")
    def poll(self, off, val, prio=None, tmp=vT, st=sT, vaddr=vMISC, sleep=0):
        a = self.a; L = a.uid("Lp"); D = a.uid("Lpd")
        a(f"s_mov_b32 s{sCNT}, 0x20000")
        a.label(L)
        a(f"ds_read_b32 v{tmp}, v{vaddr} offset:{off}\ns_waitcnt lgkmcnt(0)")
        if prio is not None: a("s_setprio 2")
        a(f"v_readfirstlane_b32 s{st}, v{tmp}")
        if prio is not None: a(f"s_setprio {prio}")
        a(f"s_cmp_ge_u32 s{st}, {val}\ns_cbranch_scc1 {D}")
        if sleep: a(f"s_sleep {sleep}")
        a(f"s_sub_u32 s{sCNT}, s{sCNT}, 1\ns_cmp_lg_u32 s{sCNT}, 0\ns_cbranch_scc1 {L}")
        a.label(D)
    def check_or_poll(self, vflag, off, val, prio=None):
        a = self.a; D = a.uid("Lck")
        if prio is not None: a("s_setprio 2")
        a(f"v_readfirstlane_b32 s{sT}, v{vflag}")
        if prio is not None: a(f"s_setprio {prio}")
        a(f"s_cmp_ge_u32 s{sT}, {val}\ns_cbranch_scc1 {D}")
        self.poll(off, val, prio=prio, tmp=vflag)
        a.label(D)
    def signal(self, off, vaddr=None):
        if vaddr is None:
            self.a(f"ds_add_u32 v{vSIG}, v{vONE} offset:{off}")
        else:
            self.a(f"s_mov_b64 exec, 1\nds_add_u32 v{vaddr}, v{vONE} offset:{off}\ns_mov_b64 exec, -1")
    def dup_stores(self, n0):
        if "dup" not in EXP: return
        st = [i.text for i in self.a.ins[n0:] if i.mn.startswith("buffer_store") and " sc1" in i.text]
        for t in st: self.a(t.replace(" sc1", ""))
    def capture(self, fn):
        n = len(self.a.ins); fn(); out = self.a.ins[n:]; del self.a.ins[n:]; return out
    def check_fast(self, vflag, off, val, prio=None, vaddr=vMISC):
        a = self.a; S = a.uid("Lslow"); B = a.uid("Lback")
        if prio is not None: a("s_setprio 2")
        a(f"v_readfirstlane_b32 s{sT}, v{vflag}")
        if prio is not None: a(f"s_setprio {prio}")
        a(f"s_cmp_lt_u32 s{sT}, {val}\ns_cbranch_scc1 {S}")
        a.label(B)
        def slow():
            a.label(S); self.poll(off, val, prio=prio, tmp=vflag, vaddr=vaddr); a(f"s_branch {B}")
        self.ool += self.capture(slow)
    def xfrag_lane(self, d):
        self.a(f"""
v_and_b32 v{vT}, 15, v{vL}
v_lshrrev_b32 v{vT+1}, 1, v{vT}
v_lshrrev_b32 v{vT+2}, 4, v{vL}
v_xor_b32 v{vT+1}, v{vT+1}, v{vT+2}
v_lshlrev_b32 v{vT+1}, 4, v{vT+1}
v_lshl_add_u32 v{d}, v{vT}, 7, v{vT+1}
""")
    def tr_base(self, d, stride, swap=True):
        a = self.a
        if swap:
            a(f"v_lshrrev_b32 v{vT}, 5, v{vL}\nv_bfe_u32 v{vT+1}, v{vL}, 2, 3\nv_lshl_add_u32 v{vT}, v{vT}, 4, v{vT+1}")
        else:
            a(f"v_lshrrev_b32 v{vT}, 4, v{vL}\nv_bfe_u32 v{vT+1}, v{vL}, 2, 2\nv_lshl_add_u32 v{vT}, v{vT}, 3, v{vT+1}")
        a(f"v_mul_u32_u24 v{vT}, {stride}, v{vT}\nv_and_b32 v{vT+1}, 3, v{vL}\nv_lshl_add_u32 v{d}, v{vT+1}, 3, v{vT}")
    def swap23(self, d, s, t):
        self.a(f"""
v_and_b32 v{d}, 0x13, v{s}
v_and_b32 v{t}, 4, v{s}
v_lshl_or_b32 v{d}, v{t}, 1, v{d}
v_bfe_u32 v{t}, v{s}, 3, 1
v_lshl_or_b32 v{d}, v{t}, 2, v{d}
""")
    def dma(self, voff, srd, soff, m0expr):
        self.a(m0expr)
        self.a(f"buffer_load_dwordx4 v{voff}, s[{srd}:{srd+3}], {soff} offen lds")
    def issue_w160(self, srd, s_koff, lds_base, p0=0, p1=10):
        a = self.a
        for p in range(p0, p1):
            if p == 5 or (p == p0 and p0 > 5): a(f"s_add_u32 s{sT+3}, s{s_koff}, 40960")
            so = s_koff if p < 5 else sT + 3
            self.dma(vW5 + p % 5, srd, f"s{so}", f"s_mov_b32 m0, {lds_base + 1024*p}")

    def w160(self):
        a = self.a
        a(f"s_mul_i32 s{sT+7}, s{sHG}, 160")
        for p in range(5):
            a(f"""
v_add_u32 v{vT}, {64*p}, v{vL}
v_mul_u32_u24 v{vT+1}, 6554, v{vT}
v_lshrrev_b32 v{vT+1}, 16, v{vT+1}
v_mul_u32_u24 v{vT+2}, 10, v{vT+1}
v_sub_u32 v{vT}, v{vT}, v{vT+2}
""")
            self.swap23(vT+2, vT+1, vT+3)
            a(f"v_mul_u32_u24 v{vT+2}, 1280, v{vT+2}\nv_lshl_add_u32 v{vT}, v{vT}, 4, v{vT+2}\nv_add_u32 v{vW5+p}, s{sT+7}, v{vT}")

    def prologue(self):
        a = self.a
        a(f"""
s_cmp_ge_u32 s2, 256
s_cbranch_scc1 L_end
s_load_dwordx16 s[16:31], s[0:1], 0
s_load_dwordx8 s[32:39], s[0:1], 64
s_getpc_b64 s[8:9]
L_pc0:
""")
        if self.stamps: a("s_memrealtime s[100:101]")
        a(f"""
v_lshrrev_b32 v{vT}, 6, v0
v_and_b32 v{vL}, 63, v0
s_lshr_b32 s11, s2, 3
v_readfirstlane_b32 s{sW}, v{vT}
s_lshl_b32 s{sT}, s11, 7
s_cmp_lg_u32 s{sW}, 0
s_cbranch_scc1 L_nopf
s_mov_b64 exec, 0xffff
v_lshlrev_b32 v{vT}, 12, v{vL}
v_add_u32 v{vT}, s{sT}, v{vT}
v_min_u32 v{vT}, L_code_end-L_pc0, v{vT}
v_mov_b32 v{vT+1}, s9
v_add_co_u32 v{vT}, vcc, s8, v{vT}
v_addc_co_u32 v{vT+1}, vcc, 0, v{vT+1}, vcc
global_load_dword v0, v[{vT}:{vT+1}], off
s_mov_b64 exec, -1
L_nopf:
s_and_b32 s10, s2, 7
s_and_b32 s{sRB}, s11, 3
s_lshl2_add_u32 s{sRB}, s10, s{sRB}
s_lshr_b32 s{sHG}, s11, 2
s_and_b32 s{sKA}, s{sRB}, 1
s_mul_i32 s{sKA}, s{sKA}, 5
s_and_b32 s{sKB}, s{sRB}, 3
s_lshl_b32 s{sKB}, s{sKB}, 2
s_lshr_b32 s{sKB}, 0x8350, s{sKB}
s_and_b32 s{sKB}, s{sKB}, 15
s_lshr_b32 s{sTAU}, s{sHG}, 1
v_mov_b32 v{vMISC}, {MISC}
v_mov_b32 v{vONE}, 1
v_lshlrev_b32 v{vLin}, 4, v{vL}
v_lshrrev_b32 v{vT}, 3, v{vL}
v_mul_u32_u24 v{vT}, 1280, v{vT}
v_lshrrev_b32 v{vT+1}, 4, v{vL}
v_xor_b32 v{vT+1}, v{vT+1}, v{vL}
v_and_b32 v{vT+1}, 7, v{vT+1}
v_lshl_add_u32 v{vXO}, v{vT+1}, 4, v{vT}
v_xor_b32 v{vXO+1}, 64, v{vXO}
v_add_u32 v{vXO+1}, 10240, v{vXO+1}
s_lshl2_add_u32 s{sT+8}, s{sRB}, s{sTAU}
s_mul_i32 s{sT+9}, s{sT+8}, 20480
s_lshl_b32 s{sT+10}, s{sTAU}, 11
s_lshr_b32 s{sT}, s{sW}, 1
s_add_u32 s{sT}, s{sT}, 8                  ; kb = 8 + (w>>1)
s_lshl_b32 s{sT+1}, s{sT}, 7
s_add_u32 s{sT+1}, s{sT+1}, s{sT+9}        ; soffset (x)
s_lshl_b32 s{sT+2}, s{sT}, 13
s_add_u32 s{sT+2}, s{sT+2}, s{sT+10}
s_and_b32 s{sT+3}, s{sW}, 1
s_lshl_b32 s{sT+4}, s{sT+3}, 10
s_add_u32 s{sT+2}, s{sT+2}, s{sT+4}        ; m0 (x)
s_cmp_eq_u32 s{sT+3}, 1
s_cselect_b64 vcc, -1, 0
v_cndmask_b32 v18, v{vXO}, v{vXO+1}, vcc
s_xor_b32 s{sT+4}, s{sT+4}, 1024
s_add_u32 s{sT+5}, s{sT+4}, {GATE}
s_cmp_eq_u32 s{sW}, 4
s_cselect_b32 s{sT+4}, 24576, s{sT+4}
s_cselect_b32 s{sT+5}, {P0W+24576}, s{sT+5}
s_cmp_lt_u32 s{sW}, 4
s_cselect_b32 s{sT+1}, s{sT+1}, s{sT+4}
s_cselect_b32 s{sT+2}, s{sT+2}, s{sT+5}
s_cselect_b64 vcc, -1, 0
v_cndmask_b32 v18, v{vLin}, v18, vcc
s_lshl_b32 s{sT+4}, s{sW}, 7
s_add_u32 s{sT+4}, s{sT+4}, s{sT+9}
s_lshl_b32 s{sT+5}, s{sW}, 13
s_add_u32 s{sT+5}, s{sT+5}, s{sT+10}
s_lshl_b32 s{sT+6}, s{sW}, 10
""")
        a("s_waitcnt lgkmcnt(0)")
        if self.stamps: a(f"s_mov_b32 s{sST}, s100")
        if self.stamps == 4: self.stamp(5)
        self.srd(sX, 16, 2621440)
        a(f"""
s_mov_b32 m0, s{sT+5}
s_bitcmp1_b32 s{sHG}, 0
buffer_load_dwordx4 v{vXO}, s[{sX}:{sX+3}], s{sT+4} offen lds
s_cselect_b32 s{sWKV}, s28, s26
s_cselect_b32 s{sWKV+1}, s29, s27
s_add_u32 m0, s{sT+5}, 1024
s_mov_b32 s{sWKV+2}, 25600
buffer_load_dwordx4 v{vXO+1}, s[{sX}:{sX+3}], s{sT+4} offen lds
s_mov_b32 s{sWKV+3}, 0x20000
""")
        for i in range(3):
            a(f"s_add_u32 m0, s{sT+6}, {P0W}")
            a(f"s_nop 0\nbuffer_load_dwordx4 v{vLin}, s[{sWKV}:{sWKV+3}], s{sT+6} offen lds")
            if i < 2: a(f"s_add_u32 s{sT+6}, s{sT+6}, 8192")
        a(f"""
s_cmp_eq_u32 s{sW}, 4
s_cselect_b32 s{sGATE}, s{sWKV}, s32
s_cselect_b32 s{sGATE+1}, s{sWKV+1}, s33
s_cselect_b32 s{sGATE+2}, s{sWKV+2}, 1280
s_cmp_lt_u32 s{sW}, 4
s_cselect_b32 s{sGATE}, s16, s{sGATE}
s_cselect_b32 s{sGATE+1}, s17, s{sGATE+1}
s_cselect_b32 s{sGATE+2}, s{sX+2}, s{sGATE+2}
s_mov_b32 s{sGATE+3}, 0x20000
s_mov_b32 m0, s{sT+2}
""")
        self.srd(sWS, 38, WS_SIZE)
        a(f"""
buffer_load_dwordx4 v18, s[{sGATE}:{sGATE+3}], s{sT+1} offen lds
""")
        if self.stamps == 4: self.stamp(6)
        a(f"""
v_lshlrev_b32 v{vSIG}, 2, v{vL}
v_add_u32 v{vSIG}, {SCR}, v{vSIG}
v_cmp_eq_u32 vcc, 0, v{vL}
s_cmp_lt_u32 s{sW}, 4
v_cndmask_b32 v{vSIG}, v{vSIG}, v{vMISC}, vcc
s_cbranch_scc1 L_M
""")

    def kv_first(self):
        for l in self.loadK(0) + self.loadV(0) + self.loadK(1) + self.loadV(1) + self.loadK(2) + self.loadV(2) + self.loadK(3): self.a(l)
    def m_setup2(self):
        a = self.a; ACC = 232
        a(f"""
v_and_b32 v{vT}, 31, v{vL}
v_lshrrev_b32 v{vT+1}, 5, v{vL}
v_mul_u32_u24 v{vKb}, 48, v{vT}
v_lshl_add_u32 v{vKa}, v{vT+1}, 4, v{vKb}
v_lshl_add_u32 v{vKb}, v{vT+1}, 3, v{vKb}
v_mul_u32_u24 v{vT+2}, 336, v{vT+1}
v_lshl_add_u32 v{vVa}, v{vT}, 4, v{vT+2}
v_mov_b32 v{vT+3}, 0x7fffffff
v_cmp_lt_u32 vcc, 20, v{vT}
v_cndmask_b32 v{vVa}, v{vVa}, v{vT+3}, vcc
s_and_b32 s10, s{sW}, 1
s_mul_i32 s{sK}, s10, 49152
s_add_u32 s{sK}, s{sK}, {WS_K}
s_mul_i32 s{sV}, s10, 43008
s_add_u32 s{sV}, s{sV}, {WS_V}
v_mul_u32_u24 v{vT+2}, 160, v{vT}
v_lshl_add_u32 v{vT+2}, v{vT+1}, 4, v{vT+2}
s_mul_i32 s{sT}, s{sW}, 40
s_xor_b32 s{sT+1}, s{sW}, 1
s_mul_i32 s{sT+1}, s{sT+1}, 40
s_add_u32 s{sT}, s{sT}, {QBUF}
s_add_u32 s{sT+1}, s{sT+1}, {QBUF}
v_add_u32 v10, s{sT}, v{vT+2}
v_add_u32 v11, s{sT+1}, v{vT+2}
v_lshl_add_u32 v12, v{vT}, 2, v{vMISC}
v_mov_b32 v{vIDX}, 0xdddddddd
v_and_b32 v{vT}, 15, v{vL}
v_lshrrev_b32 v{vT+1}, 4, v{vL}
s_lshl_b32 s{sT+1}, s{sW}, 4
v_add_u32 v{vT}, s{sT+1}, v{vT}
v_mul_u32_u24 v13, 160, v{vT}
v_lshl_add_u32 v13, v{vT+1}, 3, v13
v_add_u32 v13, {QBUF}, v13
v_lshl_add_u32 v14, v{vT}, 2, v{vMISC}
""")
        for i in range(12): a(f"v_mov_b64 v[{ACC+2*i}:{ACC+2*i+1}], 0")
        for i in range(84, 148, 2): a(f"v_mov_b64 v[{i}:{i+1}], 0")
        for i in range(4): a(f"v_mov_b64 v[{V_[3]+2*i}:{V_[3]+2*i+1}], 0")


    def kb_of(self, d, i):
        self.a(f"s_add_u32 s{d}, s{sKB}, {i}\ns_cmp_ge_u32 s{d}, 10\ns_cselect_b32 s{sT+1}, 10, 0\ns_sub_u32 s{d}, s{d}, s{sT+1}")
    def m_pre(self):
        a = self.a
        vXB = 76; vWa = 77; vWb = 78; vGB = 79; vFL = 80; ACC = 232
        a.label("L_M")
        a(f"""
s_lshl2_add_u32 s{sT+8}, s{sRB}, s{sW}
s_mul_i32 s{sT+8}, s{sT+8}, 20480
s_lshl_b32 s{sT+9}, s{sW}, 11
s_cmp_lg_u32 s{sW}, 0
s_cbranch_scc1 L_m_noinit
v_mov_b64 v[{vT}:{vT+1}], 0
v_mov_b64 v[{vT+2}:{vT+3}], 0
v_add_u32 v{vT+4}, v{vLin}, v{vMISC}
ds_write_b128 v{vT+4}, v[{vT}:{vT+3}]
v_mov_b32 v{vT}, 0x3f803f80
v_mov_b32 v{vT+1}, 0x3f803f80
ds_write_b64 v{vMISC}, v[{vT}:{vT+1}] offset:{ONES}
L_m_noinit:
""")
        def xissue(i):
            self.kb_of(sT+5, i)
            a(f"s_lshl_b32 s{sT+6}, s{sT+5}, 7\ns_add_u32 s{sT+6}, s{sT+6}, s{sT+8}\ns_lshl_b32 s{sT+7}, s{sT+5}, 13\ns_add_u32 s{sT+7}, s{sT+7}, s{sT+9}")
            for e in range(2):
                self.dma(vXO+e, sX, f"s{sT+6}", f"s_add_u32 m0, s{sT+7}, {XM + e*1024}")
        self.xfrag_lane(vXB)
        a(f"v_add_u32 v{vXB}, s{sT+9}, v{vXB}")
        self.tr_base(vWa, 160)
        a(f"""
v_add_u32 v{vWa}, {XH}, v{vWa}
v_and_b32 v{vT}, 48, v{vL}
v_add_u32 v{vGB}, {GATE}, v{vT}
""")
        AD = 148
        def setup():
            self.m_setup2()
            a(f"v_add_u32 v{vWb}, {R+35840-XH}, v{vWa}")
            for i in range(10):
                a(f"s_add_u32 s{sT+2}, s{sKB}, {i}\ns_cmp_ge_u32 s{sT+2}, 10\ns_cselect_b32 s{sT+3}, 10, 0\ns_sub_u32 s{sT+2}, s{sT+2}, s{sT+3}")
                a(f"""
s_lshl_b32 s{sT+3}, s{sT+2}, 13
s_lshl_b32 s{sT+2}, s{sT+2}, 7
v_add_u32 v{AD+3*i}, s{sT+3}, v{vXB}
v_add_u32 v{AD+3*i+2}, s{sT+2}, v{vGB}
v_xor_b32 v{AD+3*i+1}, 64, v{AD+3*i}
""")
        setup()
        a(f"s_cmp_eq_u32 s{sW}, s{sTAU}\ns_cbranch_scc1 L_m_nox1")
        for i in range(5): xissue(i)
        if self.stamps == 4: self.stamp(7)
        a("s_waitcnt vmcnt(10)\ns_branch L_m_nox2")
        a.label("L_m_nox1")
        a("s_waitcnt vmcnt(0)")
        a.label("L_m_nox2")
        a("s_waitcnt lgkmcnt(0)\ns_barrier")
        self.stamp(1)
        FB = [20, 48]
        def reads(j):
            i = j >> 1; hs = j & 1; f = FB[hs]; sl = SLOT[i]
            wb, woff = (vWb, sl - (R+35840)) if sl >= R+35840 else (vWa, sl - XH)
            g = [[f"ds_read_b128 v[{f}:{f+3}], v{AD+3*i+hs}", f"ds_read_b128 v[{f+24}:{f+27}], v{AD+3*i+2} offset:{hs*64}"]]
            for t in range(5):
                ff = f + 4 + 4*t
                g.append([f"ds_read_b64_tr_b16 v[{ff}:{ff+1}], v{wb} offset:{woff + hs*5120 + 32*t}",
                          f"ds_read_b64_tr_b16 v[{ff+2}:{ff+3}], v{wb} offset:{woff + hs*5120 + 32*t + 1280}"])
            return g
        def mfma(j, n):
            f = FB[j & 1]; t = (n + 5) % 6
            return f"v_mfma_f32_16x16x32_bf16 v[{ACC+4*t}:{ACC+4*t+3}], v[{f+4+4*t}:{f+7+4*t}], v[{f}:{f+3}], v[{ACC+4*t}:{ACC+4*t+3}]"
        need_free = {0, 1, 2, 3, 5, 6}
        if self.stamps == 4: self.stamp(8)
        self.poll(FLW + 0, 1)
        if self.stamps == 4: self.stamp(9); self.cstamp(4)
        a("s_waitcnt vmcnt(8)")
        for g in reads(0):
            for l in g: a(l)
        a(f"ds_read_b32 v{vFL}, v{vMISC} offset:{FLW + 4}")
        for j in range(20):
            i = j >> 1
            nxt = reads(j+1) if j < 19 else None
            for n in range(6):
                a(f"s_waitcnt lgkmcnt({10 if nxt else 10 - 2*n})")
                a(mfma(j, n))
                if n == 0 and (j & 1) and j < 19:
                    self.check_fast(vFL, FLW + 4*(i+1), 1)
                    if i + 1 < 5: a(f"s_waitcnt vmcnt({8 - 2*(i+1)})")
                if n == 0 and j == 19:
                    a(f"v_readfirstlane_b32 s11, v{vFL}\ns_cmp_eq_u32 s11, 0\ns_cbranch_scc1 L_m_nokv1")
                    self.kv_first()
                    a.label("L_m_nokv1")
                if nxt:
                    for l in nxt[n]: a(l)
                if n == 5 and (j & 1) and j < 19:
                    if i in need_free: self.signal(FREE + 4*i)
                    a(f"ds_read_b32 v{vFL}, v{vMISC} offset:{FLW + 4*(i+2)}")
                    if i == 8: a(f"ds_read_b32 v{vFL+1}, v{vMISC} offset:{FREE+12}")
        self.check_fast(vFL+1, FREE + 12, 4)
        if self.stamps == 4: self.cstamp(10)
        self.stamp(2)
        a(f"s_mov_b32 s{sT}, {CSC}")
        for b in range(4): a(f"v_mov_b64 v[{Q_[b]+4}:{Q_[b]+5}], 0")
        g = ACC + 20
        a(f"v_mul_f32 v{g}, {0x80000000 | LOG2E}, v{g}\nv_exp_f32 v{g}, v{g}")
        for t in range(5):
            c = ACC + 4*t
            for r in range(4): a(f"v_mul_f32 v{c+r}, s{sT}, v{c+r}")
            a(f"v_cvt_pk_bf16_f32 v{c}, v{c}, v{c+1}\nv_cvt_pk_bf16_f32 v{c+1}, v{c+2}, v{c+3}")
            a(f"ds_write_b64 v13, v[{c}:{c+1}] offset:{32*t}")
        a(f"""
v_add_f32 v{g}, 1.0, v{g}
v_rcp_f32 v{g}, v{g}
s_mov_b64 exec, 0xffff
ds_write_b32 v14, v{g} offset:{GBUF}
s_mov_b64 exec, -1
s_waitcnt lgkmcnt(0)
s_barrier
""")
        self.stamp(3)

    def g_pre(self):
        a = self.a
        a.label("L_G")
        a(f"s_setprio 1\ns_sub_u32 s{sU}, s{sW}, 4\ns_cmp_eq_u32 s{sW}, 7\ns_cbranch_scc1 L_P0")
        self.srd(sWQ, 24, 819200)
        self.w160()
        a(f"""
s_add_u32 s{sT+4}, s{sKB}, s{sU}
s_cmp_ge_u32 s{sT+4}, 10
s_cselect_b32 s{sT+1}, 10, 0
s_sub_u32 s{sT+4}, s{sT+4}, s{sT+1}
s_mul_i32 s{sT+4}, s{sT+4}, 81920
s_mul_i32 s{sT+5}, s{sU}, 10240
s_add_u32 s{sT+3}, s{sT+4}, 40960
""")
        gs = self.capture(self.g_setup)
        cuts = [k for k in range(1, len(gs)) if gs[k].mn in ("v_add_u32", "v_mov_b64", "v_mul_u32_u24") and not gs[k-1].mn.startswith(("s_cmp", "v_cmp"))
                and not any(gs[q].mn.startswith("s_cselect") for q in range(k, min(k+3, len(gs))))]
        pos = [min(cuts, key=lambda c: abs(c - (p+1)*len(gs)//10)) for p in range(9)] + [len(gs)]
        k = 0
        for p in range(10):
            self.dma(vW5 + p % 5, sWQ, f"s{sT+4 if p < 5 else sT+3}", f"s_add_u32 m0, s{sT+5}, {R+5120+1024*p}")
            a.ins += gs[k:pos[p]]; k = pos[p]
        if self.stamps == 4: self.stamp(7)
        a("s_waitcnt vmcnt(10)\ns_barrier")
        self.stamp(1)
        def issue(i):
            self.kb_of(sT+4, i)
            a(f"s_mul_i32 s{sT+4}, s{sT+4}, 81920")
            self.issue_w160(sWQ, sT+4, SLOT[i])
        def landed(i, cnt):
            a(f"s_waitcnt vmcnt({cnt})"); self.signal(FLW + 4*i)
        a(f"s_cmp_eq_u32 s{sW}, 5\ns_cbranch_scc1 L_ld5\ns_cmp_eq_u32 s{sW}, 6\ns_cbranch_scc1 L_ld6")
        landed(0, 0); issue(3); landed(3, 0)
        self.poll(FREE + 0, 4); issue(7)
        self.poll(FREE + 4*2, 4); issue(9)
        landed(7, 10); landed(9, 0)
        a("s_branch L_g_join")
        a.label("L_ld5")
        issue(4); landed(1, 10); landed(4, 0)
        self.poll(FREE + 4*1, 4); issue(8); landed(8, 0)
        a(f"s_lshl_b32 s{sT+6}, s{sRB}, 2\ns_max_u32 s{sT+6}, s{sT+6}, 1\ns_sub_u32 s{sT+6}, s{sT+6}, 1\ns_mul_i32 s{sT+6}, s{sT+6}, 20480")
        self.poll(FREE + 4*5, 4); self.poll(FREE + 4*6, 4)
        for kb in range(10):
            for e in range(2):
                self.dma(vXO+e, sX, f"s{sT+6}", f"s_mov_b32 m0, {XH + kb*2048 + e*1024}")
            if kb < 9: a(f"s_add_u32 s{sT+6}, s{sT+6}, 128")
        a("s_branch L_g_join")
        a.label("L_ld6")
        landed(2, 0)
        for rt in range(4):
            L = a.uid("Lxs")
            a(f"s_cmp_eq_u32 s{sTAU}, {rt}\ns_cbranch_scc1 {L}\ns_lshl_b32 s{sT+8}, s{sRB}, 2\ns_add_u32 s{sT+8}, s{sT+8}, {rt}\ns_mul_i32 s{sT+8}, s{sT+8}, 20480")
            for i in range(5, 10):
                self.kb_of(sT+5, i)
                a(f"s_lshl_b32 s{sT+6}, s{sT+5}, 7\ns_add_u32 s{sT+6}, s{sT+6}, s{sT+8}\ns_lshl_b32 s{sT+7}, s{sT+5}, 13")
                for e in range(2):
                    self.dma(vXO+e, sX, f"s{sT+6}", f"s_add_u32 m0, s{sT+7}, {XM + rt*2048 + e*1024}")
            a.label(L)
        self.poll(P0D, 1); issue(5); issue(6)
        landed(5, 10); landed(6, 0)
        a("s_branch L_g_join")
        a.label("L_P0")
        vEP = 249; vXF = 244; vWp = 248; T0 = 0;
        T0 = 240; T1 = 236
        a(f"v_mov_b32 v{vT+5}, 0\nbuffer_load_dword v{vEP}, v{vT+5}, s[{sWS}:{sWS+3}], 0 offen sc1")
        self.xfrag_lane(vXF)
        a(f"v_add_u32 v{vXF}, s{sT+10}, v{vXF}\nv_add_u32 v{vXF+2}, 40960, v{vXF}\nv_xor_b32 v{vXF+1}, 64, v{vXF}\nv_xor_b32 v{vXF+3}, 64, v{vXF+2}")
        self.tr_base(vWp, 40, swap=False)
        a(f"v_add_u32 v{vWp}, {P0W}, v{vWp}")
        a(f"s_lshl_b32 s{sT+8}, s{sT+8}, 4")
        if self.stamps == 4: self.stamp(7)
        a("s_waitcnt vmcnt(1)\ns_barrier")
        self.stamp(1)
        NB = 16
        def fr(ks): return 20 + 12 * (ks % NB)
        def reads(ks):
            f = fr(ks); kb = ks >> 1; hs = ks & 1
            xa = vXF + (2 if kb >= 5 else 0) + hs
            a(f"ds_read_b128 v[{f}:{f+3}], v{xa} offset:{(kb%5)*8192}")
            for t in range(2):
                o = ks*1280 + 32*t
                a(f"ds_read_b64_tr_b16 v[{f+4+4*t}:{f+5+4*t}], v{vWp} offset:{o}")
                a(f"ds_read_b64_tr_b16 v[{f+6+4*t}:{f+7+4*t}], v{vWp} offset:{o+160}")
        def loop(isV):
            AHEAD = 3
            for ks in range(AHEAD): reads(ks)
            for ks in range(20):
                if ks + AHEAD < 20:
                    a(f"s_waitcnt lgkmcnt({5*(AHEAD-1)})")
                else:
                    a(f"s_waitcnt lgkmcnt({5*(19-ks)})")
                    if ks == 19:
                        self.signal(P0D)
                        if self.stamps == 4: self.stamp(8)
                f = fr(ks)
                for t, T in ((0, T0), (1, T1)):
                    xf = f"v[{f}:{f+3}]"; wf = f"v[{f+4+4*t}:{f+7+4*t}]"
                    A, B = (xf, wf) if isV else (wf, xf)
                    C = "0" if ks == 0 else f"v[{T}:{T+3}]"
                    a(f"v_mfma_f32_16x16x32_bf16 v[{T}:{T+3}], {A}, {B}, {C}")
                if ks + AHEAD < 20: reads(ks + AHEAD)
        a(f"s_bitcmp1_b32 s{sHG}, 0\ns_cbranch_scc1 L_P0V")
        loop(False)
        a(f"""
v_and_b32 v{vT}, 15, v{vL}
v_lshrrev_b32 v{vT+1}, 4, v{vL}
v_add_u32 v{vT}, s{sT+8}, v{vT}
v_mul_u32_u24 v{vT}, 48, v{vT}
v_lshl_add_u32 v{vT}, v{vT+1}, 3, v{vT}
s_mov_b32 s{sT}, {WS_K}
v_mov_b32 v{vT+2}, 0
v_cvt_pk_bf16_f32 v{T0}, v{T0}, v{T0+1}
v_cvt_pk_bf16_f32 v{T0+1}, v{T0+2}, v{T0+3}
v_cvt_pk_bf16_f32 v{T1}, v{T1}, v{T1+1}
v_cvt_pk_bf16_f32 v{T1+1}, v{T1+2}, v{T1+3}
buffer_store_dwordx2 v[{T0}:{T0+1}], v{vT}, s[{sWS}:{sWS+3}], s{sT} offen sc1
s_mov_b32 exec_hi, 0
s_mov_b32 exec_lo, 0xffff0000
v_mov_b32 v{T1}, 0x3f803f80
v_mov_b32 v{T1+1}, 0x3f80
s_mov_b32 exec_lo, -1
buffer_store_dwordx2 v[{T1}:{T1+1}], v{vT}, s[{sWS}:{sWS+3}], s{sT} offen offset:32 sc1
s_mov_b32 exec_lo, 0xffff
v_dot2_f32_bf16 v{vT+2}, v{T1}, v{T1}, v{vT+2}
v_dot2_f32_bf16 v{vT+2}, v{T1+1}, v{T1+1}, v{vT+2}
s_mov_b64 exec, -1
v_dot2_f32_bf16 v{vT+2}, v{T0}, v{T0}, v{vT+2}
v_dot2_f32_bf16 v{vT+2}, v{T0+1}, v{T0+1}, v{vT+2}
v_mov_b32 v{vT+3}, v{vT+2}
v_permlane16_swap_b32 v{vT+2}, v{vT+3}
v_add_f32 v{vT+2}, v{vT+2}, v{vT+3}
v_mov_b32 v{vT+3}, v{vT+2}
v_permlane32_swap_b32 v{vT+2}, v{vT+3}
v_add_f32 v{vT+2}, v{vT+2}, v{vT+3}
v_max_f32_dpp v{vT+2}, v{vT+2}, v{vT+2} row_ror:8 row_mask:0xf bank_mask:0xf
v_max_f32_dpp v{vT+2}, v{vT+2}, v{vT+2} row_ror:4 row_mask:0xf bank_mask:0xf
v_max_f32_dpp v{vT+2}, v{vT+2}, v{vT+2} row_ror:2 row_mask:0xf bank_mask:0xf
v_max_f32_dpp v{vT+2}, v{vT+2}, v{vT+2} row_ror:1 row_mask:0xf bank_mask:0xf
v_mov_b32 v{vT+5}, v{vT+2}
s_branch L_P0pub
""")
        a.label("L_P0V")
        loop(True)
        a(f"""
v_and_b32 v{vT}, 15, v{vL}
v_lshrrev_b32 v{vT+1}, 5, v{vL}
v_mul_u32_u24 v{vT+1}, 336, v{vT+1}
v_lshl_add_u32 v{vT+1}, v{vT}, 4, v{vT+1}
v_bfe_u32 v{vT+2}, v{vL}, 4, 1
v_lshl_add_u32 v{vT+1}, v{vT+2}, 3, v{vT+1}
s_mul_i32 s{sT}, s{sT+8}, 42
s_add_u32 s{sT}, s{sT}, {WS_V}
v_cvt_pk_bf16_f32 v{T0}, v{T0}, v{T0+1}
v_cvt_pk_bf16_f32 v{T0+1}, v{T0+2}, v{T0+3}
v_cvt_pk_bf16_f32 v{T1}, v{T1}, v{T1+1}
v_cvt_pk_bf16_f32 v{T1+1}, v{T1+2}, v{T1+3}
buffer_store_dwordx2 v[{T0}:{T0+1}], v{vT+1}, s[{sWS}:{sWS+3}], s{sT} offen sc1
s_mov_b32 exec_lo, 0x00100010
s_mov_b32 exec_hi, 0x00100010
v_mov_b32 v{T1}, 0x3f803f80
v_mov_b32 v{T1+1}, 0x3f803f80
s_mov_b32 exec_lo, 0x001f001f
s_mov_b32 exec_hi, 0x001f001f
buffer_store_dwordx2 v[{T1}:{T1+1}], v{vT+1}, s[{sWS}:{sWS+3}], s{sT} offen offset:256 sc1
s_mov_b64 exec, -1
v_mov_b32 v{vT+5}, 0
""")
        a.label("L_P0pub")
        a(f"""
s_waitcnt vmcnt(2)
v_readfirstlane_b32 s{sTAG}, v{vEP}
s_mul_i32 s{sTAG}, s{sTAG}, 0x41C64E6D
s_add_u32 s{sTAG}, s{sTAG}, 0x3039
v_mov_b32 v{vT+4}, s{sTAG}
s_lshl_b32 s{sT}, s2, 3
s_add_u32 s{sT}, s{sT}, {WS_GRAN}
v_mov_b32 v{vT}, 0
s_waitcnt vmcnt(0)
s_mov_b64 exec, 1
buffer_store_dwordx2 v[{vT+4}:{vT+5}], v{vT}, s[{sWS}:{sWS+3}], s{sT} offen sc1
ds_write_b32 v{vMISC}, v{vT+4} offset:{TAGO}
s_mov_b64 exec, -1
""")
        self.stamp(2)
        self.w160()
        self.g_setup()
        self.poll(FREE + 4*GPOLL_AFTER, 4)
        a(f"""
v_lshlrev_b32 v{vT}, 5, v{vL}
s_movk_i32 s{sT}, {WS_GRAN}
s_mov_b32 s{sCNT}, 0x8000
L_gpoll:
buffer_load_dwordx4 v[120:123], v{vT}, s[{sWS}:{sWS+3}], s{sT} offen sc1
buffer_load_dwordx4 v[124:127], v{vT}, s[{sWS}:{sWS+3}], s{sT} offen offset:16 sc1
s_waitcnt vmcnt(0)
v_cmp_eq_u32 vcc, s{sTAG}, v120
v_cmp_eq_u32 s[{sT+2}:{sT+3}], s{sTAG}, v122
v_cmp_eq_u32 s[{sT+4}:{sT+5}], s{sTAG}, v124
v_cmp_eq_u32 s[{sT+6}:{sT+7}], s{sTAG}, v126
s_and_b64 vcc, vcc, s[{sT+2}:{sT+3}]
s_and_b64 s[{sT+4}:{sT+5}], s[{sT+4}:{sT+5}], s[{sT+6}:{sT+7}]
s_and_b64 vcc, vcc, s[{sT+4}:{sT+5}]
s_cmp_eq_u64 vcc, -1
s_cbranch_scc1 L_gdone
s_sleep 4
s_sub_u32 s{sCNT}, s{sCNT}, 1
s_cmp_lg_u32 s{sCNT}, 0
s_cbranch_scc1 L_gpoll
L_gdone:
""")
        self.signal(KVR)
        a(f"""
v_max3_f32 v121, v121, v123, v125
v_max_f32 v121, v121, v127
v_max_f32_dpp v121, v121, v121 row_ror:8 row_mask:0xf bank_mask:0xf
v_max_f32_dpp v121, v121, v121 row_ror:4 row_mask:0xf bank_mask:0xf
v_max_f32_dpp v121, v121, v121 row_ror:2 row_mask:0xf bank_mask:0xf
v_max_f32_dpp v121, v121, v121 row_ror:1 row_mask:0xf bank_mask:0xf
v_mov_b32 v122, v121
v_permlane16_swap_b32 v121, v122
v_max_f32 v121, v121, v122
v_mov_b32 v122, v121
v_permlane32_swap_b32 v121, v122
v_max_f32 v121, v121, v122
s_mov_b64 exec, 1
ds_write_b32 v{vMISC}, v121 offset:{KMAX}
s_cmp_lg_u32 s2, 0
s_cbranch_scc1 L_noepoch
v_mov_b32 v{vT}, 0
v_mov_b32 v{vT+4}, s{sTAG}
buffer_store_dword v{vT+4}, v{vT}, s[{sWS}:{sWS+3}], 0 offen sc1
L_noepoch:
s_mov_b64 exec, -1
""")
        a.label("L_g_join")
        a("s_waitcnt lgkmcnt(0)")
        self.stamp(4)
        a("s_setprio 0\ns_barrier")
        self.stamp(3)


    def g_setup(self):
        a = self.a
        a(f"s_mul_i32 s{sT}, s{sHG}, 160\ns_lshl_b32 s{sT+1}, s{sU}, 6")
        for i in range(4):
            a(f"""
v_add_u32 v{vT}, s{sT+1}, v{vL}
v_add_u32 v{vT}, {256*i}, v{vT}
v_mul_u32_u24 v{vT+1}, 2185, v{vT}
v_lshrrev_b32 v{vT+1}, 16, v{vT+1}
v_mul_u32_u24 v{vT+2}, 30, v{vT+1}
v_sub_u32 v{vT}, v{vT}, v{vT+2}
""")
            self.swap23(vT+2, vT+1, vT+3)
            a(f"""
v_mul_u32_u24 v{vT+2}, 3840, v{vT+2}
v_mul_u32_u24 v{vT+3}, 26, v{vT}
v_lshrrev_b32 v{vT+3}, 8, v{vT+3}
v_mul_u32_u24 v{vT+3}, 1120, v{vT+3}
v_lshl_add_u32 v{vT}, v{vT}, 4, v{vT+2}
v_add3_u32 v{gWO+i}, v{vT}, v{vT+3}, s{sT}
""")
        self.xfrag_lane(gHF)
        a(f"""
s_and_b32 s{sT}, s{sU}, 1
s_lshl_b32 s{sT}, s{sT}, 12
s_lshl_b32 s{sT+1}, s{sKA}, 13
s_add_u32 s{sT}, s{sT}, s{sT+1}
v_add_u32 v{gXF}, s{sT}, v{gHF}
s_lshl_b32 s{sT+1}, s{sKA}, 11
s_add_u32 s{sT+1}, s{sT+1}, {XH}
v_add_u32 v{gHF}, s{sT+1}, v{gHF}
v_xor_b32 v{gXF+1}, 64, v{gXF}
v_xor_b32 v{gHF+1}, 64, v{gHF}
""")
        self.tr_base(gWm, 480)
        a(f"v_add_u32 v{gWm}, {R}, v{gWm}")
        for i in range(36): a(f"v_mov_b64 v[{ACCG+2*i}:{ACCG+2*i+1}], 0")
        units = self.units
        BIG = f32bits(-1.0e30)
        a(f"""
v_and_b32 v{vT}, 15, v{vL}
v_lshrrev_b32 v{vT+1}, 4, v{vL}
s_mul_i32 s{sT}, s{sU}, 40
v_mul_u32_u24 v{vT+2}, 320, v{vT}
v_lshl_add_u32 v{vT+2}, v{vT+1}, 4, v{vT+2}
s_add_u32 s{sT+1}, s{sT}, {QA}
v_add_u32 v{lQa}, s{sT+1}, v{vT+2}
s_add_u32 s{sT+1}, s{sT}, {KA}
v_add_u32 v{lKa}, s{sT+1}, v{vT+2}
v_min_u32 v{vT+3}, 7, v{vT}
v_mul_u32_u24 v{vT+3}, 320, v{vT+3}
v_lshl_add_u32 v{vT+3}, v{vT+1}, 4, v{vT+3}
v_add_u32 v{lKa+1}, s{sT+1}, v{vT+3}
v_lshrrev_b32 v{vT+2}, 2, v{vL}
v_and_b32 v{vT+3}, 3, v{vL}
v_mul_u32_u24 v{vT+4}, 320, v{vT+2}
v_lshl_add_u32 v{vT+4}, v{vT+3}, 3, v{vT+4}
s_and_b32 s{sT+2}, s{sU}, 1
s_lshl3_add_u32 s{sT+1}, s{sT+2}, s{sT}
s_add_u32 s{sT+1}, s{sT+1}, {VA}
s_mul_i32 s{sT+2}, s{sT+2}, 40
v_add_u32 v{lVt}, s{sT+1}, v{vT+4}
v_min_u32 v{vT+2}, 7, v{vT+2}
v_mul_u32_u24 v{vT+4}, 320, v{vT+2}
v_lshl_add_u32 v{vT+4}, v{vT+3}, 3, v{vT+4}
v_add_u32 v{lVt+1}, s{sT+1}, v{vT+4}
v_cmp_eq_u32 vcc, 0, v{vT+3}
v_mov_b32 v{vT+2}, {MISC+ONES}
""")
        for ui, (par, qh) in enumerate(units):
            o = (32*qh + par) * 160
            a(f"""
v_add_u32 v{vT+4}, {o+32}, v{lVt}
v_add_u32 v{vT+5}, {o+32+5120}, v{lVt+1}
v_subrev_u32 v{vT+4}, s{sT+2}, v{vT+4}
v_subrev_u32 v{vT+5}, s{sT+2}, v{vT+5}
v_cndmask_b32 v{lVo+2*ui}, v{vT+2}, v{vT+4}, vcc
v_cndmask_b32 v{lVo+2*ui+1}, v{vT+2}, v{vT+5}, vcc
""")
        a(f"""
v_mul_u32_u24 v{lPA}, 160, v{vT}
v_lshl_add_u32 v{lPA}, v{vT+1}, 3, v{lPA}
v_add_u32 v{lPA}, {R}, v{lPA}
v_lshl_add_u32 v{lPA+2}, v{vT}, 3, v{vMISC}
v_lshrrev_b32 v{vT+2}, 3, v{vT}
v_mul_u32_u24 v{vT+2}, 40960, v{vT+2}
v_and_b32 v{vT+3}, 7, v{vT}
v_lshl_add_u32 v{vT+2}, v{vT+3}, 5, v{vT+2}
v_and_b32 v{vT+3}, 1, v{vT+1}
v_lshl_add_u32 v{vT+2}, v{vT+3}, 4, v{vT+2}
v_lshrrev_b32 v{vT+3}, 1, v{vT+1}
v_lshl_add_u32 v{lPA+1}, v{vT+3}, 8, v{vT+2}
v_mul_u32_u24 v{vT+3}, 81920, v{vT+3}
v_add_u32 v{lPH}, v{vT+3}, v{vT+2}
s_cmp_eq_u32 s{sRB}, 0
s_cselect_b32 s{sT+2}, 8, 0
v_lshlrev_b32 v{vT+1}, 2, v{vT+1}
v_sub_u32 v{vT+2}, v{vT+1}, v{vT}
v_mov_b32 v{vT+3}, {BIG}
""")
        for tl in range(2):
            for r in range(4):
                a(f"""
v_add_u32 v{vT+4}, {16*tl + r - 1}, v{vT+2}
v_cmp_gt_u32 vcc, 8, v{vT+4}
v_cndmask_b32 v{lMK+8+4*tl+r}, v{vT+3}, 0, vcc
""")
                if tl == 0:
                    a(f"""
v_add_u32 v{vT+4}, {r}, v{vT+1}
v_cmp_le_u32 vcc, s{sT+2}, v{vT+4}
v_cndmask_b32 v{lMK+r}, v{vT+3}, v{lMK+8+r}, vcc
""")
                else:
                    a(f"v_mov_b32 v{lMK+4+r}, v{lMK+12+r}")
    units = [(par, qh) for qh in range(2) for par in range(2)]

    def loadK(self, b):
        k = K_[b]
        return [f"buffer_load_dwordx4 v[{k}:{k+3}], v{vKa}, s[{sWS}:{sWS+3}], s{sK} offen sc1",
                f"buffer_load_dwordx2 v[{k+4}:{k+5}], v{vKb}, s[{sWS}:{sWS+3}], s{sK} offen offset:32 sc1\ns_add_u32 s{sK}, s{sK}, 1536"]
    def loadV(self, b):
        v = V_[b]
        return [f"buffer_load_dwordx4 v[{v}:{v+3}], v{vVa}, s[{sWS}:{sWS+3}], s{sV} offen sc1",
                f"buffer_load_dwordx4 v[{v+4}:{v+7}], v{vVa}, s[{sWS}:{sWS+3}], s{sV} offen offset:672 sc1\ns_add_u32 s{sV}, s{sV}, 1344"]
    def qk(self, Sn, K, Q):
        return [f"v_mfma_f32_32x32x16_bf16 v[{Sn}:{Sn+15}], v[{K}:{K+3}], v[{Q}:{Q+3}], 0",
                f"v_mfma_f32_32x32x8_bf16 v[{Sn}:{Sn+15}], v[{K+4}:{K+5}], v[{Q+4}:{Q+5}], v[{Sn}:{Sn+15}]"]
    def pv(self, O, V, P):
        return [f"v_smfmac_f32_32x32x32_bf16 v[{O}:{O+15}], v[{V}:{V+3}], v[{P}:{P+7}], v{vIDX}",
                f"v_smfmac_f32_32x32x32_bf16 v[{O}:{O+15}], v[{V+4}:{V+7}], v[{P+8}:{P+15}], v{vIDX}"]
    def flag_poll(self, ws_base, tmp):
        a = self.a; L = a.uid("Lf"); D = a.uid("Lfd")
        a(f"""
v_lshlrev_b32 v{vT}, 7, v{vL}
s_lshl_b32 s{sT}, s{sRB}, 10
s_add_u32 s{sT}, s{sT}, {ws_base}
s_mov_b32 s{sCNT}, 0x8000
s_mov_b64 exec, 0xff
{L}:
buffer_load_dwordx4 v[{tmp}:{tmp+3}], v{vT}, s[{sWS}:{sWS+3}], s{sT} offen sc1
s_waitcnt vmcnt(0)
v_cmp_eq_u32 vcc, s{sTAG}, v{tmp}
v_cmp_eq_u32 s[{sT+2}:{sT+3}], s{sTAG}, v{tmp+1}
v_cmp_eq_u32 s[{sT+4}:{sT+5}], s{sTAG}, v{tmp+2}
v_cmp_eq_u32 s[{sT+6}:{sT+7}], s{sTAG}, v{tmp+3}
s_and_b32 s{sT+2}, s{sT+2}, vcc_lo
s_and_b32 s{sT+4}, s{sT+4}, s{sT+6}
s_and_b32 s{sT+2}, s{sT+2}, s{sT+4}
s_cmp_eq_u32 s{sT+2}, 0xff
s_cbranch_scc1 {D}
s_sleep 2
s_sub_u32 s{sCNT}, s{sCNT}, 1
s_cmp_lg_u32 s{sCNT}, 0
s_cbranch_scc1 {L}
{D}:
s_mov_b64 exec, -1
""")
    def flag_store(self, ws_base, widx_sgpr):
        self.a(f"""
s_lshl_b32 s{sT}, s{sRB}, 3
s_add_u32 s{sT}, s{sT}, s{sHG}
s_lshl_b32 s{sT}, s{sT}, 7
s_lshl2_add_u32 s{sT}, s{widx_sgpr}, s{sT}
s_add_u32 s{sT}, s{sT}, {ws_base}
v_mov_b32 v{vT}, 0
v_mov_b32 v{vT+1}, s{sTAG}
s_waitcnt vmcnt(0)
s_mov_b64 exec, 1
buffer_store_dword v{vT+1}, v{vT}, s[{sWS}:{sWS+3}], s{sT} offen sc1
s_mov_b64 exec, -1
""")

    def m_main(self):
        a = self.a
        for b in range(4):
            q = Q_[b]; ad = 10 + (b >> 1); o = (b & 1) * 5120
            a(f"ds_read_b64 v[{q}:{q+1}], v{ad} offset:{o}\nds_read_b64 v[{q+2}:{q+3}], v{ad} offset:{o+8}")
        a("s_mov_b32 exec_hi, 0")
        for b in range(4):
            q = Q_[b]; ad = 10 + (b >> 1); o = (b & 1) * 5120
            a(f"ds_read_b64 v[{q+4}:{q+5}], v{ad} offset:{o+32}")
        a(f"""
s_mov_b32 exec_hi, -1
ds_read_b32 v13, v{vMISC} offset:{KMAX}
s_cmp_lg_u32 s11, 0
s_cbranch_scc1 L_m_nokv2
""")
        self.kv_first()
        a.label("L_m_nokv2")
        for i in range(68, 84, 2): a(f"v_mov_b64 v[{i}:{i+1}], 0")
        N = S_[1]
        for b in range(4): a(f"v_mov_b32 v{N+b}, 0")
        a("s_waitcnt lgkmcnt(0)")
        a(f"ds_read_b32 v14, v{vMISC} offset:{TAGO}\nds_read_b32 v{vG}, v12 offset:{GBUF}\nds_read_b32 v{vG+1}, v12 offset:{GBUF+128}")
        for i in range(6):
            for b in range(4): a(f"v_dot2_f32_bf16 v{N+b}, v{Q_[b]+i}, v{Q_[b]+i}, v{N+b}")
        for b in range(4): a(f"v_mov_b32 v{N+4+b}, v{N+b}")
        for b in range(4): a(f"v_permlane32_swap_b32 v{N+b}, v{N+4+b}")
        for b in range(4): a(f"v_add_f32 v{N+b}, v{N+b}, v{N+4+b}")
        for b in range(4): a(f"v_mul_f32 v{N+b}, v{N+b}, v13")
        for b in range(4): a(f"v_sqrt_f32 v{N+b}, v{N+b}")
        a("s_mov_b32 exec_lo, 0")
        for b in range(4): a(f"v_mul_f32 v{N+b}, {f32bits(-(1.0 + 2.0**-6))}, v{N+b}")
        for b in range(4): a(f"v_lshrrev_b32 v{Q_[b]+4}, 16, v{N+b}")
        a("s_mov_b32 exec_lo, -1")
        eW = vE; eR = vE+1; ePs = vE+2; ePp = vE+3; eS4 = vE+4; eS2 = vE+5; eWb = vE+6; eO4 = vE+8; eO2 = vE+9; eAC = vE+10
        a(f"""
s_mul_i32 s{sT+1}, s{sW}, 6144
s_xor_b32 s{sT+2}, s{sW}, 1
s_mul_i32 s{sT+3}, s{sT+2}, 6144
s_add_u32 s{sT+1}, s{sT+1}, {RED}
s_add_u32 s{sT+3}, s{sT+3}, {RED}
v_add_u32 v{eW}, s{sT+1}, v{vLin}
v_add_u32 v{eR}, s{sT+3}, v{vLin}
s_lshl_b32 s{sT+1}, s{sW}, 2
s_lshl_b32 s{sT+2}, s{sT+2}, 2
v_add_u32 v{ePs}, s{sT+1}, v{vSIG}
v_add_u32 v{ePp}, s{sT+2}, v{vMISC}
v_add_u32 v{eAC+1}, s{sT+1}, v{vMISC}
v_and_b32 v{vT}, 15, v{vL}
v_bfe_u32 v{vT+1}, v{vL}, 4, 1
v_mul_u32_u24 v{vT+1}, 40960, v{vT+1}
v_lshl_add_u32 v{vT}, v{vT}, 4, v{vT+1}
v_lshrrev_b32 v{vT+1}, 5, v{vL}
v_mul_u32_u24 v{vT+2}, 81920, v{vT+1}
v_add_u32 v{eS2}, v{vT}, v{vT+2}
v_xor_b32 v{vT+1}, s10, v{vT+1}
v_lshl_add_u32 v{eS4}, v{vT+1}, 8, v{vT}
s_mul_i32 s64, s{sRB}, 163840
s_mul_i32 s{sT+2}, s{sHG}, 2560
s_add_u32 s64, s64, s{sT+2}
s_lshr_b32 s{sT+2}, s{sW}, 1
s_mul_i32 s{sT+2}, s{sT+2}, 1280
s_add_u32 s64, s64, s{sT+2}
s_add_u32 s64, s64, {WS_OAB + 80*256}
s_add_u32 s65, s64, 81920
s_waitcnt vmcnt(12) lgkmcnt(0)
""")
        for l in self.qk(S_[0], K_[0], Q_[0]): a(l)
        a(f"v_readfirstlane_b32 s{sTAG}, v14")
        a(f"v_sub_f32 v{vG}, 1.0, v{vG}\nv_sub_f32 v{vG+1}, 1.0, v{vG+1}")
        a(f"s_mov_b32 s{sCNT}, 8")
        self.stamp(4)
        self.cstamp(9)
        a("s_nop 5")
        a(".p2align 6")
        a.label("L_mqa")
        for kb in range(4):
            for j in range(4):
                e = [f"v_exp_f32 v{S_[j]+i}, v{S_[j]+i}" for i in range(16)]
                m = self.qk(S_[(j+1) % 4], K_[kb if j < 3 else (kb+1) % 4], Q_[(j+1) % 4]) + self.pv(O_[(j+3) % 4], V_[kb if j > 0 else (kb+3) % 4], S_[(j+3) % 4])
                pre = [None]*4; post = [None]*4
                if j == 1:
                    pre[2] = "s_waitcnt vmcnt(10)"
                    lv = self.loadV((kb+3) % 4); post[2] = lv[0]; post[3] = lv[1]
                if j == 3:
                    pre[0] = "s_waitcnt vmcnt(10)"
                    lk = self.loadK(kb); post[2] = lk[0]; post[3] = lk[1]
                    if kb == 3:
                        post[0] = f"s_sub_u32 s{sCNT}, s{sCNT}, 1"
                        post[3] += f"\ns_cmp_lg_u32 s{sCNT}, 0"
                for x in range(4):
                    if pre[x]: a(pre[x])
                    a(m[x])
                    if post[x]: a(post[x])
                    for l in e[4*x:4*x+4]: a(l)
        if self.stamps == 3:
            a(f"s_memrealtime s[100:101]\ns_waitcnt lgkmcnt(0)\ns_mov_b32 m0, s{sCNT}\nv_writelane_b32 v254, s100, m0\ns_memtime s[100:101]\ns_waitcnt lgkmcnt(0)\nv_writelane_b32 v253, s100, m0\ns_cmp_lg_u32 s{sCNT}, 0")
        a("s_cbranch_scc1 L_mqa")
        a(f"ds_read_b32 v14, v{vMISC} offset:{GDONE}")
        for l in self.pv(O_[3], V_[3], S_[3]): a(l)
        if self.stamps == 3:
            a(f"s_lshl2_add_u32 s{sT}, s2, s{sW}\ns_lshl_b32 s{sT}, s{sT}, 9\ns_add_u32 s{sT}, s{sT}, {WS_DUMP}\nv_lshlrev_b32 v{vT}, 2, v{vL}\nbuffer_store_dword v254, v{vT}, s[{sWS}:{sWS+3}], s{sT} offen\nbuffer_store_dword v253, v{vT}, s[{sWS}:{sWS+3}], s{sT} offen offset:256")
        self.stamp(5)
        self.cstamp(10)
        a("s_waitcnt lgkmcnt(0)")
        self.check_fast(14, GDONE, 4)
        for b in range(2):
            for i in range(3):
                o = O_[2+b] + 4*i
                a(f"ds_write_b128 v{eW}, v[{o}:{o+3}] offset:{(3*b+i)*1024}")
        a(f"ds_add_u32 v{ePs}, v{vONE} offset:{PAIR}")
        self.poll(PAIR, 1, vaddr=ePp)
        if self.stamps == 5: self.stamp(3)
        for b in range(2):
            for i in range(3):
                o = S_[b] + 4*i
                a(f"ds_read_b128 v[{o}:{o+3}], v{eR} offset:{(3*b+i)*1024}")
        for b in range(2):
            a(f"s_waitcnt lgkmcnt({3*(1-b)})")
            for i in range(12): a(f"v_add_f32 v{O_[b]+i}, v{O_[b]+i}, v{S_[b]+i}")
        for b in range(2):
            a(f"v_mov_b32 v{S_[2]+2*b}, v{O_[b]+8}\nv_mov_b32 v{S_[2]+2*b+1}, v{O_[b]+8}")
        for b in range(2):
            a(f"v_permlane32_swap_b32 v{S_[2]+2*b}, v{S_[2]+2*b+1}")
        a(f"""
v_min_f32 v{vT}, v{S_[2]+1}, v{S_[2]+3}
v_add_f32 v{vT+1}, v{S_[2]+1}, v{S_[2]+3}
s_mov_b32 s{sT}, {THR}
v_cmp_nle_f32 vcc, s{sT}, v{vT}
v_cmp_u_f32 s[{sT+2}:{sT+3}], v{vT+1}, v{vT+1}
s_or_b64 vcc, vcc, s[{sT+2}:{sT+3}]
s_cbranch_vccnz L_fallback
L_m_norm:
v_rcp_f32 v{S_[2]+1}, v{S_[2]+1}
v_rcp_f32 v{S_[2]+3}, v{S_[2]+3}
v_mul_f32 v{S_[2]+1}, v{S_[2]+1}, v{vG}
v_mul_f32 v{S_[2]+3}, v{S_[2]+3}, v{vG+1}
""")
        for b in range(2):
            for i in range(12): a(f"v_mul_f32 v{O_[b]+i}, v{O_[b]+i}, v{S_[2]+2*b+1}")
        a(f"s_cmp_lg_u32 s10, 0\ns_cbranch_scc1 L_m_odd")
        def cvt(d, s): a(f"v_cvt_pk_bf16_f32 v{d}, v{s}, v{s+1}\nv_cvt_pk_bf16_f32 v{d+1}, v{s+2}, v{s+3}")
        for b in range(2):
            d = S_[b]; cvt(d, O_[b]); cvt(d+2, O_[b]+4); cvt(d+4, O_[b]+8)
        for b in range(2):
            d = S_[b]; a(f"v_permlane32_swap_b32 v{d}, v{d+2}\nv_permlane32_swap_b32 v{d+1}, v{d+3}")
        a(f"v_permlane32_swap_b32 v{S_[0]+4}, v{S_[1]+4}\nv_permlane32_swap_b32 v{S_[0]+5}, v{S_[1]+5}")
        n0 = len(a.ins)
        for b in range(2):
            d = S_[b]; a(f"buffer_store_dwordx4 v[{d}:{d+3}], v{eS4}, s[{sWS}:{sWS+3}], s{64+b} offen sc1")
        a(f"buffer_store_dwordx2 v[{S_[0]+4}:{S_[0]+5}], v{eS2}, s[{sWS}:{sWS+3}], s64 offen offset:512 sc1")
        self.dup_stores(n0)
        a("s_branch L_m_pub")
        a.label("L_m_odd")
        for b in range(2):
            d = S_[b]; cvt(d, O_[b]); cvt(d+2, O_[b]+8); cvt(d+4, O_[b]+4)
        for b in range(2):
            d = S_[b]; a(f"v_permlane32_swap_b32 v{d+2}, v{d+4}\nv_permlane32_swap_b32 v{d+3}, v{d+5}")
        for b in range(2):
            d = S_[b]; a(f"v_permlane32_swap_b32 v{d+4}, v{d}\nv_permlane32_swap_b32 v{d+5}, v{d+1}")
        a(f"v_permlane32_swap_b32 v{S_[0]+4}, v{S_[1]+4}\nv_permlane32_swap_b32 v{S_[0]+5}, v{S_[1]+5}")
        n0 = len(a.ins)
        for b in range(2):
            d = S_[b]; a(f"buffer_store_dwordx4 v[{d}:{d+3}], v{eS4}, s[{sWS}:{sWS+3}], s{64+b} offen offset:768 sc1")
        a(f"buffer_store_dwordx2 v[{S_[1]+4}:{S_[1]+5}], v{eS2}, s[{sWS}:{sWS+3}], s64 offen offset:520 sc1")
        self.dup_stores(n0)
        a.label("L_m_pub")
        if self.stamps == 5: self.stamp(4)
        OF = 52; ACC = 132; WF = 152; NWF = 4
        a(f"ds_read_b32 v14, v{vMISC} offset:{BWOL}")
        self.tr_base(eWb, 160)
        a(f"v_add_u32 v{eWb+1}, 51200, v{eWb}")
        self.srd(sOUT, 34, 2621440)
        for i in range(10): a(f"v_mov_b64 v[{ACC+2*i}:{ACC+2*i+1}], 0")
        a(f"""
v_and_b32 v{eO4}, 15, v{vL}
s_lshl2_add_u32 s{sT+8}, s{sRB}, s{sW}
s_lshl_b32 s{sT+1}, s{sT+8}, 4
v_add_u32 v{eO4}, s{sT+1}, v{eO4}
v_mul_u32_u24 v{eO4}, 1280, v{eO4}
v_lshrrev_b32 v{vT+1}, 4, v{vL}
v_lshl_add_u32 v{eO2}, v{vT+1}, 3, v{eO4}
v_bfe_u32 v{vT+1}, v{vL}, 4, 1
v_lshl_add_u32 v{eO4}, v{vT+1}, 5, v{eO4}
v_lshrrev_b32 v{vT+1}, 5, v{vL}
v_lshl_add_u32 v{eO4}, v{vT+1}, 4, v{eO4}
s_mul_i32 s{sT+8}, s{sT+8}, 40960
s_add_u32 s{sT+8}, s{sT+8}, {WS_OAB + 20480}
s_mul_i32 s{sT+9}, s{sW}, 5120
s_add_u32 s{sT+9}, s{sT+9}, {ACCAREA}
v_add_u32 v{eAC}, s{sT+9}, v{vLin}
""")
        self.flag_store(WS_FB, sW)
        self.stamp(6)
        if self.stop not in ("oab", "nobg"):
            a("s_waitcnt lgkmcnt(0)")
            self.check_fast(14, BWOL, 4)
            def wreads(ks):
                wb = eWb + (1 if ks >= 10 else 0); o = (ks % 10) * 5120; f = WF + 20 * (ks % NWF); out = []
                for t in range(5):
                    out.append(f"ds_read_b64_tr_b16 v[{f+4*t}:{f+4*t+1}], v{wb} offset:{o+32*t}")
                    out.append(f"ds_read_b64_tr_b16 v[{f+4*t+2}:{f+4*t+3}], v{wb} offset:{o+32*t+1280}")
                return out
            for ks in range(NWF):
                for l in wreads(ks): a(l)
            self.flag_poll(WS_FB, 20)
            self.stamp(7)
            for ks in range(20):
                if ks and ks % 4 == 0: a(f"s_add_u32 s{sT+8}, s{sT+8}, 4096")
                a(f"buffer_load_dwordx4 v[{OF+4*ks}:{OF+4*ks+3}], v{vLin}, s[{sWS}:{sWS+3}], s{sT+8} offen offset:{(ks%4)*1024} sc1")
            for ks in range(20):
                if ks < NWF: a(f"s_waitcnt vmcnt({19-ks}) lgkmcnt(0)" if ks == 0 else f"s_waitcnt vmcnt({19-ks})")
                else: a(f"s_waitcnt vmcnt({19-ks}) lgkmcnt({min(10, 10*(19-ks))})")
                if self.stamps == 5 and ks == 0: self.stamp(1)
                if self.stamps == 5 and ks == 19: self.stamp(2)
                f = WF + 20 * (ks % NWF)
                r = wreads(ks + NWF) if ks + NWF < 20 else []
                for t in range(5):
                    a(f"v_mfma_f32_16x16x32_bf16 v[{ACC+4*t}:{ACC+4*t+3}], v[{f+4*t}:{f+4*t+3}], v[{OF+4*ks}:{OF+4*ks+3}], v[{ACC+4*t}:{ACC+4*t+3}]")
                    for l in r[2*t:2*t+2]: a(l)
                if ks == 17: a(f"ds_read_b32 v14, v{eAC+1} offset:{ACCA}")
                if ks == 19:
                    self.check_fast(14, ACCA, 1, vaddr=eAC+1)
                    for t in range(5): a(f"ds_read_b128 v[{20+4*t}:{20+4*t+3}], v{eAC} offset:{1024*t}")
            self.stamp(8)
            a(f"s_mul_i32 s{sT+1}, s{sHG}, 160\ns_waitcnt lgkmcnt(0)")
            for i in range(20): a(f"v_add_f32 v{ACC+i}, v{ACC+i}, v{20+i}")
            for t in range(5):
                d = 40 + 2*t
                a(f"v_cvt_pk_bf16_f32 v{d}, v{ACC+4*t}, v{ACC+4*t+1}\nv_cvt_pk_bf16_f32 v{d+1}, v{ACC+4*t+2}, v{ACC+4*t+3}")
            for p in range(2):
                d = 40 + 4*p
                a(f"v_permlane16_swap_b32 v{d}, v{d+2}\nv_permlane16_swap_b32 v{d+1}, v{d+3}")
            for p in range(2):
                d = 40 + 4*p
                a(f"buffer_store_dwordx4 v[{d}:{d+3}], v{eO4}, s[{sOUT}:{sOUT+3}], s{sT+1} offen offset:{64*p}")
            a(f"buffer_store_dwordx2 v[48:49], v{eO2}, s[{sOUT}:{sOUT+3}], s{sT+1} offen offset:128")
        a("s_branch L_fin")
        self.m_fallback()

    def m_fallback(self):
        a = self.a
        MX = S_[2] + 4
        a.label("L_fallback")
        a("s_mov_b32 exec_lo, 0")
        for b in range(2): a(f"v_mov_b32 v{Q_[b]+4}, 0\nv_mov_b32 v{Q_[b]+5}, 0")
        a("s_mov_b32 exec_lo, -1")
        a(f"v_mov_b32 v{MX}, 0xff7fffff\nv_mov_b32 v{MX+1}, 0xff7fffff")
        a(f"s_mov_b32 s{sK}, {WS_K}\ns_mov_b32 s{sCNT}, 64\ns_waitcnt vmcnt(0)")
        a.label("L_fb1")
        for l in self.loadK(0): a(l)
        a("s_waitcnt vmcnt(0)")
        for b in range(2):
            for l in self.qk(S_[b], K_[0], Q_[b]): a(l)
        for b in range(2):
            for i in range(8): a(f"v_max3_f32 v{MX+b}, v{S_[b]+2*i}, v{S_[b]+2*i+1}, v{MX+b}")
        a(f"s_sub_u32 s{sCNT}, s{sCNT}, 1\ns_cmp_lg_u32 s{sCNT}, 0\ns_cbranch_scc1 L_fb1")
        for b in range(2):
            m = MX + b; t = MX + 2
            a(f"""
v_mov_b32 v{t}, v{m}
v_permlane32_swap_b32 v{m}, v{t}
v_max_f32 v{m}, v{m}, v{t}
v_sub_f32 v{m}, 0, v{m}
v_and_b32 v{t}, 0xffff0000, v{m}
v_sub_f32 v{m}, v{m}, v{t}
v_and_b32 v{t+1}, 0xffff0000, v{m}
v_sub_f32 v{m}, v{m}, v{t+1}
s_mov_b32 exec_lo, 0
v_lshrrev_b32 v{t}, 16, v{t}
v_or_b32 v{Q_[b]+4}, v{t}, v{t+1}
v_lshrrev_b32 v{Q_[b]+5}, 16, v{m}
s_mov_b32 exec_lo, -1
""")
        for i in range(16): a(f"v_mov_b64 v[{O_[0]+2*i}:{O_[0]+2*i+1}], 0")
        a(f"s_mov_b32 s{sK}, {WS_K}\ns_mov_b32 s{sV}, {WS_V}\ns_mov_b32 s{sCNT}, 64")
        a.label("L_fb2")
        for l in self.loadK(0) + self.loadV(0): a(l)
        a("s_waitcnt vmcnt(0)")
        for b in range(2):
            for l in self.qk(S_[b], K_[0], Q_[b]): a(l)
        for b in range(2):
            for i in range(16): a(f"v_exp_f32 v{S_[b]+i}, v{S_[b]+i}")
        for b in range(2):
            for l in self.pv(O_[b], V_[0], S_[b]): a(l)
        a(f"s_nop 15\ns_sub_u32 s{sCNT}, s{sCNT}, 1\ns_cmp_lg_u32 s{sCNT}, 0\ns_cbranch_scc1 L_fb2")
        for b in range(2):
            a(f"v_mov_b32 v{S_[2]+2*b}, v{O_[b]+8}\nv_mov_b32 v{S_[2]+2*b+1}, v{O_[b]+8}")
        for b in range(2): a(f"v_permlane32_swap_b32 v{S_[2]+2*b}, v{S_[2]+2*b+1}")
        a("s_nop 1\ns_branch L_m_norm")

    def g_main(self):
        a = self.a
        if self.stop == "nobg":
            self.signal(GDONE); return
        self.srd(sWQKV, 18, 2457600)
        a(f"""
s_lshl_b32 s10, s{sU}, 10
s_add_u32 s10, s10, {R}
s_mul_i32 s11, s{sKA}, 245760
ds_read_b32 v9, v{vMISC} offset:{TAGO}
""")
        def issue_list(npieces):
            out = []
            for i in range(npieces):
                out.append(f"s_add_u32 m0, s10, {4096*i}" + ("" if "nodma" in EXP else f"\nbuffer_load_dwordx4 v{gWO+i}, s[{sWQKV}:{sWQKV+3}], s11 offen lds"))
            out[-1] += f"""
s_add_u32 s11, s11, 122880
s_cmp_eq_u32 s11, 2457600
s_cselect_b32 s11, 0, s11
s_add_u32 s10, s10, 15360
s_cmp_ge_u32 s10, {R+46080}
s_cselect_b32 s{sT+1}, 46080, 0
s_sub_u32 s10, s10, s{sT+1}"""
            return out
        a(f"s_cmp_eq_u32 s{sU}, 1\ns_cbranch_scc1 L_bg1\ns_cmp_eq_u32 s{sU}, 2\ns_cbranch_scc1 L_bg2\ns_cmp_eq_u32 s{sU}, 3\ns_cbranch_scc1 L_bg3")
        for u in range(4):
            if u: a.label(f"L_bg{u}")
            self.bg_path(u, issue_list)
            if u < 3: a("s_branch L_bg_done")
        a.label("L_bg_done")
        self.local_attn()
        self.g_apart()

    def bg_path(self, u, issue_list):
        a = self.a
        rp = u & 1; cg = u >> 1
        tiles = list(range(0, 8)) if cg == 0 else list(range(8, 15))
        halo = [[5, 6], [7], [8, 9, 10, 11], [12, 13, 14]][u if cg == 0 else 2 + rp] if True else None
        halo = {(0, 0): [5, 6], (0, 1): [7], (1, 0): [8, 9, 10, 11], (1, 1): [12, 13, 14]}[(cg, rp)]
        npc = 4 if u < 3 else 3
        work = []
        for t in tiles:
            work.append((t, 0)); work.append((t, 1))
            if t in halo: work.append((t, 2))
        def reads(par):
            b = GF[par]; out = []
            out.append(f"ds_read_b128 v[{b}:{b+3}], v{gXF+par}")
            out.append(f"ds_read_b128 v[{b+4}:{b+7}], v{gXF+par} offset:2048")
            for j, t in enumerate(tiles):
                f = b + 12 + 4*j
                out.append(f"ds_read_b64_tr_b16 v[{f}:{f+1}], v{gWm} offset:{32*t}")
                out.append(f"ds_read_b64_tr_b16 v[{f+2}:{f+3}], v{gWm} offset:{32*t+3840}")
            out.append(f"ds_read_b128 v[{b+8}:{b+11}], v{gHF+par}")
            if "nords" in EXP: out = ["s_nop 0"] * len(out)
            return out
        def mfmas(par):
            b = GF[par]; out = []
            for n, (t, xs) in enumerate(work):
                f = b + 12 + 4*tiles.index(t); x = b + 4*xs; c = ACCG + 4*n
                out.append(f"v_mfma_f32_16x16x32_bf16 v[{c}:{c+3}], v[{f}:{f+3}], v[{x}:{x+3}], v[{c}:{c+3}]" if "nomfma" not in EXP else "s_sleep 1")
            return out
        def advance(par):
            t = f"""
s_add_u32 s{sT+8}, s{sT+8}, 1
s_cmp_eq_u32 s{sT+8}, 3
s_cselect_b32 s{sT+8}, 0, s{sT+8}
s_cselect_b32 s{sT+2}, s{sT+10}, 15360
s_setprio 2
v_add_u32 v{gWm}, s{sT+2}, v{gWm}"""
            if par == 1:
                t += f"""
s_add_u32 s{sT+9}, s{sT+9}, 1
s_cmp_eq_u32 s{sT+9}, 10
s_cselect_b32 s{sT+2}, s{sT+11}, 2048
v_add_u32 v{gHF}, s{sT+2}, v{gHF}
v_add_u32 v{gHF+1}, s{sT+2}, v{gHF+1}
s_lshl_b32 s{sT+2}, s{sT+2}, 2
v_add_u32 v{gXF}, s{sT+2}, v{gXF}
v_add_u32 v{gXF+1}, s{sT+2}, v{gXF+1}"""
            return t + f"\ns_setprio {GP}"
        bp = [[0], [1], [2], [3, 4]][u]
        order = [0, 1, 2, 3, 8, 4, 5, 6, 7, 9]
        def table(rot, second):
            t = 0
            for m in range(10):
                v = order[m]; half = second ^ rot
                t |= (half*8 + v if v < 8 else 16 + half*2 + (v-8)) << (5*m)
            return t
        def bwo(cond):
            out = []
            head = f"""s_and_b32 s{sT+3}, s64, 31
s_lshr_b64 s[64:65], s[64:65], 5
s_mul_i32 s{sT+3}, s{sT+3}, 5120
s_lshl_b32 s{sT+4}, s{sT+3}, 3
s_cmp_eq_u64 s[64:65], 0
s_cselect_b64 s[64:65], s[66:67], s[64:65]
"""
            for k, p in enumerate(bp):
                t = (head if k == 0 else "") + f"s_add_u32 m0, s{sT+3}, {1024*p}\nbuffer_load_dwordx4 v{vW5+p}, s[{sBWO}:{sBWO+3}], s{sT+4} offen lds"
                if cond:
                    L = a.uid("Lnb")
                    t = f"s_cmp_lt_u32 s8, 20\ns_cbranch_scc1 {L}\n{t}\n{L}:"
                out.append(t)
            return out
        nb = len(bp) if "nobwo" not in EXP else 0
        def step(par, do_mfma, do_issue, do_bwo, arrive, inloop=False):
            m = mfmas(1-par) if do_mfma else []
            k = 0
            if k < len(m): a(m[k]); k += 1
            a(f"ds_read_b32 v{gFL}, v{vMISC} offset:{CNTG}")
            if k < len(m): a(m[k]); k += 1
            a("s_waitcnt lgkmcnt(0)")
            self.check_fast(gFL, CNTG, "s8", prio=GP)
            r = reads(par)
            il = issue_list(npc) if do_issue else []
            items = []
            n = 0
            while r or il:
                if il and (n in (3, 7) or not r): items.append([il[0]]); il = il[1:]
                else: items.append(r[:2]); r = r[2:]
                n += 1
            arr = advance(par) + "\n"
            if arrive is None:
                arr = f"s_waitcnt lgkmcnt(0)\nds_add_u32 v{vSIG}, v{vONE} offset:{GDONE}"
            else:
                if inloop:
                    L = a.uid("Lvw"); B = a.uid("Lvb")
                    arr += f"s_cmp_lt_u32 s8, 24\ns_cbranch_scc1 {L}\n{B}:\n"
                    self.ool += self.capture(lambda: a(f"{L}:\ns_waitcnt vmcnt({npc})\ns_branch {B}"))
                arr += f"s_waitcnt vmcnt({arrive}) lgkmcnt(0)\nds_add_u32 v{vSIG}, v{vONE} offset:{CNTG}"
            items.append([arr])
            if do_bwo and nb: items += [[x] for x in bwo(inloop)]
            items[-1] = items[-1] + ["s_add_u32 s8, s8, 4"]
            for it in items:
                for l in it: a(l)
                if k < len(m): a(m[k]); k += 1
            while k < len(m): a(m[k]); k += 1
        for l in issue_list(npc) + issue_list(npc): a(l)
        self.srd(sBWO, 30, 819200)
        a(f"""
s_lshr_b32 s{sT+2}, s2, 3
s_lshl2_add_u32 s{sT+2}, s{sT+2}, {u}
s_mul_i32 s{sT+2}, s{sT+2}, 6400
s_setprio 2
v_lshlrev_b32 v{vT+4}, 7, v{vL}
s_setprio {GP}
s_mov_b32 exec_hi, 0x3ffff
buffer_load_dword v0, v{vT+4}, s[{sBWO}:{sBWO+3}], s{sT+2} offen
s_mov_b32 exec_hi, -1
s_mov_b32 s64, {table(0,0) & 0xffffffff}
s_mov_b32 s65, {table(0,0) >> 32}
s_mov_b32 s66, {table(0,1) & 0xffffffff}
s_mov_b32 s67, {table(0,1) >> 32}
s_cmp_eq_u32 s{sKA}, 0
s_cselect_b64 s[{sT+2}:{sT+3}], s[64:65], s[66:67]
s_cselect_b64 s[66:67], s[66:67], s[64:65]
s_mov_b64 s[64:65], s[{sT+2}:{sT+3}]
s_mov_b32 s8, 4
s_mov_b32 s9, 8
s_mov_b32 s{sT+8}, 0
s_mov_b32 s{sT+9}, s{sKA}
s_mov_b32 s{sT+10}, -30720
s_mov_b32 s{sT+11}, -18432
s_waitcnt lgkmcnt(0)
s_setprio 2
v_readfirstlane_b32 s{sTAG}, v9
s_setprio {GP}
""")
        self.stamp(5)
        a(f"s_waitcnt vmcnt({npc+1})")
        self.signal(CNTG)
        step(0, False, True, False, npc)
        L = f"L_bgl{u}"
        a.label(L)
        step(1, True, True, True, npc+nb, inloop=True)
        step(0, True, True, True, npc+nb, inloop=True)
        a(f"s_sub_u32 s9, s9, 1\ns_cmp_lg_u32 s9, 0\ns_cbranch_scc1 {L}")
        self.srd(sAWO, 20, 819200)
        a(f"""
s_lshr_b32 s{sT+2}, s2, 3
s_lshl2_add_u32 s{sT+2}, s{sT+2}, {u}
s_mul_i32 s{sT+2}, s{sT+2}, 6400
s_mov_b32 exec_hi, 0x3ffff
buffer_load_dword v0, v{vT+4}, s[{sAWO}:{sAWO+3}], s{sT+2} offen
s_mov_b32 exec_hi, -1
""")
        step(1, True, True, True, npc+nb)
        step(0, True, False, True, nb)
        step(1, True, False, True, None)
        m = mfmas(1)
        def epi(n):
            t, xs = work[n]; c = ACCG + 4*n
            base = [QA - R, KA - R + 2560, VA - R + 2560][t // 5] + 32*(t % 5)
            off = base + (2*rp + xs) * 2560 if xs < 2 else base - 2560
            a(f"s_setprio 2\nv_cvt_pk_bf16_f32 v{c}, v{c}, v{c+1}\nv_cvt_pk_bf16_f32 v{c+1}, v{c+2}, v{c+3}\ns_setprio {GP}")
            a(f"ds_write_b64 v{lPA}, v[{c}:{c+1}] offset:{off}")
        LAG = 3
        for n in range(len(m)):
            a(m[n])
            if n == 1: a(f"ds_read_b32 v{gFL}, v{vMISC} offset:{GDONE}")
            if n == 2:
                a("s_waitcnt lgkmcnt(0)"); self.check_fast(gFL, GDONE, 4, prio=GP)
            if n >= LAG: epi(n - LAG)
        self.stamp(6)
        for n in range(len(m) - LAG, len(m)): epi(n)
        self.signal(LA1)
        for _ in range(4):
            for x in bwo(False): a(x)

    def local_attn(self):
        a = self.a
        QF = 104; KF = 120; VF = 152; SD = 32; PB = 64; OD = 80; TM = 20; GV = 184
        units = self.units; U = range(4)
        a("s_setprio 2")
        for i in range(8): a(f"v_mov_b64 v[{QF+2*i}:{QF+2*i+1}], 0")
        for ui, (par, qh) in enumerate(units):
            a(f"ds_read_b32 v{GV+ui}, v{lPA+2} offset:{GBUF + 4*(32*qh+par)}")
        for i in range(3):
            L = [a.uid("Lq") for _ in range(4)]; D = a.uid("Lqd")
            for u in range(4):
                p = min(u + 4*i, 9)
                if u < 3: a(f"s_cmp_lg_u32 s{sU}, {u}\ns_cbranch_scc1 {L[u]}")
                a(f"v_add_u32 v{28+i}, {40960 if p >= 5 else 0}, v{vW5 + p % 5}\ns_movk_i32 s{sT+9+i}, {1024*p}")
                if u < 3: a(f"s_branch {D}\n{L[u]}:")
            a.label(D)
        a(f"""
s_mov_b32 s10, {CSC}
s_mul_i32 s64, s{sRB}, 163840
s_add_u32 s64, s64, {WS_OAB}
s_mul_i32 s{sT+8}, s{sU}, 40960
s_add_u32 s{sT+8}, s{sT+8}, s64
s_mul_i32 s{sT+2}, s{sHG}, 2560
s_add_u32 s64, s64, s{sT+2}
s_lshr_b32 s{sT+2}, s{sU}, 1
s_mul_i32 s{sT+2}, s{sT+2}, 1280
s_add_u32 s64, s64, s{sT+2}
s_and_b32 s{sT+2}, s{sU}, 1
s_lshl3_add_u32 s66, s{sT+2}, s64
s_mul_i32 s{sT+2}, s{sT+2}, 768
s_add_u32 s64, s64, s{sT+2}
s_add_u32 s65, s64, 81920
""")
        self.poll(LA1, 4)
        self.stamp(7)
        a("s_mov_b32 exec_hi, 0xffff")
        for ui, (par, qh) in enumerate(units):
            a(f"ds_read_b64 v[{QF+4*ui}:{QF+4*ui+1}], v{lQa} offset:{(32*qh+par)*160}")
        a("s_mov_b32 exec_hi, 0")
        for ui, (par, qh) in enumerate(units):
            a(f"ds_read_b64 v[{QF+4*ui+2}:{QF+4*ui+3}], v{lQa} offset:{(32*qh+par)*160+8}")
        a("s_mov_b32 exec_hi, -1")
        for ui, (par, qh) in enumerate(units):
            o = (32*qh+par)*160
            for tl in range(2):
                f = KF + 8*ui + 4*tl
                a(f"ds_read_b64 v[{f}:{f+1}], v{lKa+tl} offset:{o + 5120*tl}")
                a(f"ds_read_b64 v[{f+2}:{f+3}], v{lKa+tl} offset:{o + 5120*tl + 8}")
        for ui, (par, qh) in enumerate(units):
            a(f"s_waitcnt lgkmcnt(12)")
            for tl in range(2):
                f = KF + 8*ui + 4*tl; d = SD + 8*ui + 4*tl; mk = lMK + 8*qh + 4*tl
                a(f"v_mfma_f32_16x16x32_bf16 v[{d}:{d+3}], v[{f}:{f+3}], v[{QF+4*ui}:{QF+4*ui+3}], v[{mk}:{mk+3}]")
            o = (32*qh+par)*160; f = VF + 8*ui
            a(f"ds_read_b64_tr_b16 v[{f}:{f+1}], v{lVt} offset:{o}")
            a(f"ds_read_b64_tr_b16 v[{f+2}:{f+3}], v{lVt+1} offset:{o+5120}")
            a(f"ds_read_b64_tr_b16 v[{f+4}:{f+5}], v{lVo+2*ui}")
            a(f"ds_read_b64_tr_b16 v[{f+6}:{f+7}], v{lVo+2*ui+1}")
        self.signal(LA2)
        for st in range(4):
            for ui in U:
                d = SD + 8*ui; m = TM + 2*ui
                a([f"v_max3_f32 v{m}, v{d}, v{d+1}, v{d+2}", f"v_max3_f32 v{m}, v{m}, v{d+3}, v{d+4}", f"v_max3_f32 v{m}, v{m}, v{d+5}, v{d+6}", f"v_max_f32 v{m}, v{m}, v{d+7}"][st])
        for sw in ("v_permlane16_swap_b32", "v_permlane32_swap_b32"):
            for ui in U: a(f"v_mov_b32 v{TM+2*ui+1}, v{TM+2*ui}")
            for ui in U: a(f"{sw} v{TM+2*ui}, v{TM+2*ui+1}")
            for ui in U: a(f"v_max_f32 v{TM+2*ui}, v{TM+2*ui}, v{TM+2*ui+1}")
        for ui in U: a(f"v_mul_f32 v{TM+2*ui}, s10, v{TM+2*ui}")
        a(f"ds_read_b32 v{vT}, v{vMISC} offset:{LA2}")
        for ui in U:
            for i in range(8): a(f"v_fma_f32 v{SD+8*ui+i}, v{SD+8*ui+i}, s10, -v{TM+2*ui}")
        a("s_waitcnt lgkmcnt(0)")
        self.check_fast(vT, LA2, 4)
        ex = []
        for ui in U:
            ex += [f"v_exp_f32 v{SD+8*ui+i}, v{SD+8*ui+i}" for i in range(8)]
        dm = []
        for st in range(3):
            for i in range(3):
                dm.append(f"s_mov_b32 s{sT+4}, {st*81920}\ns_add_u32 m0, s{sT+9+i}, {ARING[st]}\nbuffer_load_dwordx4 v{28+i}, s[{sAWO}:{sAWO+3}], s{sT+4} offen lds")
        for l in dm: a(l)
        for l in ex: a(l)
        for ui in U:
            for i in range(4): a(f"v_cvt_pk_bf16_f32 v{PB+4*ui+i}, v{SD+8*ui+2*i}, v{SD+8*ui+2*i+1}")
            for tl in (1, 0):
                f = VF + 8*ui + 4*tl; d = OD + 8*ui + 4*tl
                a(f"v_mfma_f32_16x16x32_bf16 v[{d}:{d+3}], v[{f}:{f+3}], v[{PB+4*ui}:{PB+4*ui+3}], 0")
        for ui in U: a(f"v_mov_b32 v{TM+2*ui}, v{OD+8*ui+4}\nv_mov_b32 v{TM+2*ui+1}, v{OD+8*ui+4}")
        for ui in U: a(f"v_permlane16_swap_b32 v{TM+2*ui}, v{TM+2*ui+1}")
        for ui in U: a(f"v_rcp_f32 v{TM+2*ui+1}, v{TM+2*ui+1}")
        for ui in U: a(f"v_mul_f32 v{TM+2*ui}, v{TM+2*ui+1}, v{GV+ui}")
        for ui in U:
            for i in range(4): a(f"v_pk_mul_f32 v[{OD+8*ui+2*i}:{OD+8*ui+2*i+1}], v[{OD+8*ui+2*i}:{OD+8*ui+2*i+1}], v[{TM+2*ui}:{TM+2*ui+1}] op_sel_hi:[1,0]")
        for ui in U:
            d = SD + 4*(ui >> 1) + 2*(ui & 1); h = SD + 16 + 2*ui
            a(f"v_cvt_pk_bf16_f32 v{d}, v{OD+8*ui}, v{OD+8*ui+1}\nv_cvt_pk_bf16_f32 v{d+1}, v{OD+8*ui+2}, v{OD+8*ui+3}")
            a(f"v_cvt_pk_bf16_f32 v{h}, v{OD+8*ui+4}, v{OD+8*ui+5}\nv_cvt_pk_bf16_f32 v{h+1}, v{OD+8*ui+6}, v{OD+8*ui+7}")
        for q in range(2):
            d = SD + 4*q
            a(f"v_permlane16_swap_b32 v{d}, v{d+2}\nv_permlane16_swap_b32 v{d+1}, v{d+3}")
        for q in range(2):
            h = SD + 16 + 4*q
            a(f"v_permlane16_swap_b32 v{h}, v{h+2}\nv_permlane16_swap_b32 v{h+1}, v{h+3}")
        n0 = len(a.ins)
        for q in range(2):
            d = SD + 4*q
            a(f"buffer_store_dwordx4 v[{d}:{d+3}], v{lPA+1}, s[{sWS}:{sWS+3}], s{64+q} offen sc1")
        h = SD + 16
        a(f"v_permlane32_swap_b32 v{h}, v{h+4}\nv_permlane32_swap_b32 v{h+1}, v{h+5}")
        a(f"buffer_store_dwordx2 v[{h}:{h+1}], v{lPH}, s[{sWS}:{sWS+3}], s66 offen offset:512 sc1")
        self.dup_stores(n0)

    def g_apart(self):
        a = self.a
        vWb = 18; OF = 32; ACC = 112; WF = [132, 172, 212]
        def issue(s):
            a(f"s_mov_b32 s{sT+4}, {s*81920}")
            for i in range(3):
                self.dma(28+i, sAWO, f"s{sT+4}", f"s_add_u32 m0, s{sT+9+i}, {ARING[s % 3]}")
        def reads(s):
            out = []
            for hs in range(2):
                f = WF[s % 3] + 20*hs; o = ARING[s % 3] - R + hs*5120
                for t in range(5):
                    out.append(f"ds_read_b64_tr_b16 v[{f+4*t}:{f+4*t+1}], v{vWb} offset:{o+32*t}")
                    out.append(f"ds_read_b64_tr_b16 v[{f+4*t+2}:{f+4*t+3}], v{vWb} offset:{o+32*t+1280}")
            return out
        def mf(s):
            out = []
            for hs in range(2):
                f = WF[s % 3] + 20*hs; ks = 2*s + hs
                for t in range(5):
                    C = "0" if ks == 0 else f"v[{ACC+4*t}:{ACC+4*t+3}]"
                    out.append(f"v_mfma_f32_16x16x32_bf16 v[{ACC+4*t}:{ACC+4*t+3}], v[{f+4*t}:{f+4*t+3}], v[{OF+4*ks}:{OF+4*ks+3}], {C}")
            return out
        def bar(n):
            self.signal(CNTA); self.poll(CNTA, 4*n, prio=0)
        self.tr_base(vWb, 160)
        a(f"""
v_add_u32 v{vWb}, {R}, v{vWb}
s_lshl_b32 s{sT+1}, s{sU}, 2
v_add_u32 v23, s{sT+1}, v{vMISC}
v_add_u32 v24, s{sT+1}, v{vSIG}
s_mul_i32 s{sT+1}, s{sU}, 5120
s_add_u32 s{sT+1}, s{sT+1}, {ACCAREA}
v_add_u32 v25, s{sT+1}, v{vLin}
""")
        self.flag_store(WS_FA, sU)
        self.signal(BWOL)
        self.stamp(8)
        if self.stop == "oab": return
        a("s_setprio 0")
        bar(1)
        for s in range(3):
            for l in reads(s): a(l)
        bar(2)
        issue(3); issue(4); issue(5)
        a("s_setprio 2")
        self.flag_poll(WS_FA, 252)
        a("s_setprio 0")
        self.stamp(9)
        for ks in range(20):
            if ks and ks % 4 == 0: a(f"s_add_u32 s{sT+8}, s{sT+8}, 4096")
            a(f"buffer_load_dwordx4 v[{OF+4*ks}:{OF+4*ks+3}], v{vLin}, s[{sWS}:{sWS+3}], s{sT+8} offen offset:{(ks%4)*1024} sc1")
        bar(3)
        self.poll(PAIR, 1, prio=0, vaddr=23, sleep=2)
        if self.stamps == 5: self.stamp(1)
        for s in range(3):
            a(f"s_waitcnt vmcnt({18-2*s})")
            m = mf(s); r = reads(s+3)
            for i in range(10):
                a(m[i]); a(r[2*i]); a(r[2*i+1])
        if self.stamps == 5: self.stamp(2)
        bar(4)
        issue(6); issue(7); issue(8)
        for s in range(3, 6):
            a(f"s_waitcnt vmcnt({9 + 18-2*s})")
            for l in mf(s): a(l)
        if self.stamps == 5: self.stamp(3)
        a("s_waitcnt vmcnt(0)"); bar(5)
        if self.stamps == 5: self.stamp(4)
        for l in reads(6): a(l)
        bar(6)
        issue(9)
        for s in (7, 8):
            for l in reads(s): a(l)
        for l in mf(6): a(l)
        a("s_waitcnt lgkmcnt(0)")
        for l in mf(7): a(l)
        if self.stamps == 5: self.stamp(5)
        a("s_waitcnt vmcnt(0)"); bar(7)
        if self.stamps == 5: self.stamp(6)
        for l in reads(9): a(l)
        for l in mf(8): a(l)
        a("s_waitcnt lgkmcnt(0)")
        for l in mf(9): a(l)
        for t in range(5): a(f"ds_write_b128 v25, v[{ACC+4*t}:{ACC+4*t+3}] offset:{1024*t}")
        a(f"ds_add_u32 v24, v{vONE} offset:{ACCA}")
        self.stamp(10)
```

```python
import sys
from gen import *
G = Gen

HEADER = open("gated_mix__sliding_local_dilated__grouped_kv_mqa__prompt.s.ref").read().split("; @launch")[0]

def dump_lds(g, lds_off, nbytes, ws_off, waves, first_wave=0):
    a = g.a
    a(f"""
v_lshlrev_b32 v20, 4, v{vL}
s_sub_u32 s{sT}, s{sW}, {first_wave}
s_lshl_b32 s{sT}, s{sT}, 10
v_add_u32 v20, s{sT}, v20
s_mul_i32 s{sT+1}, s2, {nbytes}
s_add_u32 s{sT+1}, s{sT+1}, {ws_off}
""")
    n = -(-nbytes // (1024*waves))
    for i in range(n):
        a(f"""
v_add_u32 v21, {lds_off + i*1024*waves}, v20
v_add_u32 v22, {i*1024*waves}, v20
v_cmp_gt_u32 vcc, {nbytes}, v22
s_and_saveexec_b64 s[{sT+2}:{sT+3}], vcc
ds_read_b128 v[24:27], v21
s_waitcnt lgkmcnt(0)
buffer_store_dwordx4 v[24:27], v22, s[{sWS}:{sWS+3}], s{sT+1} offen
s_mov_b64 exec, -1
s_waitcnt vmcnt(0)
""")

def build(stamps=False, stop=None):
    g = G(stamps=stamps, stop=stop)
    a = g.a
    g.prologue()
    g.g_pre()
    a("s_branch L_gmain" if stop != "pre" else "s_branch L_fin")
    g.m_pre()
    if stop == "pre":
        dump_lds(g, QBUF, 10240, WS_DUMP, 4)
        dump_lds(g, MISC, 1024, WS_DUMP + 0x400000, 4)
    else:
        g.m_main()
        a.label("L_gmain")
        g.g_main()
    a.label("L_fin")
    if stamps:
        g.stamp(11)
        a(f"s_lshl_b32 s{sT}, s2, 3\ns_add_u32 s{sT}, s{sT}, s{sW}\ns_lshl_b32 s{sT}, s{sT}, 6\ns_add_u32 s{sT}, s{sT}, {WS_DBG}\nv_mov_b32 v4, 0")
        for q in range(3):
            for i in range(4): a(f"v_mov_b32 v{8+i}, s{sST+4*q+i}")
            a(f"s_mov_b64 exec, 1\nbuffer_store_dwordx4 v[8:11], v4, s[{sWS}:{sWS+3}], s{sT} offen offset:{16*q}\ns_mov_b64 exec, -1\ns_waitcnt vmcnt(0)")
    a.label("L_end")
    a("s_endpgm")
    a.ins += g.ool
    a.label("L_code_end")
    body = a.finalize()
    return HEADER + f"""; @launch grid=(256,1,1) block=(512,1,1) lds={LDS_SIZE}
.amdgcn_target "amdgcn-amd-amdhsa--gfx950"
.text
.globl {KNAME}
.p2align 8
.type {KNAME},@function
{KNAME}:
{body}
.section .rodata,"a"
.p2align 6
.amdhsa_kernel {KNAME}
  .amdhsa_next_free_vgpr 256
  .amdhsa_next_free_sgpr 102
  .amdhsa_accum_offset 256
  .amdhsa_group_segment_fixed_size 0
  .amdhsa_kernarg_size 96
  .amdhsa_user_sgpr_count 2
  .amdhsa_user_sgpr_kernarg_segment_ptr 1
  .amdhsa_system_sgpr_workgroup_id_x 1
.end_amdhsa_kernel
"""
if __name__ == "__main__":
    import argparse
    ap = argparse.ArgumentParser()
    ap.add_argument("--stamps", type=int, default=0)
    ap.add_argument("--stop", default=None)
    ap.add_argument("-o", default="k.s")
    args = ap.parse_args()
    open(args.o, "w").write(build(args.stamps, args.stop))
    print("wrote", args.o)
```

```python
import sys
from gen import *
G = Gen

HEADER = open("gated_mix__sliding_local_dilated__grouped_kv_mqa__prompt.s.ref").read().split("; @launch")[0]

def dump_lds(g, lds_off, nbytes, ws_off, waves, first_wave=0):
    a = g.a
    a(f"""
v_lshlrev_b32 v20, 4, v{vL}
s_sub_u32 s{sT}, s{sW}, {first_wave}
s_lshl_b32 s{sT}, s{sT}, 10
v_add_u32 v20, s{sT}, v20
s_mul_i32 s{sT+1}, s2, {nbytes}
s_add_u32 s{sT+1}, s{sT+1}, {ws_off}
""")
    n = -(-nbytes // (1024*waves))
    for i in range(n):
        a(f"""
v_add_u32 v21, {lds_off + i*1024*waves}, v20
v_add_u32 v22, {i*1024*waves}, v20
v_cmp_gt_u32 vcc, {nbytes}, v22
s_and_saveexec_b64 s[{sT+2}:{sT+3}], vcc
ds_read_b128 v[24:27], v21
s_waitcnt lgkmcnt(0)
buffer_store_dwordx4 v[24:27], v22, s[{sWS}:{sWS+3}], s{sT+1} offen
s_mov_b64 exec, -1
s_waitcnt vmcnt(0)
""")

def build(stamps=False, stop=None):
    g = G(stamps=stamps, stop=stop)
    a = g.a
    g.prologue()
    g.g_pre()
    a("s_branch L_gmain" if stop != "pre" else "s_branch L_fin")
    g.m_pre()
    if stop == "pre":
        dump_lds(g, QBUF, 10240, WS_DUMP, 4)
        dump_lds(g, MISC, 1024, WS_DUMP + 0x400000, 4)
    else:
        g.m_main()
        a.label("L_gmain")
        g.g_main()
    a.label("L_fin")
    if stamps:
        g.stamp(11)
        a(f"s_lshl_b32 s{sT}, s2, 3\ns_add_u32 s{sT}, s{sT}, s{sW}\ns_lshl_b32 s{sT}, s{sT}, 6\ns_add_u32 s{sT}, s{sT}, {WS_DBG}\nv_mov_b32 v4, 0")
        for q in range(3):
            for i in range(4): a(f"v_mov_b32 v{8+i}, s{sST+4*q+i}")
            a(f"s_mov_b64 exec, 1\nbuffer_store_dwordx4 v[8:11], v4, s[{sWS}:{sWS+3}], s{sT} offen offset:{16*q}\ns_mov_b64 exec, -1\ns_waitcnt vmcnt(0)")
    if stamps == 6:
        a(f"""
s_and_b32 s{sT}, s{sW}, 3
s_cmp_lg_u32 s{sT}, 0
s_cbranch_scc1 L_end
s_mov_b32 s40, s36
s_mov_b32 s41, s37
s_mov_b32 s42, 256
s_mov_b32 s43, 0x20000
s_lshl_b32 s{sT}, s{sW}, 3
s_not_b32 s{sST}, s{sST}
v_mov_b32 v4, 0
s_mov_b64 exec, 1
""")
        for k, i in enumerate([0, 1, 3, 4, 5, 6, 7, 11]):
            a(f"v_mov_b32 v8, s{sST+i}\nbuffer_atomic_umax v8, v4, s[40:43], s{sT} offen offset:{4*k} sc1\ns_waitcnt vmcnt(0)")
    a.label("L_end")
    a("s_endpgm")
    a.ins += g.ool
    a.label("L_code_end")
    body = a.finalize()
    return HEADER + f"""; @launch grid=(256,1,1) block=(512,1,1) lds={LDS_SIZE}
.amdgcn_target "amdgcn-amd-amdhsa--gfx950"
.text
.globl {KNAME}
.p2align 8
.type {KNAME},@function
{KNAME}:
{body}
.section .rodata,"a"
.p2align 6
.amdhsa_kernel {KNAME}
  .amdhsa_next_free_vgpr 256
  .amdhsa_next_free_sgpr 102
  .amdhsa_accum_offset 256
  .amdhsa_group_segment_fixed_size 0
  .amdhsa_kernarg_size 96
  .amdhsa_user_sgpr_count 2
  .amdhsa_user_sgpr_kernarg_segment_ptr 1
  .amdhsa_system_sgpr_workgroup_id_x 1
.end_amdhsa_kernel
"""
if __name__ == "__main__":
    import argparse
    ap = argparse.ArgumentParser()
    ap.add_argument("--stamps", type=int, default=0)
    ap.add_argument("--stop", default=None)
    ap.add_argument("-o", default="k.s")
    args = ap.parse_args()
    open(args.o, "w").write(build(args.stamps, args.stop))
    print("wrote", args.o)
```

```python
from asmlib import *
import struct, math

KNAME = "gated_mix__sliding_local_dilated__grouped_kv_mqa__prompt_kernel"
def f32bits(x): return struct.unpack("<I", struct.pack("<f", x))[0]
XM = 0; XH = 81920; R = 102400; MISC = R + 60416; LDS_SIZE = 163840
P0W = XH; GATE = R + 56320; QBUF = R + 46080
SLOT = [R+15360, R+25600, R+35840, R+46080, R+5120, XH, XH+10240, R+15360, R+25600, R+35840]
RING = [R, R+15360, R+30720]
QA = R; KA = R + 10240; VA = R + 23040
RED = R + 35840
ARING = [R, R+10240, R+20480]
ACCAREA = 81920
FLW = 0; FREE = 64; KVR = 40; P0D = 116; KMAX = 120; GDONE = 124; ONES = 128; CNTG = 144
SCR = R + 58368; GBUF = 256; SAMEX = 112; FAS = 592; CNTA = 512; BWOL = 560; LA1 = 564; LA2 = 568; PAIR = 576; ACCA = 608; TAGO = 632
WS_GRAN = 0x1000; WS_K = 0x40000; WS_V = 0x60000; WS_FA = 0x80000; WS_FB = 0xA0000; WS_OAB = 0x100000
WS_DBG = 0x700000; WS_DUMP = 0x800000; WS_SIZE = 0x4000000
CSC = f32bits(20 ** -0.5 * math.log2(math.e))
LOG2E = f32bits(math.log2(math.e))
THR = f32bits(2.0 ** -64)
sW = 3; sRB = 4; sHG = 5; sTAG = 6; sCNT = 7; sK = 8; sV = 9; sKA = 12; sKB = 13; sTAU = 14; sU = 15; sSX = 39
sX = 40; sWQKV = 44; sAWO = 48; sWQ = 52; sWKV = 56; sBWO = 60; sGATE = 64; sOUT = 68; sWS = 72
sT = 76; sST = 88
vL = 1; vMISC = 2; vONE = 3; vSIG = 19; vT = 4
vW5 = 10; vXO = 15; vLin = 17
S_ = [20, 36, 52, 68]; O_ = [84, 100, 116, 132]; Q_ = [148, 154, 160, 166]; K_ = [172, 178, 184, 190]; V_ = [196, 204, 212, 220]
vIDX = 228; vKa = 229; vKb = 230; vVa = 231; vG = 232; vE = 234

import os
EXP = os.environ.get('EXP', 'late7')
GPOLL_AFTER = int(os.environ.get('GPA', '5'))
PRE0 = 12
TOUCH = eval(os.environ.get('TOUCH', '[]'))
DSL = eval(os.environ.get('DSL', '[(3,7)]*4'))
GP = int(os.environ.get('GP', '0'))
gWO = 20; gXF = 24; gHF = 226; gWm = 28; gFL = 29; gTC = 30; ACCG = 32; GF = [104, 148]
lQa = 192; lKa = 193; lVt = 195; lVo = 197; lMK = 208; lPA = 205; lPH = 224

class Gen:
    def __init__(self, stamps=0, stop=None):
        self.a = Asm(); self.stamps = stamps; self.stop = stop; self.ool = []
    def stamp(self, i):
        if self.stamps: self.a(f"s_memrealtime s[100:101]\ns_waitcnt lgkmcnt(0)\ns_mov_b32 s{sST+i}, s100")
    def cstamp(self, i):
        if self.stamps: self.a(f"s_memtime s[100:101]\ns_waitcnt lgkmcnt(0)\ns_mov_b32 s{sST+i}, s100")
    def srd(self, d, ptr, size):
        self.a(f"s_mov_b32 s{d}, s{ptr}\ns_mov_b32 s{d+1}, s{ptr+1}\ns_mov_b32 s{d+2}, {size}\ns_mov_b32 s{d+3}, 0x20000")
    def poll(self, off, val, prio=None, tmp=vT, st=sT, vaddr=vMISC, sleep=0):
        a = self.a; L = a.uid("Lp"); D = a.uid("Lpd")
        a(f"s_mov_b32 s{sCNT}, 0x20000")
        a.label(L)
        a(f"ds_read_b32 v{tmp}, v{vaddr} offset:{off}\ns_waitcnt lgkmcnt(0)")
        if prio is not None: a("s_setprio 2")
        a(f"v_readfirstlane_b32 s{st}, v{tmp}")
        if prio is not None: a(f"s_setprio {prio}")
        a(f"s_cmp_ge_u32 s{st}, {val}\ns_cbranch_scc1 {D}")
        if sleep: a(f"s_sleep {sleep}")
        a(f"s_sub_u32 s{sCNT}, s{sCNT}, 1\ns_cmp_lg_u32 s{sCNT}, 0\ns_cbranch_scc1 {L}")
        a.label(D)
    def check_or_poll(self, vflag, off, val, prio=None):
        a = self.a; D = a.uid("Lck")
        if prio is not None: a("s_setprio 2")
        a(f"v_readfirstlane_b32 s{sT}, v{vflag}")
        if prio is not None: a(f"s_setprio {prio}")
        a(f"s_cmp_ge_u32 s{sT}, {val}\ns_cbranch_scc1 {D}")
        self.poll(off, val, prio=prio, tmp=vflag)
        a.label(D)
    def signal(self, off, vaddr=None):
        if vaddr is None:
            self.a(f"ds_add_u32 v{vSIG}, v{vONE} offset:{off}")
        else:
            self.a(f"s_mov_b64 exec, 1\nds_add_u32 v{vaddr}, v{vONE} offset:{off}\ns_mov_b64 exec, -1")
    def dup_stores(self, n0):
        a = self.a
        blk = a.ins[n0:]; del a.ins[n0:]
        X = a.uid("Lxs"); B = a.uid("Lxb")
        a(f"s_cmp_eq_u32 s{sSX}, 0\ns_cbranch_scc1 {X}")
        for i in blk: a(i.text.replace(" sc1", ""))
        a.label(B)
        self.ool += [Ins(X + ":")] + blk + [Ins(f"s_branch {B}")]
    def capture(self, fn):
        n = len(self.a.ins); fn(); out = self.a.ins[n:]; del self.a.ins[n:]; return out
    def check_fast(self, vflag, off, val, prio=None, vaddr=vMISC):
        a = self.a; S = a.uid("Lslow"); B = a.uid("Lback")
        if prio is not None: a("s_setprio 2")
        a(f"v_readfirstlane_b32 s{sT}, v{vflag}")
        if prio is not None: a(f"s_setprio {prio}")
        a(f"s_cmp_lt_u32 s{sT}, {val}\ns_cbranch_scc1 {S}")
        a.label(B)
        def slow():
            a.label(S); self.poll(off, val, prio=prio, tmp=vflag, vaddr=vaddr); a(f"s_branch {B}")
        self.ool += self.capture(slow)
    def xfrag_lane(self, d):
        self.a(f"""
v_and_b32 v{vT}, 15, v{vL}
v_lshrrev_b32 v{vT+1}, 1, v{vT}
v_lshrrev_b32 v{vT+2}, 4, v{vL}
v_xor_b32 v{vT+1}, v{vT+1}, v{vT+2}
v_lshlrev_b32 v{vT+1}, 4, v{vT+1}
v_lshl_add_u32 v{d}, v{vT}, 7, v{vT+1}
""")
    def tr_base(self, d, stride, swap=True):
        a = self.a
        if swap:
            a(f"v_lshrrev_b32 v{vT}, 5, v{vL}\nv_bfe_u32 v{vT+1}, v{vL}, 2, 3\nv_lshl_add_u32 v{vT}, v{vT}, 4, v{vT+1}")
        else:
            a(f"v_lshrrev_b32 v{vT}, 4, v{vL}\nv_bfe_u32 v{vT+1}, v{vL}, 2, 2\nv_lshl_add_u32 v{vT}, v{vT}, 3, v{vT+1}")
        a(f"v_mul_u32_u24 v{vT}, {stride}, v{vT}\nv_and_b32 v{vT+1}, 3, v{vL}\nv_lshl_add_u32 v{d}, v{vT+1}, 3, v{vT}")
    def swap23(self, d, s, t):
        self.a(f"""
v_and_b32 v{d}, 0x13, v{s}
v_and_b32 v{t}, 4, v{s}
v_lshl_or_b32 v{d}, v{t}, 1, v{d}
v_bfe_u32 v{t}, v{s}, 3, 1
v_lshl_or_b32 v{d}, v{t}, 2, v{d}
""")
    def dma(self, voff, srd, soff, m0expr):
        self.a(m0expr)
        self.a(f"buffer_load_dwordx4 v{voff}, s[{srd}:{srd+3}], {soff} offen lds")
    def issue_w160(self, srd, s_koff, lds_base, p0=0, p1=10):
        a = self.a
        for p in range(p0, p1):
            if p == 5 or (p == p0 and p0 > 5): a(f"s_add_u32 s{sT+3}, s{s_koff}, 40960")
            so = s_koff if p < 5 else sT + 3
            self.dma(vW5 + p % 5, srd, f"s{so}", f"s_mov_b32 m0, {lds_base + 1024*p}")

    def w160(self):
        a = self.a
        a(f"s_mul_i32 s{sT+7}, s{sHG}, 160")
        for p in range(5):
            a(f"""
v_add_u32 v{vT}, {64*p}, v{vL}
v_mul_u32_u24 v{vT+1}, 6554, v{vT}
v_lshrrev_b32 v{vT+1}, 16, v{vT+1}
v_mul_u32_u24 v{vT+2}, 10, v{vT+1}
v_sub_u32 v{vT}, v{vT}, v{vT+2}
""")
            self.swap23(vT+2, vT+1, vT+3)
            a(f"v_mul_u32_u24 v{vT+2}, 1280, v{vT+2}\nv_lshl_add_u32 v{vT}, v{vT}, 4, v{vT+2}\nv_add_u32 v{vW5+p}, s{sT+7}, v{vT}")

    def prologue(self):
        a = self.a
        a(f"""
s_cmp_ge_u32 s2, 256
s_cbranch_scc1 L_end
s_load_dwordx16 s[16:31], s[0:1], 0
s_load_dwordx8 s[32:39], s[0:1], 64
s_getpc_b64 s[8:9]
L_pc0:
""")
        if self.stamps: a("s_memrealtime s[100:101]")
        a(f"""
v_lshrrev_b32 v{vT}, 6, v0
v_and_b32 v{vL}, 63, v0
s_lshr_b32 s11, s2, 3
v_readfirstlane_b32 s{sW}, v{vT}
s_lshl_b32 s{sT}, s11, 7
s_cmp_lg_u32 s{sW}, 0
s_cbranch_scc1 L_nopf
s_mov_b32 exec_hi, 0
v_lshlrev_b32 v{vT}, 12, v{vL}
v_add_u32 v{vT}, s{sT}, v{vT}
v_min_u32 v{vT}, L_code_end-L_pc0, v{vT}
v_mov_b32 v{vT+1}, s9
v_add_co_u32 v{vT}, vcc, s8, v{vT}
v_addc_co_u32 v{vT+1}, vcc, 0, v{vT+1}, vcc
global_load_dword v0, v[{vT}:{vT+1}], off
s_mov_b64 exec, -1
L_nopf:
s_and_b32 s10, s2, 7
s_and_b32 s{sRB}, s11, 3
s_lshl2_add_u32 s{sRB}, s10, s{sRB}
s_lshr_b32 s{sHG}, s11, 2
s_and_b32 s{sKA}, s{sRB}, 1
s_mul_i32 s{sKA}, s{sKA}, 5
s_and_b32 s{sKB}, s{sRB}, 3
s_lshl_b32 s{sKB}, s{sKB}, 2
s_lshr_b32 s{sKB}, 0x8350, s{sKB}
s_and_b32 s{sKB}, s{sKB}, 15
s_lshr_b32 s{sTAU}, s{sHG}, 1
v_mov_b32 v{vMISC}, {MISC}
v_lshlrev_b32 v{vLin}, 4, v{vL}
v_lshrrev_b32 v{vT}, 3, v{vL}
v_mul_u32_u24 v{vT}, 1280, v{vT}
v_lshrrev_b32 v{vT+1}, 4, v{vL}
v_xor_b32 v{vT+1}, v{vT+1}, v{vL}
v_and_b32 v{vT+1}, 7, v{vT+1}
v_lshl_add_u32 v{vXO}, v{vT+1}, 4, v{vT}
v_xor_b32 v{vXO+1}, 64, v{vXO}
v_add_u32 v{vXO+1}, 10240, v{vXO+1}
s_lshl2_add_u32 s{sT+8}, s{sRB}, s{sTAU}
s_mul_i32 s{sT+9}, s{sT+8}, 20480
s_lshl_b32 s{sT+10}, s{sTAU}, 11
s_lshr_b32 s{sT}, s{sW}, 1
s_add_u32 s{sT}, s{sT}, 8                  ; kb = 8 + (w>>1)
s_lshl_b32 s{sT+1}, s{sT}, 7
s_add_u32 s{sT+1}, s{sT+1}, s{sT+9}        ; soffset (x)
s_lshl_b32 s{sT+2}, s{sT}, 13
s_add_u32 s{sT+2}, s{sT+2}, s{sT+10}
s_and_b32 s{sT+3}, s{sW}, 1
s_lshl_b32 s{sT+4}, s{sT+3}, 10
s_add_u32 s{sT+2}, s{sT+2}, s{sT+4}        ; m0 (x)
s_cmp_eq_u32 s{sT+3}, 1
s_cselect_b64 vcc, -1, 0
v_cndmask_b32 v18, v{vXO}, v{vXO+1}, vcc
s_xor_b32 s{sT+4}, s{sT+4}, 1024
s_add_u32 s{sT+5}, s{sT+4}, {GATE}
s_cmp_eq_u32 s{sW}, 4
s_cselect_b32 s{sT+4}, 24576, s{sT+4}
s_cselect_b32 s{sT+5}, {P0W+24576}, s{sT+5}
s_cmp_lt_u32 s{sW}, 4
s_cselect_b32 s{sT+1}, s{sT+1}, s{sT+4}
s_cselect_b32 s{sT+2}, s{sT+2}, s{sT+5}
s_cselect_b64 vcc, -1, 0
v_cndmask_b32 v18, v{vLin}, v18, vcc
s_lshl_b32 s{sT+4}, s{sW}, 7
s_add_u32 s{sT+4}, s{sT+4}, s{sT+9}
s_lshl_b32 s{sT+5}, s{sW}, 13
s_add_u32 s{sT+5}, s{sT+5}, s{sT+10}
s_lshl_b32 s{sT+6}, s{sW}, 10
""")
        a("s_waitcnt lgkmcnt(0)")
        if self.stamps: a(f"s_mov_b32 s{sST}, s100")
        if self.stamps == 4: self.stamp(5)
        self.srd(sX, 16, 2621440)
        a(f"""
s_mov_b32 m0, s{sT+5}
s_bitcmp1_b32 s{sHG}, 0
buffer_load_dwordx4 v{vXO}, s[{sX}:{sX+3}], s{sT+4} offen lds
s_cselect_b32 s{sWKV}, s28, s26
s_cselect_b32 s{sWKV+1}, s29, s27
s_add_u32 m0, s{sT+5}, 1024
s_mov_b32 s{sWKV+2}, 25600
buffer_load_dwordx4 v{vXO+1}, s[{sX}:{sX+3}], s{sT+4} offen lds
s_mov_b32 s{sWKV+3}, 0x20000
""")
        for i in range(3):
            a(f"s_add_u32 m0, s{sT+6}, {P0W}")
            a(f"s_nop 0\nbuffer_load_dwordx4 v{vLin}, s[{sWKV}:{sWKV+3}], s{sT+6} offen lds")
            if i < 2: a(f"s_add_u32 s{sT+6}, s{sT+6}, 8192")
        a(f"""
s_cmp_eq_u32 s{sW}, 4
s_cselect_b32 s{sGATE}, s{sWKV}, s32
s_cselect_b32 s{sGATE+1}, s{sWKV+1}, s33
s_cselect_b32 s{sGATE+2}, s{sWKV+2}, 1280
s_cmp_lt_u32 s{sW}, 4
s_cselect_b32 s{sGATE}, s16, s{sGATE}
s_cselect_b32 s{sGATE+1}, s17, s{sGATE+1}
s_cselect_b32 s{sGATE+2}, s{sX+2}, s{sGATE+2}
s_mov_b32 s{sGATE+3}, 0x20000
s_mov_b32 m0, s{sT+2}
""")
        self.srd(sWS, 38, WS_SIZE)
        a(f"""
buffer_load_dwordx4 v18, s[{sGATE}:{sGATE+3}], s{sT+1} offen lds
""")
        if self.stamps == 4: self.stamp(6)
        a(f"""
v_lshlrev_b32 v{vSIG}, 2, v{vL}
v_add_u32 v{vSIG}, {SCR}, v{vSIG}
v_cmp_eq_u32 vcc, 0, v{vL}
s_cmp_lt_u32 s{sW}, 4
v_cndmask_b32 v{vSIG}, v{vSIG}, v{vMISC}, vcc
v_cndmask_b32 v{vONE}, 0, 1, vcc
s_cbranch_scc1 L_M
""")

    def kv_first(self):
        for l in self.loadK(0) + self.loadV(0) + self.loadK(1) + self.loadV(1) + self.loadK(2) + self.loadV(2) + self.loadK(3): self.a(l)
    def m_setup2(self):
        a = self.a; ACC = 232
        a(f"""
v_and_b32 v{vT}, 31, v{vL}
v_lshrrev_b32 v{vT+1}, 5, v{vL}
v_mul_u32_u24 v{vKb}, 48, v{vT}
v_lshl_add_u32 v{vKa}, v{vT+1}, 4, v{vKb}
v_lshl_add_u32 v{vKb}, v{vT+1}, 3, v{vKb}
v_mul_u32_u24 v{vT+2}, 336, v{vT+1}
v_lshl_add_u32 v{vVa}, v{vT}, 4, v{vT+2}
v_mov_b32 v{vT+3}, 0x7fffffff
v_cmp_lt_u32 vcc, 20, v{vT}
v_cndmask_b32 v{vVa}, v{vVa}, v{vT+3}, vcc
s_and_b32 s10, s{sW}, 1
s_mul_i32 s{sK}, s10, 49152
s_add_u32 s{sK}, s{sK}, {WS_K}
s_mul_i32 s{sV}, s10, 43008
s_add_u32 s{sV}, s{sV}, {WS_V}
v_mul_u32_u24 v{vT+2}, 160, v{vT}
v_lshl_add_u32 v{vT+2}, v{vT+1}, 4, v{vT+2}
s_mul_i32 s{sT}, s{sW}, 40
s_xor_b32 s{sT+1}, s{sW}, 1
s_mul_i32 s{sT+1}, s{sT+1}, 40
s_add_u32 s{sT}, s{sT}, {QBUF}
s_add_u32 s{sT+1}, s{sT+1}, {QBUF}
v_add_u32 v10, s{sT}, v{vT+2}
v_add_u32 v11, s{sT+1}, v{vT+2}
v_lshl_add_u32 v12, v{vT}, 2, v{vMISC}
v_mov_b32 v{vIDX}, 0xdddddddd
v_and_b32 v{vT}, 15, v{vL}
v_lshrrev_b32 v{vT+1}, 4, v{vL}
s_lshl_b32 s{sT+1}, s{sW}, 4
v_add_u32 v{vT}, s{sT+1}, v{vT}
v_mul_u32_u24 v13, 160, v{vT}
v_lshl_add_u32 v13, v{vT+1}, 3, v13
v_add_u32 v13, {QBUF}, v13
v_lshl_add_u32 v14, v{vT}, 2, v{vMISC}
""")
        for i in range(12): a(f"v_mov_b64 v[{ACC+2*i}:{ACC+2*i+1}], 0")
        for i in range(84, 148, 2): a(f"v_mov_b64 v[{i}:{i+1}], 0")
        for i in range(4): a(f"v_mov_b64 v[{V_[3]+2*i}:{V_[3]+2*i+1}], 0")


    def kb_of(self, d, i):
        self.a(f"s_add_u32 s{d}, s{sKB}, {i}\ns_cmp_ge_u32 s{d}, 10\ns_cselect_b32 s{sT+1}, 10, 0\ns_sub_u32 s{d}, s{d}, s{sT+1}")
    def m_pre(self):
        a = self.a
        vXB = 76; vWa = 77; vWb = 78; vGB = 79; vFL = 80; ACC = 232
        a.label("L_M")
        a(f"""
s_lshl2_add_u32 s{sT+8}, s{sRB}, s{sW}
s_mul_i32 s{sT+8}, s{sT+8}, 20480
s_lshl_b32 s{sT+9}, s{sW}, 11
s_cmp_lg_u32 s{sW}, 0
s_cbranch_scc1 L_m_noinit
v_mov_b64 v[{vT}:{vT+1}], 0
v_mov_b64 v[{vT+2}:{vT+3}], 0
v_add_u32 v{vT+4}, v{vLin}, v{vMISC}
ds_write_b128 v{vT+4}, v[{vT}:{vT+3}]
v_mov_b32 v{vT}, 0x3f803f80
v_mov_b32 v{vT+1}, 0x3f803f80
ds_write_b64 v{vMISC}, v[{vT}:{vT+1}] offset:{ONES}
L_m_noinit:
""")
        def xissue(i):
            self.kb_of(sT+5, i)
            a(f"s_lshl_b32 s{sT+6}, s{sT+5}, 7\ns_add_u32 s{sT+6}, s{sT+6}, s{sT+8}\ns_lshl_b32 s{sT+7}, s{sT+5}, 13\ns_add_u32 s{sT+7}, s{sT+7}, s{sT+9}")
            for e in range(2):
                self.dma(vXO+e, sX, f"s{sT+6}", f"s_add_u32 m0, s{sT+7}, {XM + e*1024}")
        self.xfrag_lane(vXB)
        a(f"v_add_u32 v{vXB}, s{sT+9}, v{vXB}")
        self.tr_base(vWa, 160)
        a(f"""
v_add_u32 v{vWa}, {XH}, v{vWa}
v_and_b32 v{vT}, 48, v{vL}
v_add_u32 v{vGB}, {GATE}, v{vT}
""")
        AD = 148
        def setup():
            self.m_setup2()
            a(f"v_add_u32 v{vWb}, {R+35840-XH}, v{vWa}")
            for i in range(10):
                a(f"s_add_u32 s{sT+2}, s{sKB}, {i}\ns_cmp_ge_u32 s{sT+2}, 10\ns_cselect_b32 s{sT+3}, 10, 0\ns_sub_u32 s{sT+2}, s{sT+2}, s{sT+3}")
                a(f"""
s_lshl_b32 s{sT+3}, s{sT+2}, 13
s_lshl_b32 s{sT+2}, s{sT+2}, 7
v_add_u32 v{AD+3*i}, s{sT+3}, v{vXB}
v_add_u32 v{AD+3*i+2}, s{sT+2}, v{vGB}
v_xor_b32 v{AD+3*i+1}, 64, v{AD+3*i}
""")
        setup()
        a(f"s_cmp_eq_u32 s{sW}, s{sTAU}\ns_cbranch_scc1 L_m_nox1")
        for i in range(5): xissue(i)
        if self.stamps == 4: self.stamp(7)
        a("s_waitcnt vmcnt(10)\ns_branch L_m_nox2")
        a.label("L_m_nox1")
        a("s_waitcnt vmcnt(0)")
        a.label("L_m_nox2")
        a("s_waitcnt lgkmcnt(0)\ns_barrier")
        self.stamp(1)
        FB = [20, 48]
        def reads(j):
            i = j >> 1; hs = j & 1; f = FB[hs]; sl = SLOT[i]
            wb, woff = (vWb, sl - (R+35840)) if sl >= R+35840 else (vWa, sl - XH)
            g = [[f"ds_read_b128 v[{f}:{f+3}], v{AD+3*i+hs}", f"ds_read_b128 v[{f+24}:{f+27}], v{AD+3*i+2} offset:{hs*64}"]]
            for t in range(5):
                ff = f + 4 + 4*t
                g.append([f"ds_read_b64_tr_b16 v[{ff}:{ff+1}], v{wb} offset:{woff + hs*5120 + 32*t}",
                          f"ds_read_b64_tr_b16 v[{ff+2}:{ff+3}], v{wb} offset:{woff + hs*5120 + 32*t + 1280}"])
            return g
        def mfma(j, n):
            f = FB[j & 1]; t = (n + 5) % 6
            return f"v_mfma_f32_16x16x32_bf16 v[{ACC+4*t}:{ACC+4*t+3}], v[{f+4+4*t}:{f+7+4*t}], v[{f}:{f+3}], v[{ACC+4*t}:{ACC+4*t+3}]"
        need_free = {0, 1, 2, 3, 4, 5, 6}
        if self.stamps == 4: self.stamp(8)
        self.poll(FLW + 0, 1)
        if self.stamps == 4: self.stamp(9); self.cstamp(4)
        a("s_waitcnt vmcnt(8)")
        for g in reads(0):
            for l in g: a(l)
        a(f"ds_read_b32 v{vFL}, v{vMISC} offset:{FLW + 4}")
        for j in range(20):
            i = j >> 1
            nxt = reads(j+1) if j < 19 else None
            for n in range(6):
                a(f"s_waitcnt lgkmcnt({10 if nxt else 10 - 2*n})")
                a(mfma(j, n))
                if n == 0 and (j & 1) and j < 19:
                    self.check_fast(vFL, FLW + 4*(i+1), 1)
                    if i + 1 < 5: a(f"s_waitcnt vmcnt({8 - 2*(i+1)})")
                if n == 0 and j == 19:
                    a(f"v_readfirstlane_b32 s11, v{vFL}\ns_cmp_eq_u32 s11, 0\ns_cbranch_scc1 L_m_nokv1")
                    self.kv_first()
                    a.label("L_m_nokv1")
                if nxt:
                    for l in nxt[n]: a(l)
                if self.stamps == 7 and n == 5 and j in (1, 5, 9, 13, 17): self.stamp(5 + j // 4)
                if n == 5 and (j & 1) and j < 19:
                    if i in need_free: self.signal(FREE + 4*i)
                    a(f"ds_read_b32 v{vFL}, v{vMISC} offset:{FLW + 4*(i+2)}")
                    if i == 8: a(f"ds_read_b32 v{vFL+1}, v{vMISC} offset:{FREE+12}")
        self.check_fast(vFL+1, FREE + 12, 4)
        if self.stamps == 4: self.cstamp(10)
        self.stamp(2)
        a(f"s_mov_b32 s{sT}, {CSC}")
        for b in range(4): a(f"v_mov_b64 v[{Q_[b]+4}:{Q_[b]+5}], 0")
        g = ACC + 20
        a(f"v_mul_f32 v{g}, {0x80000000 | LOG2E}, v{g}\nv_exp_f32 v{g}, v{g}")
        for t in range(5):
            c = ACC + 4*t
            for r in range(4): a(f"v_mul_f32 v{c+r}, s{sT}, v{c+r}")
            a(f"v_cvt_pk_bf16_f32 v{c}, v{c}, v{c+1}\nv_cvt_pk_bf16_f32 v{c+1}, v{c+2}, v{c+3}")
            a(f"ds_write_b64 v13, v[{c}:{c+1}] offset:{32*t}")
        a(f"""
v_add_f32 v{g}, 1.0, v{g}
v_rcp_f32 v{g}, v{g}
s_mov_b64 exec, 0xffff
ds_write_b32 v14, v{g} offset:{GBUF}
s_mov_b64 exec, -1
s_waitcnt lgkmcnt(0)
s_barrier
""")
        self.stamp(3)

    def g_pre(self):
        a = self.a
        a.label("L_G")
        a(f"s_setprio 1\ns_sub_u32 s{sU}, s{sW}, 4\ns_cmp_eq_u32 s{sW}, 7\ns_cbranch_scc1 L_P0")
        self.srd(sWQ, 24, 819200)
        self.w160()
        a(f"""
s_add_u32 s{sT+4}, s{sKB}, s{sU}
s_cmp_ge_u32 s{sT+4}, 10
s_cselect_b32 s{sT+1}, 10, 0
s_sub_u32 s{sT+4}, s{sT+4}, s{sT+1}
s_mul_i32 s{sT+4}, s{sT+4}, 81920
s_mul_i32 s{sT+5}, s{sU}, 10240
s_add_u32 s{sT+3}, s{sT+4}, 40960
""")
        gs = self.capture(self.g_setup)
        cuts = [k for k in range(1, len(gs)) if gs[k].mn in ("v_add_u32", "v_mov_b64", "v_mul_u32_u24") and not gs[k-1].mn.startswith(("s_cmp", "v_cmp"))
                and not any(gs[q].mn.startswith("s_cselect") for q in range(k, min(k+3, len(gs))))]
        pos = [min(cuts, key=lambda c: abs(c - (p+1)*len(gs)//10)) for p in range(9)] + [len(gs)]
        k = 0
        for p in range(10):
            self.dma(vW5 + p % 5, sWQ, f"s{sT+4 if p < 5 else sT+3}", f"s_add_u32 m0, s{sT+5}, {R+15360+1024*p}")
            a.ins += gs[k:pos[p]]; k = pos[p]
        if self.stamps == 4: self.stamp(7)
        a("s_waitcnt vmcnt(10)\ns_barrier")
        self.stamp(1)
        def issue(i):
            self.kb_of(sT+4, i)
            a(f"s_mul_i32 s{sT+4}, s{sT+4}, 81920")
            self.issue_w160(sWQ, sT+4, SLOT[i])
        def landed(i, cnt):
            a(f"s_waitcnt vmcnt({cnt})"); self.signal(FLW + 4*i)
            if self.stamps == 7: self.stamp({0:5,3:6,7:7,9:8, 1:5,4:6,8:7, 2:5,5:6,6:7}[i])
        a(f"s_cmp_eq_u32 s{sW}, 5\ns_cbranch_scc1 L_ld5\ns_cmp_eq_u32 s{sW}, 6\ns_cbranch_scc1 L_ld6")
        landed(0, 0); issue(3); landed(3, 0)
        self.poll(FREE + 0, 4); issue(7)
        self.poll(FREE + 4*2, 4); issue(9)
        landed(7, 10); landed(9, 0)
        a("s_branch L_g_join")
        a.label("L_ld5")
        issue(4); landed(1, 10); landed(4, 0)
        self.poll(FREE + 4*1, 4); issue(8); landed(8, 0)
        a(f"s_lshl_b32 s{sT+6}, s{sRB}, 2\ns_max_u32 s{sT+6}, s{sT+6}, 1\ns_sub_u32 s{sT+6}, s{sT+6}, 1\ns_mul_i32 s{sT+6}, s{sT+6}, 20480")
        self.poll(FREE + 4*5, 4); self.poll(FREE + 4*6, 4)
        for kb in range(10):
            for e in range(2):
                self.dma(vXO+e, sX, f"s{sT+6}", f"s_mov_b32 m0, {XH + kb*2048 + e*1024}")
            if kb < 9: a(f"s_add_u32 s{sT+6}, s{sT+6}, 128")
        a("s_branch L_g_join")
        a.label("L_ld6")
        landed(2, 0)
        for rt in range(4):
            L = a.uid("Lxs")
            a(f"s_cmp_eq_u32 s{sTAU}, {rt}\ns_cbranch_scc1 {L}\ns_lshl_b32 s{sT+8}, s{sRB}, 2\ns_add_u32 s{sT+8}, s{sT+8}, {rt}\ns_mul_i32 s{sT+8}, s{sT+8}, 20480")
            for i in range(5, 10):
                self.kb_of(sT+5, i)
                a(f"s_lshl_b32 s{sT+6}, s{sT+5}, 7\ns_add_u32 s{sT+6}, s{sT+6}, s{sT+8}\ns_lshl_b32 s{sT+7}, s{sT+5}, 13")
                for e in range(2):
                    self.dma(vXO+e, sX, f"s{sT+6}", f"s_add_u32 m0, s{sT+7}, {XM + rt*2048 + e*1024}")
            a.label(L)
        self.poll(P0D, 1); issue(5); issue(6)
        landed(5, 10); landed(6, 0)
        a("s_branch L_g_join")
        a.label("L_P0")
        vEP = 249; vXF = 244; vWp = 248; T0 = 0;
        T0 = 240; T1 = 236
        a(f"v_mov_b32 v{vT+5}, 0\nbuffer_load_dword v{vEP}, v{vT+5}, s[{sWS}:{sWS+3}], 0 offen sc1")
        self.xfrag_lane(vXF)
        a(f"v_add_u32 v{vXF}, s{sT+10}, v{vXF}\nv_add_u32 v{vXF+2}, 40960, v{vXF}\nv_xor_b32 v{vXF+1}, 64, v{vXF}\nv_xor_b32 v{vXF+3}, 64, v{vXF+2}")
        self.tr_base(vWp, 40, swap=False)
        a(f"v_add_u32 v{vWp}, {P0W}, v{vWp}")
        a(f"s_lshl_b32 s{sT+8}, s{sT+8}, 4")
        if self.stamps == 4: self.stamp(7)
        a("s_waitcnt vmcnt(1)\ns_barrier")
        self.stamp(1)
        NB = 16
        def fr(ks): return 20 + 12 * (ks % NB)
        def reads(ks):
            f = fr(ks); kb = ks >> 1; hs = ks & 1
            xa = vXF + (2 if kb >= 5 else 0) + hs
            a(f"ds_read_b128 v[{f}:{f+3}], v{xa} offset:{(kb%5)*8192}")
            for t in range(2):
                o = ks*1280 + 32*t
                a(f"ds_read_b64_tr_b16 v[{f+4+4*t}:{f+5+4*t}], v{vWp} offset:{o}")
                a(f"ds_read_b64_tr_b16 v[{f+6+4*t}:{f+7+4*t}], v{vWp} offset:{o+160}")
        def loop(isV):
            AHEAD = 3
            for ks in range(AHEAD): reads(ks)
            for ks in range(20):
                if ks + AHEAD < 20:
                    a(f"s_waitcnt lgkmcnt({5*(AHEAD-1)})")
                else:
                    a(f"s_waitcnt lgkmcnt({5*(19-ks)})")
                    if ks == 19:
                        self.signal(P0D)
                        if self.stamps == 4: self.stamp(8)
                f = fr(ks)
                for t, T in ((0, T0), (1, T1)):
                    xf = f"v[{f}:{f+3}]"; wf = f"v[{f+4+4*t}:{f+7+4*t}]"
                    A, B = (xf, wf) if isV else (wf, xf)
                    C = "0" if ks == 0 else f"v[{T}:{T+3}]"
                    a(f"v_mfma_f32_16x16x32_bf16 v[{T}:{T+3}], {A}, {B}, {C}")
                if ks + AHEAD < 20: reads(ks + AHEAD)
        a(f"s_bitcmp1_b32 s{sHG}, 0\ns_cbranch_scc1 L_P0V")
        loop(False)
        a(f"""
v_and_b32 v{vT}, 15, v{vL}
v_lshrrev_b32 v{vT+1}, 4, v{vL}
v_add_u32 v{vT}, s{sT+8}, v{vT}
v_mul_u32_u24 v{vT}, 48, v{vT}
v_lshl_add_u32 v{vT}, v{vT+1}, 3, v{vT}
s_mov_b32 s{sT}, {WS_K}
v_mov_b32 v{vT+2}, 0
v_cvt_pk_bf16_f32 v{T0}, v{T0}, v{T0+1}
v_cvt_pk_bf16_f32 v{T0+1}, v{T0+2}, v{T0+3}
v_cvt_pk_bf16_f32 v{T1}, v{T1}, v{T1+1}
v_cvt_pk_bf16_f32 v{T1+1}, v{T1+2}, v{T1+3}
buffer_store_dwordx2 v[{T0}:{T0+1}], v{vT}, s[{sWS}:{sWS+3}], s{sT} offen sc1
s_mov_b32 exec_hi, 0
s_mov_b32 exec_lo, 0xffff0000
v_mov_b32 v{T1}, 0x3f803f80
v_mov_b32 v{T1+1}, 0x3f80
s_mov_b32 exec_lo, -1
buffer_store_dwordx2 v[{T1}:{T1+1}], v{vT}, s[{sWS}:{sWS+3}], s{sT} offen offset:32 sc1
s_mov_b32 exec_lo, 0xffff
v_dot2_f32_bf16 v{vT+2}, v{T1}, v{T1}, v{vT+2}
v_dot2_f32_bf16 v{vT+2}, v{T1+1}, v{T1+1}, v{vT+2}
s_mov_b64 exec, -1
v_dot2_f32_bf16 v{vT+2}, v{T0}, v{T0}, v{vT+2}
v_dot2_f32_bf16 v{vT+2}, v{T0+1}, v{T0+1}, v{vT+2}
v_mov_b32 v{vT+3}, v{vT+2}
v_permlane16_swap_b32 v{vT+2}, v{vT+3}
v_add_f32 v{vT+2}, v{vT+2}, v{vT+3}
v_mov_b32 v{vT+3}, v{vT+2}
v_permlane32_swap_b32 v{vT+2}, v{vT+3}
v_add_f32 v{vT+2}, v{vT+2}, v{vT+3}
v_max_f32_dpp v{vT+2}, v{vT+2}, v{vT+2} row_ror:8 row_mask:0xf bank_mask:0xf
v_max_f32_dpp v{vT+2}, v{vT+2}, v{vT+2} row_ror:4 row_mask:0xf bank_mask:0xf
v_max_f32_dpp v{vT+2}, v{vT+2}, v{vT+2} row_ror:2 row_mask:0xf bank_mask:0xf
v_max_f32_dpp v{vT+2}, v{vT+2}, v{vT+2} row_ror:1 row_mask:0xf bank_mask:0xf
v_mov_b32 v{vT+5}, v{vT+2}
s_branch L_P0pub
""")
        a.label("L_P0V")
        loop(True)
        a(f"""
v_and_b32 v{vT}, 15, v{vL}
v_lshrrev_b32 v{vT+1}, 5, v{vL}
v_mul_u32_u24 v{vT+1}, 336, v{vT+1}
v_lshl_add_u32 v{vT+1}, v{vT}, 4, v{vT+1}
v_bfe_u32 v{vT+2}, v{vL}, 4, 1
v_lshl_add_u32 v{vT+1}, v{vT+2}, 3, v{vT+1}
s_mul_i32 s{sT}, s{sT+8}, 42
s_add_u32 s{sT}, s{sT}, {WS_V}
v_cvt_pk_bf16_f32 v{T0}, v{T0}, v{T0+1}
v_cvt_pk_bf16_f32 v{T0+1}, v{T0+2}, v{T0+3}
v_cvt_pk_bf16_f32 v{T1}, v{T1}, v{T1+1}
v_cvt_pk_bf16_f32 v{T1+1}, v{T1+2}, v{T1+3}
buffer_store_dwordx2 v[{T0}:{T0+1}], v{vT+1}, s[{sWS}:{sWS+3}], s{sT} offen sc1
s_mov_b32 exec_lo, 0x00100010
s_mov_b32 exec_hi, 0x00100010
v_mov_b32 v{T1}, 0x3f803f80
v_mov_b32 v{T1+1}, 0x3f803f80
s_mov_b32 exec_lo, 0x001f001f
s_mov_b32 exec_hi, 0x001f001f
buffer_store_dwordx2 v[{T1}:{T1+1}], v{vT+1}, s[{sWS}:{sWS+3}], s{sT} offen offset:256 sc1
s_mov_b64 exec, -1
v_mov_b32 v{vT+5}, 0
""")
        a.label("L_P0pub")
        a(f"""
s_waitcnt vmcnt(2)
v_readfirstlane_b32 s{sTAG}, v{vEP}
s_mul_i32 s{sTAG}, s{sTAG}, 0x41C64E6D
s_add_u32 s{sTAG}, s{sTAG}, 0x3039
v_mov_b32 v{vT+4}, s{sTAG}
s_getreg_b32 s{sT+11}, hwreg(HW_REG_XCC_ID, 0, 4)
v_add_u32 v{vT+5}, 15, v{vT+5}
v_and_b32 v{vT+5}, -16, v{vT+5}
v_or_b32 v{vT+5}, s{sT+11}, v{vT+5}
s_lshl_b32 s{sT}, s2, 3
s_add_u32 s{sT}, s{sT}, {WS_GRAN}
v_mov_b32 v{vT}, 0
s_waitcnt vmcnt(0)
s_mov_b64 exec, 1
buffer_store_dwordx2 v[{vT+4}:{vT+5}], v{vT}, s[{sWS}:{sWS+3}], s{sT} offen sc1
ds_write_b32 v{vMISC}, v{vT+4} offset:{TAGO}
s_mov_b64 exec, -1
""")
        self.stamp(2)
        self.w160()
        self.g_setup()
        self.w_stage0(3)
        self.poll(FREE + 4*GPOLL_AFTER, 4)
        a(f"""
v_lshlrev_b32 v{vT}, 5, v{vL}
s_movk_i32 s{sT}, {WS_GRAN}
s_mov_b32 s{sCNT}, 0x8000
""")
        if self.stamps == 7: self.stamp(5)
        a(f"""
L_gpoll:
buffer_load_dwordx4 v[120:123], v{vT}, s[{sWS}:{sWS+3}], s{sT} offen sc1
buffer_load_dwordx4 v[124:127], v{vT}, s[{sWS}:{sWS+3}], s{sT} offen offset:16 sc1
s_waitcnt vmcnt(0)
v_cmp_eq_u32 vcc, s{sTAG}, v120
v_cmp_eq_u32 s[{sT+2}:{sT+3}], s{sTAG}, v122
v_cmp_eq_u32 s[{sT+4}:{sT+5}], s{sTAG}, v124
v_cmp_eq_u32 s[{sT+6}:{sT+7}], s{sTAG}, v126
s_and_b64 vcc, vcc, s[{sT+2}:{sT+3}]
s_and_b64 s[{sT+4}:{sT+5}], s[{sT+4}:{sT+5}], s[{sT+6}:{sT+7}]
s_and_b64 vcc, vcc, s[{sT+4}:{sT+5}]
s_cmp_eq_u64 vcc, -1
s_cbranch_scc1 L_gdone
s_sleep 4
s_sub_u32 s{sCNT}, s{sCNT}, 1
s_cmp_lg_u32 s{sCNT}, 0
s_cbranch_scc1 L_gpoll
L_gdone:
""")
        if self.stamps == 7: self.stamp(6); a(f"s_mov_b32 s{sST+10}, s{sCNT}")
        self.signal(KVR)
        a(f"""
s_bitcmp1_b32 s2, 0
s_cselect_b64 vcc, -1, 0
v_cndmask_b32 v128, v121, v123, vcc
v_cndmask_b32 v129, v125, v127, vcc
s_bitcmp1_b32 s2, 1
s_cselect_b64 vcc, -1, 0
v_cndmask_b32 v128, v128, v129, vcc
v_and_b32 v128, 15, v128
v_cmp_ne_u32 vcc, s{sT+11}, v128
s_bfe_u32 s{sT+2}, s2, 0x30002
s_lshl_b32 s{sT+2}, 0x01010101, s{sT+2}
s_or_b32 s{sT+3}, vcc_lo, vcc_hi
s_and_b32 s{sT+3}, s{sT+3}, s{sT+2}
s_cselect_b32 s{sT+3}, 0, 1
v_mov_b32 v128, s{sT+3}
v_max3_f32 v121, v121, v123, v125
v_max_f32 v121, v121, v127
v_max_f32_dpp v121, v121, v121 row_ror:8 row_mask:0xf bank_mask:0xf
v_max_f32_dpp v121, v121, v121 row_ror:4 row_mask:0xf bank_mask:0xf
v_max_f32_dpp v121, v121, v121 row_ror:2 row_mask:0xf bank_mask:0xf
v_max_f32_dpp v121, v121, v121 row_ror:1 row_mask:0xf bank_mask:0xf
v_mov_b32 v122, v121
v_permlane16_swap_b32 v121, v122
v_max_f32 v121, v121, v122
v_mov_b32 v122, v121
v_permlane32_swap_b32 v121, v122
v_max_f32 v121, v121, v122
s_mov_b64 exec, 1
ds_write_b32 v{vMISC}, v121 offset:{KMAX}
ds_write_b32 v{vMISC}, v128 offset:{SAMEX}
s_cmp_lg_u32 s2, 0
s_cbranch_scc1 L_noepoch
v_mov_b32 v{vT}, 0
v_mov_b32 v{vT+4}, s{sTAG}
buffer_store_dword v{vT+4}, v{vT}, s[{sWS}:{sWS+3}], 0 offen sc1
L_noepoch:
s_mov_b64 exec, -1
""")
        a("s_branch L_g_join2")
        a.label("L_g_join")
        self.w_stage0(4)
        a.label("L_g_join2")
        a("s_waitcnt vmcnt(0) lgkmcnt(0)")
        self.stamp(4)
        a("s_setprio 0\ns_barrier")
        self.stamp(3)


    def w_stage0(self, npc):
        a = self.a
        if self.stop in ("pre", "nobg"): return
        self.srd(sWQKV, 18, 2457600)
        a(f"s_lshl_b32 s10, s{sU}, 10\ns_add_u32 s10, s10, {R}")
        self.poll(FREE + 4*4, 4)
        if npc == 4: self.poll(P0D, 1)
        for i in range(npc): self.dma(gWO+i, sWQKV, "s8", f"s_add_u32 m0, s10, {4096*i}")

    def g_setup(self):
        a = self.a
        a(f"s_mul_i32 s{sT}, s{sHG}, 160\ns_lshl_b32 s{sT+1}, s{sU}, 6")
        for i in range(4):
            a(f"""
v_add_u32 v{vT}, s{sT+1}, v{vL}
v_add_u32 v{vT}, {256*i}, v{vT}
v_mul_u32_u24 v{vT+1}, 2185, v{vT}
v_lshrrev_b32 v{vT+1}, 16, v{vT+1}
v_mul_u32_u24 v{vT+2}, 30, v{vT+1}
v_sub_u32 v{vT}, v{vT}, v{vT+2}
""")
            self.swap23(vT+2, vT+1, vT+3)
            a(f"""
v_mul_u32_u24 v{vT+2}, 3840, v{vT+2}
v_mul_u32_u24 v{vT+3}, 26, v{vT}
v_lshrrev_b32 v{vT+3}, 8, v{vT+3}
v_mul_u32_u24 v{vT+3}, 1120, v{vT+3}
v_lshl_add_u32 v{vT}, v{vT}, 4, v{vT+2}
v_add3_u32 v{gWO+i}, v{vT}, v{vT+3}, s{sT}
""")
        self.xfrag_lane(gHF)
        a(f"""
s_and_b32 s{sT}, s{sU}, 1
s_lshl_b32 s{sT}, s{sT}, 12
s_lshl_b32 s64, s{sKA}, 13
s_sub_u32 s65, 40960, s64
s_lshl_b32 s66, s{sKA}, 11
s_sub_u32 s67, {XH+10240}, s66
s_add_u32 s66, s66, {XH}
s_add_u32 s{sT+1}, s{sT}, s64
v_add_u32 v{gXF}, s{sT+1}, v{gHF}
s_add_u32 s{sT+1}, s{sT}, s65
v_add_u32 v{gXF+2}, s{sT+1}, v{gHF}
v_add_u32 v{gHF+2}, s67, v{gHF}
v_add_u32 v{gHF}, s66, v{gHF}
v_xor_b32 v{gXF+1}, 64, v{gXF}
v_xor_b32 v{gXF+3}, 64, v{gXF+2}
v_xor_b32 v{gHF+1}, 64, v{gHF}
v_xor_b32 v{gHF+3}, 64, v{gHF+2}
s_mul_i32 s8, s{sKA}, 245760
s_sub_u32 s9, 1228800, s8
s_lshr_b32 s{sT}, s2, 3
s_lshl2_add_u32 s{sT}, s{sT}, s{sU}
s_mul_i32 s{sT}, s{sT}, 6400
v_lshlrev_b32 v{gTC}, 7, v{vL}
v_add_u32 v{gTC}, s{sT}, v{gTC}
""")
        self.tr_base(gWm, 480)
        a(f"v_add_u32 v{gWm}, {R}, v{gWm}")
        units = self.units
        BIG = f32bits(-1.0e30)
        a(f"""
v_and_b32 v{vT}, 15, v{vL}
v_lshrrev_b32 v{vT+1}, 4, v{vL}
s_mul_i32 s{sT}, s{sU}, 40
v_mul_u32_u24 v{vT+2}, 320, v{vT}
v_lshl_add_u32 v{vT+2}, v{vT+1}, 4, v{vT+2}
s_add_u32 s{sT+1}, s{sT}, {QA}
v_add_u32 v{lQa}, s{sT+1}, v{vT+2}
s_add_u32 s{sT+1}, s{sT}, {KA}
v_add_u32 v{lKa}, s{sT+1}, v{vT+2}
v_min_u32 v{vT+3}, 7, v{vT}
v_mul_u32_u24 v{vT+3}, 320, v{vT+3}
v_lshl_add_u32 v{vT+3}, v{vT+1}, 4, v{vT+3}
v_add_u32 v{lKa+1}, s{sT+1}, v{vT+3}
v_lshrrev_b32 v{vT+2}, 2, v{vL}
v_and_b32 v{vT+3}, 3, v{vL}
v_mul_u32_u24 v{vT+4}, 320, v{vT+2}
v_lshl_add_u32 v{vT+4}, v{vT+3}, 3, v{vT+4}
s_and_b32 s{sT+2}, s{sU}, 1
s_lshl3_add_u32 s{sT+1}, s{sT+2}, s{sT}
s_add_u32 s{sT+1}, s{sT+1}, {VA}
s_mul_i32 s{sT+2}, s{sT+2}, 40
v_add_u32 v{lVt}, s{sT+1}, v{vT+4}
v_min_u32 v{vT+2}, 7, v{vT+2}
v_mul_u32_u24 v{vT+4}, 320, v{vT+2}
v_lshl_add_u32 v{vT+4}, v{vT+3}, 3, v{vT+4}
v_add_u32 v{lVt+1}, s{sT+1}, v{vT+4}
v_cmp_eq_u32 vcc, 0, v{vT+3}
v_mov_b32 v{vT+2}, {MISC+ONES}
""")
        for ui, (par, qh) in enumerate(units):
            o = (32*qh + par) * 160
            a(f"""
v_add_u32 v{vT+4}, {o+32}, v{lVt}
v_add_u32 v{vT+5}, {o+32+5120}, v{lVt+1}
v_subrev_u32 v{vT+4}, s{sT+2}, v{vT+4}
v_subrev_u32 v{vT+5}, s{sT+2}, v{vT+5}
v_cndmask_b32 v{lVo+2*ui}, v{vT+2}, v{vT+4}, vcc
v_cndmask_b32 v{lVo+2*ui+1}, v{vT+2}, v{vT+5}, vcc
""")
        a(f"""
v_mul_u32_u24 v{lPA}, 160, v{vT}
v_lshl_add_u32 v{lPA}, v{vT+1}, 3, v{lPA}
v_add_u32 v{lPA}, {R}, v{lPA}
v_lshl_add_u32 v{lPA+2}, v{vT}, 3, v{vMISC}
v_lshrrev_b32 v{vT+2}, 3, v{vT}
v_mul_u32_u24 v{vT+2}, 40960, v{vT+2}
v_and_b32 v{vT+3}, 7, v{vT}
v_lshl_add_u32 v{vT+2}, v{vT+3}, 5, v{vT+2}
v_and_b32 v{vT+3}, 1, v{vT+1}
v_lshl_add_u32 v{vT+2}, v{vT+3}, 4, v{vT+2}
v_lshrrev_b32 v{vT+3}, 1, v{vT+1}
v_lshl_add_u32 v{lPA+1}, v{vT+3}, 8, v{vT+2}
v_mul_u32_u24 v{vT+3}, 81920, v{vT+3}
v_add_u32 v{lPH}, v{vT+3}, v{vT+2}
s_cmp_eq_u32 s{sRB}, 0
s_cselect_b32 s{sT+2}, 8, 0
v_lshlrev_b32 v{vT+1}, 2, v{vT+1}
v_sub_u32 v{vT+2}, v{vT+1}, v{vT}
v_mov_b32 v{vT+3}, {BIG}
""")
        for tl in range(2):
            for r in range(4):
                a(f"""
v_add_u32 v{vT+4}, {16*tl + r - 1}, v{vT+2}
v_cmp_gt_u32 vcc, 8, v{vT+4}
v_cndmask_b32 v{lMK+8+4*tl+r}, v{vT+3}, 0, vcc
""")
                if tl == 0:
                    a(f"""
v_add_u32 v{vT+4}, {r}, v{vT+1}
v_cmp_le_u32 vcc, s{sT+2}, v{vT+4}
v_cndmask_b32 v{lMK+r}, v{vT+3}, v{lMK+8+r}, vcc
""")
                else:
                    a(f"v_mov_b32 v{lMK+4+r}, v{lMK+12+r}")
    units = [(par, qh) for qh in range(2) for par in range(2)]

    def loadK(self, b):
        k = K_[b]
        return [f"buffer_load_dwordx4 v[{k}:{k+3}], v{vKa}, s[{sWS}:{sWS+3}], s{sK} offen sc1",
                f"buffer_load_dwordx2 v[{k+4}:{k+5}], v{vKb}, s[{sWS}:{sWS+3}], s{sK} offen offset:32 sc1\ns_add_u32 s{sK}, s{sK}, 1536"]
    def loadV(self, b):
        v = V_[b]
        return [f"buffer_load_dwordx4 v[{v}:{v+3}], v{vVa}, s[{sWS}:{sWS+3}], s{sV} offen sc1",
                f"buffer_load_dwordx4 v[{v+4}:{v+7}], v{vVa}, s[{sWS}:{sWS+3}], s{sV} offen offset:672 sc1\ns_add_u32 s{sV}, s{sV}, 1344"]
    def qk(self, Sn, K, Q):
        return [f"v_mfma_f32_32x32x16_bf16 v[{Sn}:{Sn+15}], v[{K}:{K+3}], v[{Q}:{Q+3}], 0",
                f"v_mfma_f32_32x32x8_bf16 v[{Sn}:{Sn+15}], v[{K+4}:{K+5}], v[{Q+4}:{Q+5}], v[{Sn}:{Sn+15}]"]
    def pv(self, O, V, P):
        return [f"v_smfmac_f32_32x32x32_bf16 v[{O}:{O+15}], v[{V}:{V+3}], v[{P}:{P+7}], v{vIDX}",
                f"v_smfmac_f32_32x32x32_bf16 v[{O}:{O+15}], v[{V+4}:{V+7}], v[{P+8}:{P+15}], v{vIDX}"]
    def flag_poll(self, ws_base, tmp):
        a = self.a; L = a.uid("Lf"); D = a.uid("Lfd")
        a(f"""
v_lshlrev_b32 v{vT}, 7, v{vL}
s_lshl_b32 s{sT}, s{sRB}, 10
s_add_u32 s{sT}, s{sT}, {ws_base}
s_mov_b32 s{sCNT}, 0x8000
s_mov_b64 exec, 0xff
{L}:
buffer_load_dwordx4 v[{tmp}:{tmp+3}], v{vT}, s[{sWS}:{sWS+3}], s{sT} offen sc1
s_waitcnt vmcnt(0)
v_cmp_eq_u32 vcc, s{sTAG}, v{tmp}
v_cmp_eq_u32 s[{sT+2}:{sT+3}], s{sTAG}, v{tmp+1}
v_cmp_eq_u32 s[{sT+4}:{sT+5}], s{sTAG}, v{tmp+2}
v_cmp_eq_u32 s[{sT+6}:{sT+7}], s{sTAG}, v{tmp+3}
s_and_b32 s{sT+2}, s{sT+2}, vcc_lo
s_and_b32 s{sT+4}, s{sT+4}, s{sT+6}
s_and_b32 s{sT+2}, s{sT+2}, s{sT+4}
s_cmp_eq_u32 s{sT+2}, 0xff
s_cbranch_scc1 {D}
s_sleep 2
s_sub_u32 s{sCNT}, s{sCNT}, 1
s_cmp_lg_u32 s{sCNT}, 0
s_cbranch_scc1 {L}
{D}:
s_mov_b64 exec, -1
""")
    def flag_store(self, ws_base, widx_sgpr):
        self.a(f"""
s_lshl_b32 s{sT}, s{sRB}, 3
s_add_u32 s{sT}, s{sT}, s{sHG}
s_lshl_b32 s{sT}, s{sT}, 7
s_lshl2_add_u32 s{sT}, s{widx_sgpr}, s{sT}
s_add_u32 s{sT}, s{sT}, {ws_base}
v_mov_b32 v{vT}, 0
v_mov_b32 v{vT+1}, s{sTAG}
s_mov_b64 exec, 1
s_waitcnt vmcnt(0)
""")
        n0 = len(self.a.ins)
        self.a(f"buffer_store_dword v{vT+1}, v{vT}, s[{sWS}:{sWS+3}], s{sT} offen sc1")
        self.dup_stores(n0)
        self.a("s_mov_b64 exec, -1")

    def m_main(self):
        a = self.a
        for b in range(4):
            q = Q_[b]; ad = 10 + (b >> 1); o = (b & 1) * 5120
            a(f"ds_read_b64 v[{q}:{q+1}], v{ad} offset:{o}\nds_read_b64 v[{q+2}:{q+3}], v{ad} offset:{o+8}")
        a("s_mov_b32 exec_hi, 0")
        for b in range(4):
            q = Q_[b]; ad = 10 + (b >> 1); o = (b & 1) * 5120
            a(f"ds_read_b64 v[{q+4}:{q+5}], v{ad} offset:{o+32}")
        a(f"""
s_mov_b32 exec_hi, -1
ds_read_b32 v13, v{vMISC} offset:{KMAX}
s_cmp_lg_u32 s11, 0
s_cbranch_scc1 L_m_nokv2
""")
        self.kv_first()
        a.label("L_m_nokv2")
        for i in range(68, 84, 2): a(f"v_mov_b64 v[{i}:{i+1}], 0")
        N = S_[1]
        for b in range(4): a(f"v_mov_b32 v{N+b}, 0")
        a("s_waitcnt lgkmcnt(0)")
        a(f"ds_read_b32 v15, v{vMISC} offset:{SAMEX}")
        a(f"ds_read_b32 v14, v{vMISC} offset:{TAGO}\nds_read_b32 v{vG}, v12 offset:{GBUF}\nds_read_b32 v{vG+1}, v12 offset:{GBUF+128}")
        for i in range(6):
            for b in range(4): a(f"v_dot2_f32_bf16 v{N+b}, v{Q_[b]+i}, v{Q_[b]+i}, v{N+b}")
        for b in range(4): a(f"v_mov_b32 v{N+4+b}, v{N+b}")
        for b in range(4): a(f"v_permlane32_swap_b32 v{N+b}, v{N+4+b}")
        for b in range(4): a(f"v_add_f32 v{N+b}, v{N+b}, v{N+4+b}")
        for b in range(4): a(f"v_mul_f32 v{N+b}, v{N+b}, v13")
        for b in range(4): a(f"v_sqrt_f32 v{N+b}, v{N+b}")
        a("s_mov_b32 exec_lo, 0")
        for b in range(4): a(f"v_mul_f32 v{N+b}, {f32bits(-(1.0 + 2.0**-6))}, v{N+b}")
        for b in range(4): a(f"v_lshrrev_b32 v{Q_[b]+4}, 16, v{N+b}")
        a("s_mov_b32 exec_lo, -1")
        eW = vE; eR = vE+1; ePs = vE+2; ePp = vE+3; eS4 = vE+4; eS2 = vE+5; eWb = vE+6; eO4 = vE+8; eO2 = vE+9; eAC = vE+10
        a(f"""
s_mul_i32 s{sT+1}, s{sW}, 6144
s_xor_b32 s{sT+2}, s{sW}, 1
s_mul_i32 s{sT+3}, s{sT+2}, 6144
s_add_u32 s{sT+1}, s{sT+1}, {RED}
s_add_u32 s{sT+3}, s{sT+3}, {RED}
v_add_u32 v{eW}, s{sT+1}, v{vLin}
v_add_u32 v{eR}, s{sT+3}, v{vLin}
s_lshl_b32 s{sT+1}, s{sW}, 2
s_lshl_b32 s{sT+2}, s{sT+2}, 2
v_add_u32 v{ePs}, s{sT+1}, v{vSIG}
v_add_u32 v{ePp}, s{sT+2}, v{vMISC}
v_add_u32 v{eAC+1}, s{sT+1}, v{vMISC}
v_and_b32 v{vT}, 15, v{vL}
v_bfe_u32 v{vT+1}, v{vL}, 4, 1
v_mul_u32_u24 v{vT+1}, 40960, v{vT+1}
v_lshl_add_u32 v{vT}, v{vT}, 4, v{vT+1}
v_lshrrev_b32 v{vT+1}, 5, v{vL}
v_mul_u32_u24 v{vT+2}, 81920, v{vT+1}
v_add_u32 v{eS2}, v{vT}, v{vT+2}
v_xor_b32 v{vT+1}, s10, v{vT+1}
v_lshl_add_u32 v{eS4}, v{vT+1}, 8, v{vT}
s_mul_i32 s64, s{sRB}, 163840
s_mul_i32 s{sT+2}, s{sHG}, 2560
s_add_u32 s64, s64, s{sT+2}
s_lshr_b32 s{sT+2}, s{sW}, 1
s_mul_i32 s{sT+2}, s{sT+2}, 1280
s_add_u32 s64, s64, s{sT+2}
s_add_u32 s64, s64, {WS_OAB + 80*256}
s_add_u32 s65, s64, 81920
s_waitcnt vmcnt(12) lgkmcnt(0)
""")
        for l in self.qk(S_[0], K_[0], Q_[0]): a(l)
        a(f"v_readfirstlane_b32 s{sTAG}, v14\nv_readfirstlane_b32 s{sSX}, v15")
        a(f"v_sub_f32 v{vG}, 1.0, v{vG}\nv_sub_f32 v{vG+1}, 1.0, v{vG+1}")
        a(f"s_mov_b32 s{sCNT}, 8")
        self.stamp(4)
        self.cstamp(9)
        a("s_nop 5")
        a(".p2align 6")
        a.label("L_mqa")
        for kb in range(4):
            for j in range(4):
                e = [f"v_exp_f32 v{S_[j]+i}, v{S_[j]+i}" for i in range(16)]
                m = self.qk(S_[(j+1) % 4], K_[kb if j < 3 else (kb+1) % 4], Q_[(j+1) % 4]) + self.pv(O_[(j+3) % 4], V_[kb if j > 0 else (kb+3) % 4], S_[(j+3) % 4])
                pre = [None]*4; post = [None]*4
                if j == 1:
                    pre[2] = "s_waitcnt vmcnt(10)"
                    lv = self.loadV((kb+3) % 4); post[2] = lv[0]; post[3] = lv[1]
                if j == 3:
                    pre[0] = "s_waitcnt vmcnt(10)"
                    lk = self.loadK(kb); post[2] = lk[0]; post[3] = lk[1]
                    if kb == 3:
                        post[0] = f"s_sub_u32 s{sCNT}, s{sCNT}, 1"
                        post[3] += f"\ns_cmp_lg_u32 s{sCNT}, 0"
                for x in range(4):
                    if pre[x]: a(pre[x])
                    a(m[x])
                    if post[x]: a(post[x])
                    for l in e[4*x:4*x+4]: a(l)
        if self.stamps == 3:
            a(f"s_memrealtime s[100:101]\ns_waitcnt lgkmcnt(0)\ns_mov_b32 m0, s{sCNT}\nv_writelane_b32 v254, s100, m0\ns_memtime s[100:101]\ns_waitcnt lgkmcnt(0)\nv_writelane_b32 v253, s100, m0\ns_cmp_lg_u32 s{sCNT}, 0")
        a("s_cbranch_scc1 L_mqa")
        a(f"ds_read_b32 v14, v{vMISC} offset:{GDONE}")
        for l in self.pv(O_[3], V_[3], S_[3]): a(l)
        if self.stamps == 3:
            a(f"s_lshl2_add_u32 s{sT}, s2, s{sW}\ns_lshl_b32 s{sT}, s{sT}, 9\ns_add_u32 s{sT}, s{sT}, {WS_DUMP}\nv_lshlrev_b32 v{vT}, 2, v{vL}\nbuffer_store_dword v254, v{vT}, s[{sWS}:{sWS+3}], s{sT} offen\nbuffer_store_dword v253, v{vT}, s[{sWS}:{sWS+3}], s{sT} offen offset:256")
        self.stamp(5)
        self.cstamp(10)
        a("s_waitcnt lgkmcnt(0)")
        self.check_fast(14, GDONE, 4)
        for b in range(2):
            for i in range(3):
                o = O_[2+b] + 4*i
                a(f"ds_write_b128 v{eW}, v[{o}:{o+3}] offset:{(3*b+i)*1024}")
        a(f"ds_add_u32 v{ePs}, v{vONE} offset:{PAIR}")
        self.poll(PAIR, 1, vaddr=ePp)
        if self.stamps == 5: self.stamp(3)
        for b in range(2):
            for i in range(3):
                o = S_[b] + 4*i
                a(f"ds_read_b128 v[{o}:{o+3}], v{eR} offset:{(3*b+i)*1024}")
        for b in range(2):
            a(f"s_waitcnt lgkmcnt({3*(1-b)})")
            for i in range(0, 12, 2): a(f"v_pk_add_f32 v[{O_[b]+i}:{O_[b]+i+1}], v[{O_[b]+i}:{O_[b]+i+1}], v[{S_[b]+i}:{S_[b]+i+1}]")
        for b in range(2):
            a(f"v_mov_b32 v{S_[2]+2*b}, v{O_[b]+8}\nv_mov_b32 v{S_[2]+2*b+1}, v{O_[b]+8}")
        for b in range(2):
            a(f"v_permlane32_swap_b32 v{S_[2]+2*b}, v{S_[2]+2*b+1}")
        a(f"""
v_min_f32 v{vT}, v{S_[2]+1}, v{S_[2]+3}
v_add_f32 v{vT+1}, v{S_[2]+1}, v{S_[2]+3}
s_mov_b32 s{sT}, {THR}
v_cmp_nle_f32 vcc, s{sT}, v{vT}
s_mov_b32 s{sT+1}, {f32bits(1.0e30)}
v_cmp_ngt_f32 s[{sT+2}:{sT+3}], s{sT+1}, v{vT+1}
s_or_b64 vcc, vcc, s[{sT+2}:{sT+3}]
s_cbranch_vccnz L_fallback
L_m_norm:
v_rcp_f32 v{S_[2]+1}, v{S_[2]+1}
v_rcp_f32 v{S_[2]+3}, v{S_[2]+3}
v_mul_f32 v{S_[2]+1}, v{S_[2]+1}, v{vG}
v_mul_f32 v{S_[2]+3}, v{S_[2]+3}, v{vG+1}
""")
        for b in range(2):
            for i in range(0, 12, 2): a(f"v_pk_mul_f32 v[{O_[b]+i}:{O_[b]+i+1}], v[{O_[b]+i}:{O_[b]+i+1}], v[{S_[2]+2*b}:{S_[2]+2*b+1}] op_sel:[0,1] op_sel_hi:[1,1]")
        a(f"s_cmp_lg_u32 s10, 0\ns_cbranch_scc1 L_m_odd")
        def cvt(d, s): a(f"v_cvt_pk_bf16_f32 v{d}, v{s}, v{s+1}\nv_cvt_pk_bf16_f32 v{d+1}, v{s+2}, v{s+3}")
        for b in range(2):
            d = S_[b]; cvt(d, O_[b]); cvt(d+2, O_[b]+4); cvt(d+4, O_[b]+8)
        for b in range(2):
            d = S_[b]; a(f"v_permlane32_swap_b32 v{d}, v{d+2}\nv_permlane32_swap_b32 v{d+1}, v{d+3}")
        a(f"v_permlane32_swap_b32 v{S_[0]+4}, v{S_[1]+4}\nv_permlane32_swap_b32 v{S_[0]+5}, v{S_[1]+5}")
        n0 = len(a.ins)
        for b in range(2):
            d = S_[b]; a(f"buffer_store_dwordx4 v[{d}:{d+3}], v{eS4}, s[{sWS}:{sWS+3}], s{64+b} offen sc1")
        a(f"buffer_store_dwordx2 v[{S_[0]+4}:{S_[0]+5}], v{eS2}, s[{sWS}:{sWS+3}], s64 offen offset:512 sc1")
        self.dup_stores(n0)
        a("s_branch L_m_pub")
        a.label("L_m_odd")
        for b in range(2):
            d = S_[b]; cvt(d, O_[b]); cvt(d+2, O_[b]+8); cvt(d+4, O_[b]+4)
        for b in range(2):
            d = S_[b]; a(f"v_permlane32_swap_b32 v{d+2}, v{d+4}\nv_permlane32_swap_b32 v{d+3}, v{d+5}")
        for b in range(2):
            d = S_[b]; a(f"v_permlane32_swap_b32 v{d+4}, v{d}\nv_permlane32_swap_b32 v{d+5}, v{d+1}")
        a(f"v_permlane32_swap_b32 v{S_[0]+4}, v{S_[1]+4}\nv_permlane32_swap_b32 v{S_[0]+5}, v{S_[1]+5}")
        n0 = len(a.ins)
        for b in range(2):
            d = S_[b]; a(f"buffer_store_dwordx4 v[{d}:{d+3}], v{eS4}, s[{sWS}:{sWS+3}], s{64+b} offen offset:768 sc1")
        a(f"buffer_store_dwordx2 v[{S_[1]+4}:{S_[1]+5}], v{eS2}, s[{sWS}:{sWS+3}], s64 offen offset:520 sc1")
        self.dup_stores(n0)
        a.label("L_m_pub")
        if self.stamps == 5: self.stamp(4)
        OF = 52; ACC = 132; WF = 152; NWF = 4
        a(f"ds_read_b32 v14, v{vMISC} offset:{BWOL}")
        a(f"""
s_lshl2_add_u32 s{sT+8}, s{sRB}, s{sW}
s_lshl_b32 s{sT+10}, s{sT+8}, 4
s_mul_i32 s56, s{sT+8}, 40960
s_add_u32 s56, s56, {WS_OAB + 20480}
s_add_u32 s57, s56, 4096
s_add_u32 s58, s56, 8192
s_add_u32 s59, s56, 12288
s_add_u32 s60, s56, 16384
""")
        self.tr_base(eWb, 160)
        a(f"v_add_u32 v{eWb+1}, {R}, v{eWb}")
        self.flag_store(WS_FB, sW)
        self.stamp(6)
        if self.stop not in ("oab", "nobg"):
            def oload(ks): return f"buffer_load_dwordx4 v[{OF+4*ks}:{OF+4*ks+3}], v{vLin}, s[{sWS}:{sWS+3}], s{56 + ks//4} offen offset:{(ks%4)*1024} sc1"
            a("s_waitcnt lgkmcnt(0)")
            self.check_fast(14, BWOL, 4)
            def wreads(ks):
                wb, o = (eWb + 1, ks * 5120) if ks < 7 else (eWb, (ks - 7) * 5120); f = WF + 20 * (ks % NWF); out = []
                for t in range(5):
                    out.append(f"ds_read_b64_tr_b16 v[{f+4*t}:{f+4*t+1}], v{wb} offset:{o+32*t}")
                    out.append(f"ds_read_b64_tr_b16 v[{f+4*t+2}:{f+4*t+3}], v{wb} offset:{o+32*t+1280}")
                return out
            for ks in range(NWF):
                for l in wreads(ks): a(l)
            self.flag_poll(WS_FB, 20)
            self.stamp(7)
            for ks in range(20): a(oload(ks))
            self.srd(sOUT, 34, 2621440)
            a(f"""
v_and_b32 v{eO4}, 15, v{vL}
v_add_u32 v{eO4}, s{sT+10}, v{eO4}
v_mul_u32_u24 v{eO4}, 1280, v{eO4}
v_lshrrev_b32 v{vT+1}, 4, v{vL}
v_lshl_add_u32 v{eO2}, v{vT+1}, 3, v{eO4}
v_bfe_u32 v{vT+1}, v{vL}, 4, 1
v_lshl_add_u32 v{eO4}, v{vT+1}, 5, v{eO4}
v_lshrrev_b32 v{vT+1}, 5, v{vL}
v_lshl_add_u32 v{eO4}, v{vT+1}, 4, v{eO4}
s_mul_i32 s{sT+9}, s{sW}, 5120
s_add_u32 s{sT+9}, s{sT+9}, {ACCAREA}
v_add_u32 v{eAC}, s{sT+9}, v{vLin}
""")
            for ks in range(20):
                a(f"s_waitcnt vmcnt({19-ks})")
                if ks == 0: a("s_waitcnt lgkmcnt(0)")
                elif ks >= NWF: a(f"s_waitcnt lgkmcnt({min(10, 10*(19-ks))})")
                if self.stamps == 5 and ks == 0: self.stamp(1)
                if self.stamps == 5 and ks == 19: self.stamp(2)
                f = WF + 20 * (ks % NWF)
                r = wreads(ks + NWF) if ks + NWF < 20 else []
                for t in range(5):
                    C = "0" if ks == 0 else f"v[{ACC+4*t}:{ACC+4*t+3}]"
                    a(f"v_mfma_f32_16x16x32_bf16 v[{ACC+4*t}:{ACC+4*t+3}], v[{f+4*t}:{f+4*t+3}], v[{OF+4*ks}:{OF+4*ks+3}], {C}")
                    for l in r[2*t:2*t+2]: a(l)
                if ks == 6: a(f"ds_read_b32 v14, v{vMISC} offset:{LA2}")
                if ks == 8: self.check_fast(14, LA2, 4)
                if ks == 17: a(f"ds_read_b32 v14, v{eAC+1} offset:{ACCA}")
                if ks == 19:
                    self.check_fast(14, ACCA, 1, vaddr=eAC+1)
                    for t in range(5): a(f"ds_read_b128 v[{20+4*t}:{20+4*t+3}], v{eAC} offset:{1024*t}")
            self.stamp(8)
            a(f"s_mul_i32 s{sT+1}, s{sHG}, 160\ns_waitcnt lgkmcnt(0)")
            for i in range(0, 20, 2): a(f"v_pk_add_f32 v[{ACC+i}:{ACC+i+1}], v[{ACC+i}:{ACC+i+1}], v[{20+i}:{20+i+1}]")
            for t in range(5):
                d = 40 + 2*t
                a(f"v_cvt_pk_bf16_f32 v{d}, v{ACC+4*t}, v{ACC+4*t+1}\nv_cvt_pk_bf16_f32 v{d+1}, v{ACC+4*t+2}, v{ACC+4*t+3}")
            for p in range(2):
                d = 40 + 4*p
                a(f"v_permlane16_swap_b32 v{d}, v{d+2}\nv_permlane16_swap_b32 v{d+1}, v{d+3}")
            for p in range(2):
                d = 40 + 4*p
                a(f"buffer_store_dwordx4 v[{d}:{d+3}], v{eO4}, s[{sOUT}:{sOUT+3}], s{sT+1} offen offset:{64*p}")
            a(f"buffer_store_dwordx2 v[48:49], v{eO2}, s[{sOUT}:{sOUT+3}], s{sT+1} offen offset:128")
        a("s_branch L_fin")
        self.m_fallback()

    def m_fallback(self):
        a = self.a
        MX = S_[2] + 4
        a.label("L_fallback")
        a("s_mov_b32 exec_lo, 0")
        for b in range(2): a(f"v_mov_b32 v{Q_[b]+4}, 0\nv_mov_b32 v{Q_[b]+5}, 0")
        a("s_mov_b32 exec_lo, -1")
        a(f"v_mov_b32 v{MX}, 0xff7fffff\nv_mov_b32 v{MX+1}, 0xff7fffff")
        a(f"s_mov_b32 s{sK}, {WS_K}\ns_mov_b32 s{sCNT}, 64\ns_waitcnt vmcnt(0)")
        a.label("L_fb1")
        for l in self.loadK(0): a(l)
        a("s_waitcnt vmcnt(0)")
        for b in range(2):
            for l in self.qk(S_[b], K_[0], Q_[b]): a(l)
        for b in range(2):
            for i in range(8): a(f"v_max3_f32 v{MX+b}, v{S_[b]+2*i}, v{S_[b]+2*i+1}, v{MX+b}")
        a(f"s_sub_u32 s{sCNT}, s{sCNT}, 1\ns_cmp_lg_u32 s{sCNT}, 0\ns_cbranch_scc1 L_fb1")
        for b in range(2):
            m = MX + b; t = MX + 2
            a(f"""
v_mov_b32 v{t}, v{m}
v_permlane32_swap_b32 v{m}, v{t}
v_max_f32 v{m}, v{m}, v{t}
v_sub_f32 v{m}, 0, v{m}
v_and_b32 v{t}, 0xffff0000, v{m}
v_sub_f32 v{m}, v{m}, v{t}
v_and_b32 v{t+1}, 0xffff0000, v{m}
v_sub_f32 v{m}, v{m}, v{t+1}
s_mov_b32 exec_lo, 0
v_lshrrev_b32 v{t}, 16, v{t}
v_or_b32 v{Q_[b]+4}, v{t}, v{t+1}
v_lshrrev_b32 v{Q_[b]+5}, 16, v{m}
s_mov_b32 exec_lo, -1
""")
        for i in range(16): a(f"v_mov_b64 v[{O_[0]+2*i}:{O_[0]+2*i+1}], 0")
        a(f"s_mov_b32 s{sK}, {WS_K}\ns_mov_b32 s{sV}, {WS_V}\ns_mov_b32 s{sCNT}, 64")
        a.label("L_fb2")
        for l in self.loadK(0) + self.loadV(0): a(l)
        a("s_waitcnt vmcnt(0)")
        for b in range(2):
            for l in self.qk(S_[b], K_[0], Q_[b]): a(l)
        for b in range(2):
            for i in range(16): a(f"v_exp_f32 v{S_[b]+i}, v{S_[b]+i}")
        for b in range(2):
            for l in self.pv(O_[b], V_[0], S_[b]): a(l)
        a(f"s_nop 15\ns_sub_u32 s{sCNT}, s{sCNT}, 1\ns_cmp_lg_u32 s{sCNT}, 0\ns_cbranch_scc1 L_fb2")
        for b in range(2):
            a(f"v_mov_b32 v{S_[2]+2*b}, v{O_[b]+8}\nv_mov_b32 v{S_[2]+2*b+1}, v{O_[b]+8}")
        for b in range(2): a(f"v_permlane32_swap_b32 v{S_[2]+2*b}, v{S_[2]+2*b+1}")
        a("s_nop 1\ns_branch L_m_norm")

    def g_main(self):
        a = self.a
        if self.stop == "nobg":
            self.signal(GDONE); return
        a(f"s_cmp_eq_u32 s{sU}, 1\ns_cbranch_scc1 L_bg1\ns_cmp_eq_u32 s{sU}, 2\ns_cbranch_scc1 L_bg2\ns_cmp_eq_u32 s{sU}, 3\ns_cbranch_scc1 L_bg3")
        for u in range(4):
            if u: a.label(f"L_bg{u}")
            self.bg_path(u)
            if u < 3: a("s_branch L_bg_done")
        a.label("L_bg_done")
        self.local_attn()
        self.g_apart()

    def bg_path(self, u):
        a = self.a
        rp = u & 1; cg = u >> 1
        tiles = list(range(0, 8)) if cg == 0 else list(range(8, 15))
        halo = {(0, 0): [5, 6], (0, 1): [7], (1, 0): [8, 9, 10, 11], (1, 1): [12, 13, 14]}[(cg, rp)]
        npc = 4 if u < 3 else 3
        bp = [[0], [1], [2], [3, 4]][u]
        order = [0, 1, 2, 3, 8, 4, 5, 6, 7, 9]
        work = []
        for t in tiles:
            work.append((t, 0)); work.append((t, 1))
            if t in halo: work.append((t, 2))
        def reads(s):
            par = s & 1; b = GF[par]; sec = 2 if s >= 10 else 0; kb = (s % 10) >> 1; so = RING[s % 3] - R
            out = [f"ds_read_b128 v[{b}:{b+3}], v{gXF+sec+par} offset:{kb*8192}",
                   f"ds_read_b128 v[{b+4}:{b+7}], v{gXF+sec+par} offset:{kb*8192+2048}"]
            for j, t in enumerate(tiles):
                f = b + 12 + 4*j
                out.append(f"ds_read_b64_tr_b16 v[{f}:{f+1}], v{gWm} offset:{so+32*t}")
                out.append(f"ds_read_b64_tr_b16 v[{f+2}:{f+3}], v{gWm} offset:{so+32*t+3840}")
            out.append(f"ds_read_b128 v[{b+8}:{b+11}], v{gHF+sec+par} offset:{kb*2048}")
            return out
        def mfmas(s):
            b = GF[s & 1]; out = []
            for n, (t, xs) in enumerate(work):
                f = b + 12 + 4*tiles.index(t); x = b + 4*xs; c = ACCG + 4*n
                C = "0" if s == 0 else f"v[{c}:{c+3}]"
                out.append(f"v_mfma_f32_16x16x32_bf16 v[{c}:{c+3}], v[{f}:{f+3}], v[{x}:{x+3}], {C}")
            return out
        def wdma(s):
            out = []
            for i in range(npc):
                pre = f"s_add_u32 s10, s{8 + (s >= 10)}, {(s % 10)*122880}" if i == 0 else "s_nop 0"
                out.append(f"s_mov_b32 m0, {RING[s % 3] + 1024*u + 4096*i}\n{pre}\nbuffer_load_dwordx4 v{gWO+i}, s[{sWQKV}:{sWQKV+3}], s10 offen lds")
            return out
        def adma(idx):
            v = order[idx % 10]; sec = idx // 10
            base, off = (64 + sec, v*5120) if v < 8 else (66 + sec, (v-8)*5120)
            out = []
            for k, p in enumerate(bp):
                t = f"s_add_u32 m0, s{base}, {off + 1024*p}\n"
                t += (f"s_lshl3_add_u32 s11, s{base}, {off*8}" if k == 0 else "s_nop 0")
                out.append(t + f"\nbuffer_load_dwordx4 v{vW5+p}, s[{sAWO}:{sAWO+3}], s11 offen lds")
            return out
        def touch(srd, part, nparts):
            lo = 50*part // nparts; hi = 50*(part+1) // nparts
            mask = ((1 << hi) - 1) ^ ((1 << lo) - 1)
            return f"s_mov_b32 exec_lo, {mask & 0xffffffff}\ns_mov_b32 exec_hi, {mask >> 32}\nbuffer_load_dword v0, v{gTC}, s[{srd}:{srd+3}], 0 offen\ns_mov_b64 exec, -1"
        vm = []
        def emit_vm(text, tag): a(text); vm.append(tag)
        def arrive(s):
            last = max(k for k, t in enumerate(vm) if t == ("W", s))
            a(f"s_waitcnt vmcnt({len(vm) - 1 - last}) lgkmcnt(0)")
            self.signal(CNTG)
        for l in reads(0): a(l)
        a(f"ds_read_b32 v9, v{vMISC} offset:{TAGO}\nds_read_b32 v7, v{vMISC} offset:{SAMEX}")
        self.srd(sAWO, 20, 819200)
        self.srd(sBWO, 30, 819200)
        self.stamp(5)
        a("s_waitcnt lgkmcnt(0)")
        m = mfmas(0); k = 0
        for st in (1, 2):
            for x in wdma(st):
                a(m[k]); k += 1
                emit_vm(x, ("W", st))
        a(f"s_setprio 2\nv_readfirstlane_b32 s{sTAG}, v9\nv_readfirstlane_b32 s{sSX}, v7\ns_setprio {GP}")
        while k < PRE0: a(m[k]); k += 1
        arrive(1)
        pend = m[k:]
        for s in range(1, 20):
            m = pend if s == 1 else mfmas(s-1)
            k = 0
            a(m[k]); k += 1
            a(f"ds_read_b32 v{gFL}, v{vMISC} offset:{CNTG}")
            a(m[k]); k += 1
            a("s_waitcnt lgkmcnt(0)")
            self.check_fast(gFL, CNTG, 4*s, prio=GP)
            r = reads(s)
            il = [(x, ("W", s+2)) for x in wdma(s+2)] if s + 2 < 20 else []
            items = []; n = 0
            while r or il:
                if il and (n in DSL[u] or not r): items.append(("V", il[0])); il = il[1:]
                else: items.append(("R", r[:2])); r = r[2:]
                n += 1
            items.append(("A", None))
            if s >= 4: items += [("V", (x, ("A", s))) for x in adma(s-4)]
            if s in TOUCH: items.append(("V", (touch(sBWO, TOUCH.index(s), len(TOUCH)), ("T", s))))
            for kind, x in items:
                if kind == "R":
                    for l in x: a(l)
                elif kind == "V": emit_vm(*x)
                elif s < 19: arrive(s+1)
                else:
                    a("s_waitcnt lgkmcnt(0)"); self.signal(GDONE)
                if k < len(m): a(m[k]); k += 1
            while k < len(m): a(m[k]); k += 1
        m = mfmas(19)
        def epi(n):
            t, xs = work[n]; c = ACCG + 4*n
            base = [QA - R, KA - R + 2560, VA - R + 2560][t // 5] + 32*(t % 5)
            off = base + (2*rp + xs) * 2560 if xs < 2 else base - 2560
            a(f"s_setprio 2\nv_cvt_pk_bf16_f32 v{c}, v{c}, v{c+1}\nv_cvt_pk_bf16_f32 v{c+1}, v{c+2}, v{c+3}\ns_setprio {GP}")
            a(f"ds_write_b64 v{lPA}, v[{c}:{c+1}] offset:{off}")
        LAG = 3
        for n in range(len(m)):
            a(m[n])
            if n == 1: a(f"ds_read_b32 v{gFL}, v{vMISC} offset:{GDONE}")
            if n == 2:
                a("s_waitcnt lgkmcnt(0)"); self.check_fast(gFL, GDONE, 4, prio=GP)
            if n >= LAG: epi(n - LAG)
        self.stamp(6)
        for n in range(len(m) - LAG, len(m)): epi(n)
        self.signal(LA1)
        for idx in range(16, 20):
            for x in adma(idx): a(x)

    def local_attn(self):
        a = self.a
        QF = 104; KF = 120; VF = 152; SD = 32; PB = 64; OD = 80; TM = 20; GV = 184
        units = self.units; U = range(4)
        a("s_setprio 2")
        for i in range(8): a(f"v_mov_b64 v[{QF+2*i}:{QF+2*i+1}], 0")
        for ui, (par, qh) in enumerate(units):
            a(f"ds_read_b32 v{GV+ui}, v{lPA+2} offset:{GBUF + 4*(32*qh+par)}")
        a(f"""
s_mov_b32 s10, {CSC}
s_mul_i32 s64, s{sRB}, 163840
s_add_u32 s64, s64, {WS_OAB}
s_mul_i32 s{sT+8}, s{sU}, 40960
s_add_u32 s{sT+8}, s{sT+8}, s64
s_mul_i32 s{sT+2}, s{sHG}, 2560
s_add_u32 s64, s64, s{sT+2}
s_lshr_b32 s{sT+2}, s{sU}, 1
s_mul_i32 s{sT+2}, s{sT+2}, 1280
s_add_u32 s64, s64, s{sT+2}
s_and_b32 s{sT+2}, s{sU}, 1
s_lshl3_add_u32 s66, s{sT+2}, s64
s_mul_i32 s{sT+2}, s{sT+2}, 768
s_add_u32 s64, s64, s{sT+2}
s_add_u32 s65, s64, 81920
""")
        self.poll(LA1, 4)
        self.stamp(7)
        a("s_mov_b32 exec_hi, 0xffff")
        for ui, (par, qh) in enumerate(units):
            a(f"ds_read_b64 v[{QF+4*ui}:{QF+4*ui+1}], v{lQa} offset:{(32*qh+par)*160}")
        a("s_mov_b32 exec_hi, 0")
        for ui, (par, qh) in enumerate(units):
            a(f"ds_read_b64 v[{QF+4*ui+2}:{QF+4*ui+3}], v{lQa} offset:{(32*qh+par)*160+8}")
        a("s_mov_b32 exec_hi, -1")
        for ui, (par, qh) in enumerate(units):
            o = (32*qh+par)*160
            for tl in range(2):
                f = KF + 8*ui + 4*tl
                a(f"ds_read_b64 v[{f}:{f+1}], v{lKa+tl} offset:{o + 5120*tl}")
                a(f"ds_read_b64 v[{f+2}:{f+3}], v{lKa+tl} offset:{o + 5120*tl + 8}")
        for ui, (par, qh) in enumerate(units):
            a(f"s_waitcnt lgkmcnt(12)")
            for tl in range(2):
                f = KF + 8*ui + 4*tl; d = SD + 8*ui + 4*tl; mk = lMK + 8*qh + 4*tl
                a(f"v_mfma_f32_16x16x32_bf16 v[{d}:{d+3}], v[{f}:{f+3}], v[{QF+4*ui}:{QF+4*ui+3}], v[{mk}:{mk+3}]")
            o = (32*qh+par)*160; f = VF + 8*ui
            a(f"ds_read_b64_tr_b16 v[{f}:{f+1}], v{lVt} offset:{o}")
            a(f"ds_read_b64_tr_b16 v[{f+2}:{f+3}], v{lVt+1} offset:{o+5120}")
            a(f"ds_read_b64_tr_b16 v[{f+4}:{f+5}], v{lVo+2*ui}")
            a(f"ds_read_b64_tr_b16 v[{f+6}:{f+7}], v{lVo+2*ui+1}")
        for st in range(4):
            for ui in U:
                d = SD + 8*ui; m = TM + 2*ui
                a([f"v_max3_f32 v{m}, v{d}, v{d+1}, v{d+2}", f"v_max3_f32 v{m}, v{m}, v{d+3}, v{d+4}", f"v_max3_f32 v{m}, v{m}, v{d+5}, v{d+6}", f"v_max_f32 v{m}, v{m}, v{d+7}"][st])
        for sw in ("v_permlane16_swap_b32", "v_permlane32_swap_b32"):
            for ui in U: a(f"v_mov_b32 v{TM+2*ui+1}, v{TM+2*ui}")
            for ui in U: a(f"{sw} v{TM+2*ui}, v{TM+2*ui+1}")
            for ui in U: a(f"v_max_f32 v{TM+2*ui}, v{TM+2*ui}, v{TM+2*ui+1}")
        for ui in U: a(f"v_mul_f32 v{TM+2*ui}, s10, v{TM+2*ui}")
        for ui in U:
            for i in range(8): a(f"v_fma_f32 v{SD+8*ui+i}, v{SD+8*ui+i}, s10, -v{TM+2*ui}")
        ex = []
        for ui in U:
            ex += [f"v_exp_f32 v{SD+8*ui+i}, v{SD+8*ui+i}" for i in range(8)]
        a("s_waitcnt lgkmcnt(0)")
        for l in ex: a(l)
        for ui in U:
            for i in range(4): a(f"v_cvt_pk_bf16_f32 v{PB+4*ui+i}, v{SD+8*ui+2*i}, v{SD+8*ui+2*i+1}")
            for tl in (1, 0):
                f = VF + 8*ui + 4*tl; d = OD + 8*ui + 4*tl
                a(f"v_mfma_f32_16x16x32_bf16 v[{d}:{d+3}], v[{f}:{f+3}], v[{PB+4*ui}:{PB+4*ui+3}], 0")
        for ui in U: a(f"v_mov_b32 v{TM+2*ui}, v{OD+8*ui+4}\nv_mov_b32 v{TM+2*ui+1}, v{OD+8*ui+4}")
        for ui in U: a(f"v_permlane16_swap_b32 v{TM+2*ui}, v{TM+2*ui+1}")
        for ui in U: a(f"v_rcp_f32 v{TM+2*ui+1}, v{TM+2*ui+1}")
        for ui in U: a(f"v_mul_f32 v{TM+2*ui}, v{TM+2*ui+1}, v{GV+ui}")
        for ui in U:
            for i in range(4): a(f"v_pk_mul_f32 v[{OD+8*ui+2*i}:{OD+8*ui+2*i+1}], v[{OD+8*ui+2*i}:{OD+8*ui+2*i+1}], v[{TM+2*ui}:{TM+2*ui+1}] op_sel_hi:[1,0]")
        for ui in U:
            d = SD + 4*(ui >> 1) + 2*(ui & 1); h = SD + 16 + 2*ui
            a(f"v_cvt_pk_bf16_f32 v{d}, v{OD+8*ui}, v{OD+8*ui+1}\nv_cvt_pk_bf16_f32 v{d+1}, v{OD+8*ui+2}, v{OD+8*ui+3}")
            a(f"v_cvt_pk_bf16_f32 v{h}, v{OD+8*ui+4}, v{OD+8*ui+5}\nv_cvt_pk_bf16_f32 v{h+1}, v{OD+8*ui+6}, v{OD+8*ui+7}")
        for q in range(2):
            d = SD + 4*q
            a(f"v_permlane16_swap_b32 v{d}, v{d+2}\nv_permlane16_swap_b32 v{d+1}, v{d+3}")
        for q in range(2):
            h = SD + 16 + 4*q
            a(f"v_permlane16_swap_b32 v{h}, v{h+2}\nv_permlane16_swap_b32 v{h+1}, v{h+3}")
        h = SD + 16
        a(f"v_permlane32_swap_b32 v{h}, v{h+4}\nv_permlane32_swap_b32 v{h+1}, v{h+5}")
        n0 = len(a.ins)
        for q in range(2):
            d = SD + 4*q
            a(f"buffer_store_dwordx4 v[{d}:{d+3}], v{lPA+1}, s[{sWS}:{sWS+3}], s{64+q} offen sc1")
        a(f"buffer_store_dwordx2 v[{h}:{h+1}], v{lPH}, s[{sWS}:{sWS+3}], s66 offen offset:512 sc1")
        self.dup_stores(n0)

    def g_apart(self):
        a = self.a
        vWb = 20; OF = 32; ACC = 112; WF = 132; NW = 6
        def bk(ks_expr_base, lds0, stride_w):
            out = []
            for p in range(5):
                pre = f"s_add_u32 s{sT+4}, s{sT+10}, {ks_expr_base*40960}" if p == 0 else "s_nop 0"
                out.append(f"s_add_u32 m0, s{sT+9}, {lds0 + 1024*p}\n{pre}\nbuffer_load_dwordx4 v{vW5+p}, s[{sBWO}:{sBWO+3}], s{sT+4} offen lds")
            return out
        def guarded(items, lim):
            out = []
            for x in items:
                L = a.uid("Lbi"); out.append(f"s_cmp_ge_u32 s{sU}, {lim}\ns_cbranch_scc1 {L}\n{x}\n{L}:")
            return out
        def reads(ks):
            wb = vWb + (1 if ks >= 10 else 0); o = (ks % 10) * 5120; f = WF + 20 * (ks % NW); out = []
            for t in range(5):
                out.append(f"ds_read_b64_tr_b16 v[{f+4*t}:{f+4*t+1}], v{wb} offset:{o+32*t}")
                out.append(f"ds_read_b64_tr_b16 v[{f+4*t+2}:{f+4*t+3}], v{wb} offset:{o+32*t+1280}")
            return out
        self.tr_base(vWb, 160)
        a(f"""
v_add_u32 v{vWb+1}, 51200, v{vWb}
s_lshl_b32 s{sT+1}, s{sU}, 2
v_add_u32 v24, s{sT+1}, v{vSIG}
s_mul_i32 s{sT+1}, s{sU}, 5120
s_add_u32 s{sT+1}, s{sT+1}, {ACCAREA}
v_add_u32 v25, s{sT+1}, v{vLin}
""")
        self.flag_store(WS_FA, sU)
        self.signal(CNTA)
        self.stamp(8)
        if self.stop == "oab": return
        a(f"s_setprio 0\ns_mul_i32 s{sT+9}, s{sU}, 5120\ns_lshl_b32 s{sT+10}, s{sT+9}, 3")
        self.poll(CNTA, 4, prio=0)
        a(f"s_cmp_eq_u32 s{sU}, 3\ns_cbranch_scc1 L_ga_poll")
        for x in bk(0, R, 3) + bk(3, R + 15360, 3): a(x)
        for ks in range(NW):
            for l in reads(ks): a(l)
        self.signal(CNTA)
        if "late7" not in EXP:
            self.poll(CNTA, 8, prio=0)
            for x in bk(7, 0, 3) + bk(10, 15360, 3): a(x)
        self.poll(FAS, 1, prio=0)
        a("s_branch L_ga_go")
        a.label("L_ga_poll")
        for ks in range(NW):
            for l in reads(ks): a(l)
        self.signal(CNTA)
        a("s_setprio 2")
        self.flag_poll(WS_FA, 252)
        a("s_setprio 0")
        self.signal(FAS)
        a.label("L_ga_go")
        self.stamp(9)
        for ks in range(20):
            if ks and ks % 4 == 0: a(f"s_add_u32 s{sT+8}, s{sT+8}, 4096")
            a(f"buffer_load_dwordx4 v[{OF+4*ks}:{OF+4*ks+3}], v{vLin}, s[{sWS}:{sWS+3}], s{sT+8} offen offset:{(ks%4)*1024} sc1")
        ex = 0; d2 = []
        if "late7" in EXP:
            self.poll(CNTA, 8, prio=0)
            for x in bk(7, 0, 4): a(x)
            d2 = guarded(bk(11, 20480, 4), 2); ex = 5
        L = a.uid("Lb6")
        d2.append(f"s_cmp_lg_u32 s{sU}, 3\ns_cbranch_scc1 {L}\n" + "\n".join(bk(3, R + 15360, 4)) + f"\n{L}:")
        d3 = bk(13, 30720, 4) + guarded(bk(17, 51200, 4), 3)
        for ks in range(20):
            if ks < 4: a(f"s_waitcnt vmcnt({19-ks+ex})")
            if ks == 4: a(f"s_waitcnt vmcnt({ex})")
            if ks >= NW: a(f"s_waitcnt lgkmcnt({min(10, 10*(19-ks))})")
            if self.stamps == 5 and ks == 0: self.stamp(1)
            f = WF + 20 * (ks % NW)
            r = reads(ks + NW) if ks + NW < 20 else []
            for t in range(5):
                C = "0" if ks == 0 else f"v[{ACC+4*t}:{ACC+4*t+3}]"
                a(f"v_mfma_f32_16x16x32_bf16 v[{ACC+4*t}:{ACC+4*t+3}], v[{f+4*t}:{f+4*t+3}], v[{OF+4*ks}:{OF+4*ks+3}], {C}")
                for l in r[2*t:2*t+2]: a(l)
                if ks >= 4 and d2 and t in (0, 2, 4): a(d2.pop(0))
                if ks >= 9 and d3 and t in (0, 2, 4): a(d3.pop(0))
            if ks == 6: self.signal(CNTA)
            if ks == 8:
                a("s_waitcnt vmcnt(0)"); self.signal(BWOL)
                self.poll(CNTA, 12, prio=0)
                if self.stamps == 5: self.stamp(2)
            if ks == 13: self.signal(CNTA)
            if ks == 17:
                a("s_waitcnt vmcnt(0)"); self.signal(LA2)
                a(f"ds_read_b32 v{vT}, v{vMISC} offset:{CNTA}")
        assert not d2 and not d3
        self.check_fast(vT, CNTA, 16, prio=0)
        for t in range(5): a(f"ds_write_b128 v25, v[{ACC+4*t}:{ACC+4*t+3}] offset:{1024*t}")
        a(f"ds_add_u32 v24, v{vONE} offset:{ACCA}")
        self.stamp(10)
```

```python
from asmlib import *
import struct, math

KNAME = "gated_mix__sliding_local_dilated__grouped_kv_mqa__prompt_kernel"
def f32bits(x): return struct.unpack("<I", struct.pack("<f", x))[0]
XM = 0; XH = 81920; R = 102400; MISC = R + 60416; LDS_SIZE = 163840
P0W = XH; GATE = R + 56320; QBUF = R + 46080
SLOT = [R+15360, R+25600, R+35840, R+46080, R+5120, XH, XH+10240, R+15360, R+25600, R+35840]
RING = [R, R+15360, R+30720]
QA = R; KA = R + 10240; VA = R + 23040
RED = R + 35840
ARING = [R, R+10240, R+20480]
ACCAREA = 81920
FLW = 0; FREE = 64; KVR = 40; P0D = 116; KMAX = 120; GDONE = 124; ONES = 128; CNTG = 144
SCR = R + 58368; GBUF = 256; SAMEX = 112; FAS = 592; BW0 = 596; CNTA = 512; BWOL = 560; LA1 = 564; LA2 = 568; PAIR = 576; ACCA = 608; TAGO = 632
WS_GRAN = 0x1000; WS_K = 0x40000; WS_V = 0x60000; WS_FA = 0x80000; WS_FB = 0xA0000; WS_FH = 0xC0000; WS_HALO = 0x1000000; WS_OAB = 0x100000
WS_DBG = 0x700000; WS_DUMP = 0x800000; WS_SIZE = 0x4000000
CSC = f32bits(20 ** -0.5 * math.log2(math.e))
LOG2E = f32bits(math.log2(math.e))
THR = f32bits(2.0 ** -64)
sW = 3; sRB = 4; sHG = 5; sTAG = 6; sCNT = 7; sK = 8; sV = 9; sKA = 12; sKB = 13; sTAU = 14; sU = 15; sSX = 39
sX = 40; sWQKV = 44; sAWO = 48; sWQ = 52; sWKV = 56; sBWO = 60; sGATE = 64; sOUT = 68; sWS = 72
sT = 76; sST = 88
vL = 1; vMISC = 2; vONE = 3; vSIG = 19; vT = 4
vW5 = 10; vXO = 15; vLin = 17
S_ = [20, 36, 52, 68]; O_ = [84, 100, 116, 132]; Q_ = [148, 154, 160, 166]; K_ = [172, 178, 184, 190]; V_ = [196, 204, 212, 220]
vIDX = 228; vKa = 229; vKb = 230; vVa = 231; vG = 232; vE = 234

import os
EXP = os.environ.get('EXP', 'late7')
GPOLL_AFTER = int(os.environ.get('GPA', '5'))
MSCHED = os.environ.get('MSCHED', 'old')
KVSC = '' if 'kvplain' in EXP else ' sc1'
MPRE = int(os.environ.get('MPRE', '6')); MIL = eval(os.environ.get('MIL', '(0, 2)'))
PRE0 = 10
RPI = int(os.environ.get('RPI', '3'))
TOUCH = eval(os.environ.get('TOUCH', '[]'))
DSL = eval(os.environ.get('DSL', '[(2,5)]*4'))
GP = int(os.environ.get('GP', '0'))
gWO = 20; gXF = 24; gHF = 226; gWm = 28; gFL = 29; gTC = 30; ACCG = 32; GF = [104, 148]
lQa = 192; lKa = 193; lVt = 195; lVo = 197; lMK = 208; lPA = 205; lPH = 224

class Gen:
    def __init__(self, stamps=0, stop=None):
        self.a = Asm(); self.stamps = stamps; self.stop = stop; self.ool = []
    def stamp(self, i):
        if self.stamps: self.a(f"s_memrealtime s[100:101]\ns_waitcnt lgkmcnt(0)\ns_mov_b32 s{sST+i}, s100")
    def cstamp(self, i):
        if self.stamps: self.a(f"s_memtime s[100:101]\ns_waitcnt lgkmcnt(0)\ns_mov_b32 s{sST+i}, s100")
    def srd(self, d, ptr, size):
        self.a(f"s_mov_b32 s{d}, s{ptr}\ns_mov_b32 s{d+1}, s{ptr+1}\ns_mov_b32 s{d+2}, {size}\ns_mov_b32 s{d+3}, 0x20000")
    def poll(self, off, val, prio=None, tmp=vT, st=sT, vaddr=vMISC, sleep=0):
        a = self.a; L = a.uid("Lp"); D = a.uid("Lpd")
        a(f"s_mov_b32 s{sCNT}, 0x20000")
        a.label(L)
        a(f"ds_read_b32 v{tmp}, v{vaddr} offset:{off}\ns_waitcnt lgkmcnt(0)")
        if prio is not None: a("s_setprio 2")
        a(f"v_readfirstlane_b32 s{st}, v{tmp}")
        if prio is not None: a(f"s_setprio {prio}")
        a(f"s_cmp_ge_u32 s{st}, {val}\ns_cbranch_scc1 {D}")
        if sleep: a(f"s_sleep {sleep}")
        a(f"s_sub_u32 s{sCNT}, s{sCNT}, 1\ns_cmp_lg_u32 s{sCNT}, 0\ns_cbranch_scc1 {L}")
        a.label(D)
    def check_or_poll(self, vflag, off, val, prio=None):
        a = self.a; D = a.uid("Lck")
        if prio is not None: a("s_setprio 2")
        a(f"v_readfirstlane_b32 s{sT}, v{vflag}")
        if prio is not None: a(f"s_setprio {prio}")
        a(f"s_cmp_ge_u32 s{sT}, {val}\ns_cbranch_scc1 {D}")
        self.poll(off, val, prio=prio, tmp=vflag)
        a.label(D)
    def signal(self, off, vaddr=None):
        if vaddr is None:
            self.a(f"ds_add_u32 v{vSIG}, v{vONE} offset:{off}")
        else:
            self.a(f"s_mov_b64 exec, 1\nds_add_u32 v{vaddr}, v{vONE} offset:{off}\ns_mov_b64 exec, -1")
    def dup_stores(self, n0):
        a = self.a
        blk = a.ins[n0:]; del a.ins[n0:]
        X = a.uid("Lxs"); B = a.uid("Lxb")
        a(f"s_cmp_eq_u32 s{sSX}, 0\ns_cbranch_scc1 {X}")
        for i in blk: a(i.text.replace(" sc1", ""))
        a.label(B)
        self.ool += [Ins(X + ":")] + blk + [Ins(f"s_branch {B}")]
    def capture(self, fn):
        n = len(self.a.ins); fn(); out = self.a.ins[n:]; del self.a.ins[n:]; return out
    def check_fast(self, vflag, off, val, prio=None, vaddr=vMISC):
        a = self.a; S = a.uid("Lslow"); B = a.uid("Lback")
        if prio is not None: a("s_setprio 2")
        a(f"v_readfirstlane_b32 s{sT}, v{vflag}")
        if prio is not None: a(f"s_setprio {prio}")
        a(f"s_cmp_lt_u32 s{sT}, {val}\ns_cbranch_scc1 {S}")
        a.label(B)
        def slow():
            a.label(S); self.poll(off, val, prio=prio, tmp=vflag, vaddr=vaddr); a(f"s_branch {B}")
        self.ool += self.capture(slow)
    def xfrag_lane(self, d):
        self.a(f"""
v_and_b32 v{vT}, 15, v{vL}
v_lshrrev_b32 v{vT+1}, 1, v{vT}
v_lshrrev_b32 v{vT+2}, 4, v{vL}
v_xor_b32 v{vT+1}, v{vT+1}, v{vT+2}
v_lshlrev_b32 v{vT+1}, 4, v{vT+1}
v_lshl_add_u32 v{d}, v{vT}, 7, v{vT+1}
""")
    def tr_base(self, d, stride, swap=True):
        a = self.a
        if swap:
            a(f"v_lshrrev_b32 v{vT}, 5, v{vL}\nv_bfe_u32 v{vT+1}, v{vL}, 2, 3\nv_lshl_add_u32 v{vT}, v{vT}, 4, v{vT+1}")
        else:
            a(f"v_lshrrev_b32 v{vT}, 4, v{vL}\nv_bfe_u32 v{vT+1}, v{vL}, 2, 2\nv_lshl_add_u32 v{vT}, v{vT}, 3, v{vT+1}")
        a(f"v_mul_u32_u24 v{vT}, {stride}, v{vT}\nv_and_b32 v{vT+1}, 3, v{vL}\nv_lshl_add_u32 v{d}, v{vT+1}, 3, v{vT}")
    def swap23(self, d, s, t):
        self.a(f"""
v_and_b32 v{d}, 0x13, v{s}
v_and_b32 v{t}, 4, v{s}
v_lshl_or_b32 v{d}, v{t}, 1, v{d}
v_bfe_u32 v{t}, v{s}, 3, 1
v_lshl_or_b32 v{d}, v{t}, 2, v{d}
""")
    def dma(self, voff, srd, soff, m0expr):
        self.a(m0expr)
        self.a(f"buffer_load_dwordx4 v{voff}, s[{srd}:{srd+3}], {soff} offen lds")
    def issue_w160(self, srd, s_koff, lds_base, p0=0, p1=10):
        a = self.a
        for p in range(p0, p1):
            if p == 5 or (p == p0 and p0 > 5): a(f"s_add_u32 s{sT+3}, s{s_koff}, 40960")
            so = s_koff if p < 5 else sT + 3
            self.dma(vW5 + p % 5, srd, f"s{so}", f"s_mov_b32 m0, {lds_base + 1024*p}")

    def w160(self):
        a = self.a
        a(f"s_mul_i32 s{sT+7}, s{sHG}, 160")
        for p in range(5):
            a(f"""
v_add_u32 v{vT}, {64*p}, v{vL}
v_mul_u32_u24 v{vT+1}, 6554, v{vT}
v_lshrrev_b32 v{vT+1}, 16, v{vT+1}
v_mul_u32_u24 v{vT+2}, 10, v{vT+1}
v_sub_u32 v{vT}, v{vT}, v{vT+2}
""")
            self.swap23(vT+2, vT+1, vT+3)
            a(f"v_mul_u32_u24 v{vT+2}, 1280, v{vT+2}\nv_lshl_add_u32 v{vT}, v{vT}, 4, v{vT+2}\nv_add_u32 v{vW5+p}, s{sT+7}, v{vT}")

    def prologue(self):
        a = self.a
        a(f"""
s_cmp_ge_u32 s2, 256
s_cbranch_scc1 L_end
s_load_dwordx16 s[16:31], s[0:1], 0
s_load_dwordx8 s[32:39], s[0:1], 64
s_getpc_b64 s[8:9]
L_pc0:
""")
        if self.stamps: a("s_memrealtime s[100:101]")
        a(f"""
v_lshrrev_b32 v{vT}, 6, v0
v_and_b32 v{vL}, 63, v0
s_lshr_b32 s11, s2, 3
v_readfirstlane_b32 s{sW}, v{vT}
s_lshl_b32 s{sT}, s11, 7
s_cmp_lg_u32 s{sW}, 0
s_cbranch_scc1 L_nopf
s_mov_b32 exec_hi, 0
v_lshlrev_b32 v{vT}, 12, v{vL}
v_add_u32 v{vT}, s{sT}, v{vT}
v_min_u32 v{vT}, L_code_end-L_pc0, v{vT}
v_mov_b32 v{vT+1}, s9
v_add_co_u32 v{vT}, vcc, s8, v{vT}
v_addc_co_u32 v{vT+1}, vcc, 0, v{vT+1}, vcc
global_load_dword v0, v[{vT}:{vT+1}], off
s_mov_b64 exec, -1
L_nopf:
s_and_b32 s10, s2, 7
s_and_b32 s{sRB}, s11, 3
s_lshl2_add_u32 s{sRB}, s10, s{sRB}
s_lshr_b32 s{sHG}, s11, 2
s_and_b32 s{sKA}, s{sRB}, 1
s_mul_i32 s{sKA}, s{sKA}, 5
s_and_b32 s{sKB}, s{sRB}, 3
s_lshl_b32 s{sKB}, s{sKB}, 2
s_lshr_b32 s{sKB}, 0x8350, s{sKB}
s_and_b32 s{sKB}, s{sKB}, 15
s_lshr_b32 s{sTAU}, s{sHG}, 1
v_mov_b32 v{vMISC}, {MISC}
v_lshlrev_b32 v{vLin}, 4, v{vL}
v_lshrrev_b32 v{vT}, 3, v{vL}
v_mul_u32_u24 v{vT}, 1280, v{vT}
v_lshrrev_b32 v{vT+1}, 4, v{vL}
v_xor_b32 v{vT+1}, v{vT+1}, v{vL}
v_and_b32 v{vT+1}, 7, v{vT+1}
v_lshl_add_u32 v{vXO}, v{vT+1}, 4, v{vT}
v_xor_b32 v{vXO+1}, 64, v{vXO}
v_add_u32 v{vXO+1}, 10240, v{vXO+1}
s_lshl2_add_u32 s{sT+8}, s{sRB}, s{sTAU}
s_mul_i32 s{sT+9}, s{sT+8}, 20480
s_lshl_b32 s{sT+10}, s{sTAU}, 11
s_lshr_b32 s{sT}, s{sW}, 1
s_add_u32 s{sT}, s{sT}, 8                  ; kb = 8 + (w>>1)
s_lshl_b32 s{sT+1}, s{sT}, 7
s_add_u32 s{sT+1}, s{sT+1}, s{sT+9}        ; soffset (x)
s_lshl_b32 s{sT+2}, s{sT}, 13
s_add_u32 s{sT+2}, s{sT+2}, s{sT+10}
s_and_b32 s{sT+3}, s{sW}, 1
s_lshl_b32 s{sT+4}, s{sT+3}, 10
s_add_u32 s{sT+2}, s{sT+2}, s{sT+4}        ; m0 (x)
s_cmp_eq_u32 s{sT+3}, 1
s_cselect_b64 vcc, -1, 0
v_cndmask_b32 v18, v{vXO}, v{vXO+1}, vcc
s_xor_b32 s{sT+4}, s{sT+4}, 1024
s_add_u32 s{sT+5}, s{sT+4}, {GATE}
s_cmp_eq_u32 s{sW}, 4
s_cselect_b32 s{sT+4}, 24576, s{sT+4}
s_cselect_b32 s{sT+5}, {P0W+24576}, s{sT+5}
s_cmp_lt_u32 s{sW}, 4
s_cselect_b32 s{sT+1}, s{sT+1}, s{sT+4}
s_cselect_b32 s{sT+2}, s{sT+2}, s{sT+5}
s_cselect_b64 vcc, -1, 0
v_cndmask_b32 v18, v{vLin}, v18, vcc
s_lshl_b32 s{sT+4}, s{sW}, 7
s_add_u32 s{sT+4}, s{sT+4}, s{sT+9}
s_lshl_b32 s{sT+5}, s{sW}, 13
s_add_u32 s{sT+5}, s{sT+5}, s{sT+10}
s_lshl_b32 s{sT+6}, s{sW}, 10
""")
        a("s_waitcnt lgkmcnt(0)")
        if self.stamps: a(f"s_mov_b32 s{sST}, s100")
        if self.stamps == 4: self.stamp(5)
        self.srd(sX, 16, 2621440)
        a(f"""
s_mov_b32 m0, s{sT+5}
s_bitcmp1_b32 s{sHG}, 0
buffer_load_dwordx4 v{vXO}, s[{sX}:{sX+3}], s{sT+4} offen lds
s_cselect_b32 s{sWKV}, s28, s26
s_cselect_b32 s{sWKV+1}, s29, s27
s_add_u32 m0, s{sT+5}, 1024
s_mov_b32 s{sWKV+2}, 25600
buffer_load_dwordx4 v{vXO+1}, s[{sX}:{sX+3}], s{sT+4} offen lds
s_mov_b32 s{sWKV+3}, 0x20000
""")
        for i in range(3):
            a(f"s_add_u32 m0, s{sT+6}, {P0W}")
            a(f"s_nop 0\nbuffer_load_dwordx4 v{vLin}, s[{sWKV}:{sWKV+3}], s{sT+6} offen lds")
            if i < 2: a(f"s_add_u32 s{sT+6}, s{sT+6}, 8192")
        a(f"""
s_cmp_eq_u32 s{sW}, 4
s_cselect_b32 s{sGATE}, s{sWKV}, s32
s_cselect_b32 s{sGATE+1}, s{sWKV+1}, s33
s_cselect_b32 s{sGATE+2}, s{sWKV+2}, 1280
s_cmp_lt_u32 s{sW}, 4
s_cselect_b32 s{sGATE}, s16, s{sGATE}
s_cselect_b32 s{sGATE+1}, s17, s{sGATE+1}
s_cselect_b32 s{sGATE+2}, s{sX+2}, s{sGATE+2}
s_mov_b32 s{sGATE+3}, 0x20000
s_mov_b32 m0, s{sT+2}
""")
        self.srd(sWS, 38, WS_SIZE)
        a(f"""
buffer_load_dwordx4 v18, s[{sGATE}:{sGATE+3}], s{sT+1} offen lds
""")
        if self.stamps == 4: self.stamp(6)
        a(f"""
v_lshlrev_b32 v{vSIG}, 2, v{vL}
v_add_u32 v{vSIG}, {SCR}, v{vSIG}
v_cmp_eq_u32 vcc, 0, v{vL}
s_cmp_lt_u32 s{sW}, 4
v_cndmask_b32 v{vSIG}, v{vSIG}, v{vMISC}, vcc
v_cndmask_b32 v{vONE}, 0, 1, vcc
s_cbranch_scc1 L_M
""")

    def kv_first(self):
        for l in self.loadK(0) + self.loadV(0) + self.loadK(1) + self.loadV(1) + self.loadK(2) + self.loadV(2) + self.loadK(3)[:(2 if MSCHED == 'old' else 1)]: self.a(l)
    def m_setup2(self):
        a = self.a; ACC = 232
        a(f"""
v_and_b32 v{vT}, 31, v{vL}
v_lshrrev_b32 v{vT+1}, 5, v{vL}
v_min_u32 v{vKb}, 32, v{vL}
v_lshlrev_b32 v{vKb}, 3, v{vKb}
v_mul_u32_u24 v{vT+2}, 336, v{vT+1}
v_lshl_add_u32 v{vVa}, v{vT}, 4, v{vT+2}
v_mov_b32 v{vT+3}, 0x7fffffff
v_cmp_lt_u32 vcc, 20, v{vT}
v_cndmask_b32 v{vVa}, v{vVa}, v{vT+3}, vcc
s_and_b32 s10, s{sW}, 1
s_mul_i32 s{sK}, s10, 45056
s_add_u32 s{sK}, s{sK}, {WS_K}
s_mul_i32 s{sV}, s10, 49152
s_add_u32 s{sV}, s{sV}, {WS_V}
v_mul_u32_u24 v{vT+2}, 160, v{vT}
v_lshl_add_u32 v{vT+2}, v{vT+1}, 4, v{vT+2}
s_mul_i32 s{sT}, s{sW}, 40
s_xor_b32 s{sT+1}, s{sW}, 1
s_mul_i32 s{sT+1}, s{sT+1}, 40
s_add_u32 s{sT}, s{sT}, {QBUF}
s_add_u32 s{sT+1}, s{sT+1}, {QBUF}
v_add_u32 v10, s{sT}, v{vT+2}
v_add_u32 v11, s{sT+1}, v{vT+2}
v_lshl_add_u32 v12, v{vT}, 2, v{vMISC}
v_mov_b32 v{vIDX}, 0xdddddddd
v_and_b32 v{vT}, 15, v{vL}
v_lshrrev_b32 v{vT+1}, 4, v{vL}
s_lshl_b32 s{sT+1}, s{sW}, 4
v_add_u32 v{vT}, s{sT+1}, v{vT}
v_mul_u32_u24 v13, 160, v{vT}
v_lshl_add_u32 v13, v{vT+1}, 3, v13
v_add_u32 v13, {QBUF}, v13
v_lshl_add_u32 v14, v{vT}, 2, v{vMISC}
""")
        for i in range(12): a(f"v_mov_b64 v[{ACC+2*i}:{ACC+2*i+1}], 0")
        for i in range(84, 148, 2): a(f"v_mov_b64 v[{i}:{i+1}], 0")
        for i in range(4): a(f"v_mov_b64 v[{V_[3]+2*i}:{V_[3]+2*i+1}], 0")


    def kb_of(self, d, i):
        self.a(f"s_add_u32 s{d}, s{sKB}, {i}\ns_cmp_ge_u32 s{d}, 10\ns_cselect_b32 s{sT+1}, 10, 0\ns_sub_u32 s{d}, s{d}, s{sT+1}")
    def m_pre(self):
        a = self.a
        vXB = 76; vWa = 77; vWb = 78; vGB = 79; vFL = 80; ACC = 232
        a.label("L_M")
        a(f"""
s_lshl2_add_u32 s{sT+8}, s{sRB}, s{sW}
s_mul_i32 s{sT+8}, s{sT+8}, 20480
s_lshl_b32 s{sT+9}, s{sW}, 11
s_cmp_lg_u32 s{sW}, 0
s_cbranch_scc1 L_m_noinit
v_mov_b64 v[{vT}:{vT+1}], 0
v_mov_b64 v[{vT+2}:{vT+3}], 0
v_add_u32 v{vT+4}, v{vLin}, v{vMISC}
ds_write_b128 v{vT+4}, v[{vT}:{vT+3}]
v_mov_b32 v{vT}, 0x3f803f80
v_mov_b32 v{vT+1}, 0x3f803f80
ds_write_b64 v{vMISC}, v[{vT}:{vT+1}] offset:{ONES}
L_m_noinit:
""")
        def xissue(i):
            self.kb_of(sT+5, i)
            a(f"s_lshl_b32 s{sT+6}, s{sT+5}, 7\ns_add_u32 s{sT+6}, s{sT+6}, s{sT+8}\ns_lshl_b32 s{sT+7}, s{sT+5}, 13\ns_add_u32 s{sT+7}, s{sT+7}, s{sT+9}")
            for e in range(2):
                self.dma(vXO+e, sX, f"s{sT+6}", f"s_add_u32 m0, s{sT+7}, {XM + e*1024}")
        self.xfrag_lane(vXB)
        a(f"v_add_u32 v{vXB}, s{sT+9}, v{vXB}")
        self.tr_base(vWa, 160)
        a(f"""
v_add_u32 v{vWa}, {XH}, v{vWa}
v_and_b32 v{vT}, 48, v{vL}
v_add_u32 v{vGB}, {GATE}, v{vT}
""")
        AD = 148
        def setup():
            self.m_setup2()
            a(f"v_add_u32 v{vWb}, {R+35840-XH}, v{vWa}")
            for i in range(10):
                a(f"s_add_u32 s{sT+2}, s{sKB}, {i}\ns_cmp_ge_u32 s{sT+2}, 10\ns_cselect_b32 s{sT+3}, 10, 0\ns_sub_u32 s{sT+2}, s{sT+2}, s{sT+3}")
                a(f"""
s_lshl_b32 s{sT+3}, s{sT+2}, 13
s_lshl_b32 s{sT+2}, s{sT+2}, 7
v_add_u32 v{AD+3*i}, s{sT+3}, v{vXB}
v_add_u32 v{AD+3*i+2}, s{sT+2}, v{vGB}
v_xor_b32 v{AD+3*i+1}, 64, v{AD+3*i}
""")
        setup()
        a(f"s_cmp_eq_u32 s{sW}, s{sTAU}\ns_cbranch_scc1 L_m_nox1")
        for i in range(5): xissue(i)
        if self.stamps == 4: self.stamp(7)
        a("s_waitcnt vmcnt(10)\ns_branch L_m_nox2")
        a.label("L_m_nox1")
        a("s_waitcnt vmcnt(0)")
        a.label("L_m_nox2")
        a("s_waitcnt lgkmcnt(0)\ns_barrier")
        self.stamp(1)
        FB = [20, 48]
        def reads(j):
            i = j >> 1; hs = j & 1; f = FB[hs]; sl = SLOT[i]
            wb, woff = (vWb, sl - (R+35840)) if sl >= R+35840 else (vWa, sl - XH)
            g = [[f"ds_read_b128 v[{f}:{f+3}], v{AD+3*i+hs}", f"ds_read_b128 v[{f+24}:{f+27}], v{AD+3*i+2} offset:{hs*64}"]]
            for t in range(5):
                ff = f + 4 + 4*t
                g.append([f"ds_read_b64_tr_b16 v[{ff}:{ff+1}], v{wb} offset:{woff + hs*5120 + 32*t}",
                          f"ds_read_b64_tr_b16 v[{ff+2}:{ff+3}], v{wb} offset:{woff + hs*5120 + 32*t + 1280}"])
            return g
        def mfma(j, n):
            f = FB[j & 1]; t = (n + 5) % 6
            return f"v_mfma_f32_16x16x32_bf16 v[{ACC+4*t}:{ACC+4*t+3}], v[{f+4+4*t}:{f+7+4*t}], v[{f}:{f+3}], v[{ACC+4*t}:{ACC+4*t+3}]"
        need_free = {0, 1, 2, 3, 4, 5}
        if self.stamps == 4: self.stamp(8)
        self.poll(FLW + 0, 1)
        if self.stamps == 4: self.stamp(9); self.cstamp(4)
        a("s_waitcnt vmcnt(8)")
        for g in reads(0):
            for l in g: a(l)
        a(f"ds_read_b32 v{vFL}, v{vMISC} offset:{FLW + 4}")
        for j in range(20):
            i = j >> 1
            nxt = reads(j+1) if j < 19 else None
            for n in range(6):
                a(f"s_waitcnt lgkmcnt({10 if nxt else 10 - 2*n})")
                a(mfma(j, n))
                if n == 0 and (j & 1) and j < 19:
                    self.check_fast(vFL, FLW + 4*(i+1), 1)
                    if i + 1 < 5: a(f"s_waitcnt vmcnt({8 - 2*(i+1)})")
                if n == 0 and j == 19:
                    a(f"v_readfirstlane_b32 s11, v{vFL}\ns_cmp_eq_u32 s11, 0\ns_cbranch_scc1 L_m_nokv1")
                    self.kv_first()
                    a.label("L_m_nokv1")
                if nxt:
                    for l in nxt[n]: a(l)
                if self.stamps == 7 and n == 5 and j in (1, 5, 9, 13, 17): self.stamp(5 + j // 4)
                if n == 5 and (j & 1) and j < 19:
                    if i in need_free: self.signal(FREE + 4*i)
                    a(f"ds_read_b32 v{vFL}, v{vMISC} offset:{FLW + 4*(i+2)}")
                    if i == 8: a(f"ds_read_b32 v{vFL+1}, v{vMISC} offset:{FREE+12}")
        self.check_fast(vFL+1, FREE + 12, 4)
        if self.stamps == 4: self.cstamp(10)
        self.stamp(2)
        a(f"s_mov_b32 s{sT}, {CSC}")
        for b in range(4): a(f"v_mov_b64 v[{Q_[b]+4}:{Q_[b]+5}], 0")
        g = ACC + 20
        a(f"v_mul_f32 v{g}, {0x80000000 | LOG2E}, v{g}\nv_exp_f32 v{g}, v{g}")
        for t in range(5):
            c = ACC + 4*t
            for r in range(4): a(f"v_mul_f32 v{c+r}, s{sT}, v{c+r}")
            a(f"v_cvt_pk_bf16_f32 v{c}, v{c}, v{c+1}\nv_cvt_pk_bf16_f32 v{c+1}, v{c+2}, v{c+3}")
            a(f"ds_write_b64 v13, v[{c}:{c+1}] offset:{32*t}")
        a(f"""
v_add_f32 v{g}, 1.0, v{g}
v_rcp_f32 v{g}, v{g}
s_mov_b64 exec, 0xffff
ds_write_b32 v14, v{g} offset:{GBUF}
s_mov_b64 exec, -1
s_waitcnt lgkmcnt(0)
s_barrier
""")
        self.stamp(3)

    def g_pre(self):
        a = self.a
        a.label("L_G")
        a(f"s_setprio 1\ns_sub_u32 s{sU}, s{sW}, 4\ns_cmp_eq_u32 s{sW}, 7\ns_cbranch_scc1 L_P0")
        self.srd(sWQ, 24, 819200)
        self.w160()
        a(f"""
s_add_u32 s{sT+4}, s{sKB}, s{sU}
s_cmp_ge_u32 s{sT+4}, 10
s_cselect_b32 s{sT+1}, 10, 0
s_sub_u32 s{sT+4}, s{sT+4}, s{sT+1}
s_mul_i32 s{sT+4}, s{sT+4}, 81920
s_mul_i32 s{sT+5}, s{sU}, 10240
s_add_u32 s{sT+3}, s{sT+4}, 40960
""")
        gs = self.capture(self.g_setup)
        cuts = [k for k in range(1, len(gs)) if gs[k].mn in ("v_add_u32", "v_mov_b64", "v_mul_u32_u24") and not gs[k-1].mn.startswith(("s_cmp", "v_cmp"))
                and not any(gs[q].mn.startswith("s_cselect") for q in range(k, min(k+3, len(gs))))]
        pos = [min(cuts, key=lambda c: abs(c - (p+1)*len(gs)//10)) for p in range(9)] + [len(gs)]
        k = 0
        for p in range(10):
            self.dma(vW5 + p % 5, sWQ, f"s{sT+4 if p < 5 else sT+3}", f"s_add_u32 m0, s{sT+5}, {R+15360+1024*p}")
            a.ins += gs[k:pos[p]]; k = pos[p]
        if self.stamps == 4: self.stamp(7)
        a("s_waitcnt vmcnt(10)\ns_barrier")
        self.stamp(1)
        def issue(i):
            self.kb_of(sT+4, i)
            a(f"s_mul_i32 s{sT+4}, s{sT+4}, 81920")
            self.issue_w160(sWQ, sT+4, SLOT[i])
        def landed(i, cnt):
            a(f"s_waitcnt vmcnt({cnt})"); self.signal(FLW + 4*i)
            if self.stamps == 7: self.stamp({0:5,3:6,7:7,9:8, 1:5,4:6,8:7, 2:5,5:6,6:7}[i])
        a(f"s_cmp_eq_u32 s{sW}, 5\ns_cbranch_scc1 L_ld5\ns_cmp_eq_u32 s{sW}, 6\ns_cbranch_scc1 L_ld6")
        landed(0, 0); issue(3); landed(3, 0)
        self.poll(FREE + 0, 4); issue(7)
        self.poll(FREE + 4*2, 4); issue(9)
        landed(7, 10); landed(9, 0)
        a("s_branch L_g_join")
        a.label("L_ld5")
        issue(4); landed(1, 10); landed(4, 0)
        self.poll(FREE + 4*1, 4); issue(8); landed(8, 0)
        a("s_branch L_g_join")
        a.label("L_ld6")
        landed(2, 0)
        for rt in range(4):
            L = a.uid("Lxs")
            a(f"s_cmp_eq_u32 s{sTAU}, {rt}\ns_cbranch_scc1 {L}\ns_lshl_b32 s{sT+8}, s{sRB}, 2\ns_add_u32 s{sT+8}, s{sT+8}, {rt}\ns_mul_i32 s{sT+8}, s{sT+8}, 20480")
            for i in range(5, 10):
                self.kb_of(sT+5, i)
                a(f"s_lshl_b32 s{sT+6}, s{sT+5}, 7\ns_add_u32 s{sT+6}, s{sT+6}, s{sT+8}\ns_lshl_b32 s{sT+7}, s{sT+5}, 13")
                for e in range(2):
                    self.dma(vXO+e, sX, f"s{sT+6}", f"s_add_u32 m0, s{sT+7}, {XM + rt*2048 + e*1024}")
            a.label(L)
        self.poll(P0D, 1); issue(5); issue(6)
        landed(5, 10); landed(6, 0)
        a("s_branch L_g_join")
        a.label("L_P0")
        vEP = 249; vXF = 244; vWp = 248; T0 = 0;
        T0 = 240; T1 = 236
        a(f"v_mov_b32 v{vT+5}, 0\nbuffer_load_dword v{vEP}, v{vT+5}, s[{sWS}:{sWS+3}], 0 offen sc1")
        self.xfrag_lane(vXF)
        a(f"v_add_u32 v{vXF}, s{sT+10}, v{vXF}\nv_add_u32 v{vXF+2}, 40960, v{vXF}\nv_xor_b32 v{vXF+1}, 64, v{vXF}\nv_xor_b32 v{vXF+3}, 64, v{vXF+2}")
        self.tr_base(vWp, 40, swap=False)
        a(f"v_add_u32 v{vWp}, {P0W}, v{vWp}")
        a(f"s_lshl_b32 s{sT+8}, s{sT+8}, 4")
        if self.stamps == 4: self.stamp(7)
        a("s_waitcnt vmcnt(1)\ns_barrier")
        self.stamp(1)
        NB = 16
        def fr(ks): return 20 + 12 * (ks % NB)
        def reads(ks):
            f = fr(ks); kb = ks >> 1; hs = ks & 1
            xa = vXF + (2 if kb >= 5 else 0) + hs
            a(f"ds_read_b128 v[{f}:{f+3}], v{xa} offset:{(kb%5)*8192}")
            for t in range(2):
                o = ks*1280 + 32*t
                a(f"ds_read_b64_tr_b16 v[{f+4+4*t}:{f+5+4*t}], v{vWp} offset:{o}")
                a(f"ds_read_b64_tr_b16 v[{f+6+4*t}:{f+7+4*t}], v{vWp} offset:{o+160}")
        def loop(isV):
            AHEAD = 3
            for ks in range(AHEAD): reads(ks)
            for ks in range(20):
                if ks + AHEAD < 20:
                    a(f"s_waitcnt lgkmcnt({5*(AHEAD-1)})")
                else:
                    a(f"s_waitcnt lgkmcnt({5*(19-ks)})")
                    if ks == 19:
                        self.signal(P0D)
                        if self.stamps == 4: self.stamp(8)
                f = fr(ks)
                for t, T in ((0, T0), (1, T1)):
                    xf = f"v[{f}:{f+3}]"; wf = f"v[{f+4+4*t}:{f+7+4*t}]"
                    A, B = (xf, wf) if isV else (wf, xf)
                    C = "0" if ks == 0 else f"v[{T}:{T+3}]"
                    a(f"v_mfma_f32_16x16x32_bf16 v[{T}:{T+3}], {A}, {B}, {C}")
                if ks + AHEAD < 20: reads(ks + AHEAD)
        a(f"s_bitcmp1_b32 s{sHG}, 0\ns_cbranch_scc1 L_P0V")
        loop(False)
        a(f"""
v_and_b32 v{vT}, 15, v{vL}
s_and_b32 s{sT+1}, s{sT+8}, 16
v_add_u32 v{vT}, s{sT+1}, v{vT}
v_lshlrev_b32 v{vT+3}, 3, v{vT}
v_lshrrev_b32 v{vT+1}, 5, v{vL}
v_lshlrev_b32 v{vT+1}, 9, v{vT+1}
v_lshl_add_u32 v{vT}, v{vT}, 4, v{vT+1}
v_bfe_u32 v{vT+1}, v{vL}, 4, 1
v_lshl_add_u32 v{vT}, v{vT+1}, 3, v{vT}
s_lshr_b32 s{sT}, s{sT+8}, 5
s_mul_i32 s{sT}, s{sT}, 1408
s_add_u32 s{sT}, s{sT}, {WS_K}
v_mov_b32 v{vT+2}, 0
v_cvt_pk_bf16_f32 v{T0}, v{T0}, v{T0+1}
v_cvt_pk_bf16_f32 v{T0+1}, v{T0+2}, v{T0+3}
v_cvt_pk_bf16_f32 v{T1}, v{T1}, v{T1+1}
v_cvt_pk_bf16_f32 v{T1+1}, v{T1+2}, v{T1+3}
buffer_store_dwordx2 v[{T0}:{T0+1}], v{vT}, s[{sWS}:{sWS+3}], s{sT} offen sc1
s_mov_b32 exec_hi, 0
s_mov_b32 exec_lo, 0x10000
v_mov_b32 v{T1}, 0x3f803f80
v_mov_b32 v{T1+1}, 0x3f80
v_mov_b32 v{vT+3}, 256
s_mov_b32 exec_lo, 0x1ffff
buffer_store_dwordx2 v[{T1}:{T1+1}], v{vT+3}, s[{sWS}:{sWS+3}], s{sT} offen offset:1024 sc1
s_mov_b32 exec_lo, 0xffff
v_dot2_f32_bf16 v{vT+2}, v{T1}, v{T1}, v{vT+2}
v_dot2_f32_bf16 v{vT+2}, v{T1+1}, v{T1+1}, v{vT+2}
s_mov_b64 exec, -1
v_dot2_f32_bf16 v{vT+2}, v{T0}, v{T0}, v{vT+2}
v_dot2_f32_bf16 v{vT+2}, v{T0+1}, v{T0+1}, v{vT+2}
v_mov_b32 v{vT+3}, v{vT+2}
v_permlane16_swap_b32 v{vT+2}, v{vT+3}
v_add_f32 v{vT+2}, v{vT+2}, v{vT+3}
v_mov_b32 v{vT+3}, v{vT+2}
v_permlane32_swap_b32 v{vT+2}, v{vT+3}
v_add_f32 v{vT+2}, v{vT+2}, v{vT+3}
v_max_f32_dpp v{vT+2}, v{vT+2}, v{vT+2} row_ror:8 row_mask:0xf bank_mask:0xf
v_max_f32_dpp v{vT+2}, v{vT+2}, v{vT+2} row_ror:4 row_mask:0xf bank_mask:0xf
v_max_f32_dpp v{vT+2}, v{vT+2}, v{vT+2} row_ror:2 row_mask:0xf bank_mask:0xf
v_max_f32_dpp v{vT+2}, v{vT+2}, v{vT+2} row_ror:1 row_mask:0xf bank_mask:0xf
v_mov_b32 v{vT+5}, v{vT+2}
s_branch L_P0pub
""")
        a.label("L_P0V")
        loop(True)
        a(f"""
v_and_b32 v{vT}, 15, v{vL}
v_lshrrev_b32 v{vT+1}, 5, v{vL}
v_mul_u32_u24 v{vT+1}, 336, v{vT+1}
v_lshl_add_u32 v{vT+1}, v{vT}, 4, v{vT+1}
v_bfe_u32 v{vT+2}, v{vL}, 4, 1
v_lshl_add_u32 v{vT+1}, v{vT+2}, 3, v{vT+1}
s_mul_i32 s{sT}, s{sT+8}, 48
s_add_u32 s{sT}, s{sT}, {WS_V}
v_cvt_pk_bf16_f32 v{T0}, v{T0}, v{T0+1}
v_cvt_pk_bf16_f32 v{T0+1}, v{T0+2}, v{T0+3}
v_cvt_pk_bf16_f32 v{T1}, v{T1}, v{T1+1}
v_cvt_pk_bf16_f32 v{T1+1}, v{T1+2}, v{T1+3}
buffer_store_dwordx2 v[{T0}:{T0+1}], v{vT+1}, s[{sWS}:{sWS+3}], s{sT} offen sc1
s_mov_b32 exec_lo, 0x00100010
s_mov_b32 exec_hi, 0x00100010
v_mov_b32 v{T1}, 0x3f803f80
v_mov_b32 v{T1+1}, 0x3f803f80
s_mov_b32 exec_lo, 0x001f001f
s_mov_b32 exec_hi, 0x001f001f
buffer_store_dwordx2 v[{T1}:{T1+1}], v{vT+1}, s[{sWS}:{sWS+3}], s{sT} offen offset:256 sc1
s_mov_b64 exec, -1
v_mov_b32 v{vT+5}, 0
""")
        a.label("L_P0pub")
        a(f"""
s_waitcnt vmcnt(2)
v_readfirstlane_b32 s{sTAG}, v{vEP}
s_mul_i32 s{sTAG}, s{sTAG}, 0x41C64E6D
s_add_u32 s{sTAG}, s{sTAG}, 0x3039
v_mov_b32 v{vT+4}, s{sTAG}
s_getreg_b32 s{sT+11}, hwreg(HW_REG_XCC_ID, 0, 4)
v_add_u32 v{vT+5}, 15, v{vT+5}
v_and_b32 v{vT+5}, -16, v{vT+5}
v_or_b32 v{vT+5}, s{sT+11}, v{vT+5}
s_lshl_b32 s{sT}, s2, 3
s_add_u32 s{sT}, s{sT}, {WS_GRAN}
v_mov_b32 v{vT}, 0
s_waitcnt vmcnt(0)
s_mov_b64 exec, 1
buffer_store_dwordx2 v[{vT+4}:{vT+5}], v{vT}, s[{sWS}:{sWS+3}], s{sT} offen sc1
ds_write_b32 v{vMISC}, v{vT+4} offset:{TAGO}
s_mov_b64 exec, -1
""")
        self.stamp(2)
        self.w160()
        self.g_setup()
        self.w_stage0(3)
        self.poll(FREE + 4*GPOLL_AFTER, 4)
        a(f"""
v_lshlrev_b32 v{vT}, 5, v{vL}
s_movk_i32 s{sT}, {WS_GRAN}
s_mov_b32 s{sCNT}, 0x8000
""")
        if self.stamps == 7: self.stamp(5)
        a(f"""
L_gpoll:
buffer_load_dwordx4 v[120:123], v{vT}, s[{sWS}:{sWS+3}], s{sT} offen sc1
buffer_load_dwordx4 v[124:127], v{vT}, s[{sWS}:{sWS+3}], s{sT} offen offset:16 sc1
s_waitcnt vmcnt(0)
v_cmp_eq_u32 vcc, s{sTAG}, v120
v_cmp_eq_u32 s[{sT+2}:{sT+3}], s{sTAG}, v122
v_cmp_eq_u32 s[{sT+4}:{sT+5}], s{sTAG}, v124
v_cmp_eq_u32 s[{sT+6}:{sT+7}], s{sTAG}, v126
s_and_b64 vcc, vcc, s[{sT+2}:{sT+3}]
s_and_b64 s[{sT+4}:{sT+5}], s[{sT+4}:{sT+5}], s[{sT+6}:{sT+7}]
s_and_b64 vcc, vcc, s[{sT+4}:{sT+5}]
s_cmp_eq_u64 vcc, -1
s_cbranch_scc1 L_gdone
s_sleep 4
s_sub_u32 s{sCNT}, s{sCNT}, 1
s_cmp_lg_u32 s{sCNT}, 0
s_cbranch_scc1 L_gpoll
L_gdone:
""")
        if self.stamps == 7: self.stamp(6); a(f"s_mov_b32 s{sST+10}, s{sCNT}")
        self.signal(KVR)
        a(f"""
s_bitcmp1_b32 s2, 0
s_cselect_b64 vcc, -1, 0
v_cndmask_b32 v128, v121, v123, vcc
v_cndmask_b32 v129, v125, v127, vcc
s_bitcmp1_b32 s2, 1
s_cselect_b64 vcc, -1, 0
v_cndmask_b32 v128, v128, v129, vcc
v_and_b32 v128, 15, v128
v_cmp_ne_u32 vcc, s{sT+11}, v128
s_bfe_u32 s{sT+2}, s2, 0x10002
s_lshl_b32 s{sT+2}, 0x55555555, s{sT+2}
s_or_b32 s{sT+3}, vcc_lo, vcc_hi
s_and_b32 s{sT+3}, s{sT+3}, s{sT+2}
s_cselect_b32 s{sT+3}, 0, 1
v_mov_b32 v128, s{sT+3}
v_max3_f32 v121, v121, v123, v125
v_max_f32 v121, v121, v127
v_max_f32_dpp v121, v121, v121 row_ror:8 row_mask:0xf bank_mask:0xf
v_max_f32_dpp v121, v121, v121 row_ror:4 row_mask:0xf bank_mask:0xf
v_max_f32_dpp v121, v121, v121 row_ror:2 row_mask:0xf bank_mask:0xf
v_max_f32_dpp v121, v121, v121 row_ror:1 row_mask:0xf bank_mask:0xf
v_mov_b32 v122, v121
v_permlane16_swap_b32 v121, v122
v_max_f32 v121, v121, v122
v_mov_b32 v122, v121
v_permlane32_swap_b32 v121, v122
v_max_f32 v121, v121, v122
s_mov_b64 exec, 1
ds_write_b32 v{vMISC}, v121 offset:{KMAX}
ds_write_b32 v{vMISC}, v128 offset:{SAMEX}
s_cmp_lg_u32 s2, 0
s_cbranch_scc1 L_noepoch
v_mov_b32 v{vT}, 0
v_mov_b32 v{vT+4}, s{sTAG}
buffer_store_dword v{vT+4}, v{vT}, s[{sWS}:{sWS+3}], 0 offen sc1
L_noepoch:
s_mov_b64 exec, -1
""")
        a("s_branch L_g_join2")
        a.label("L_g_join")
        self.w_stage0(4)
        a.label("L_g_join2")
        a("s_waitcnt vmcnt(0) lgkmcnt(0)")
        self.stamp(4)
        a("s_setprio 0\ns_barrier")
        self.stamp(3)


    def w_stage0(self, npc):
        a = self.a
        if self.stop in ("pre", "nobg"): return
        self.srd(sWQKV, 18, 2457600)
        a(f"s_lshl_b32 s10, s{sU}, 10\ns_add_u32 s10, s10, {R}")
        self.poll(FREE + 4*4, 4)
        if npc == 4: self.poll(P0D, 1)
        for i in range(npc): self.dma(gWO+i, sWQKV, "s8", f"s_add_u32 m0, s10, {4096*i}")

    def g_setup(self):
        a = self.a
        a(f"s_mul_i32 s{sT}, s{sHG}, 160\ns_lshl_b32 s{sT+1}, s{sU}, 6")
        for i in range(4):
            a(f"""
v_add_u32 v{vT}, s{sT+1}, v{vL}
v_add_u32 v{vT}, {256*i}, v{vT}
v_mul_u32_u24 v{vT+1}, 2185, v{vT}
v_lshrrev_b32 v{vT+1}, 16, v{vT+1}
v_mul_u32_u24 v{vT+2}, 30, v{vT+1}
v_sub_u32 v{vT}, v{vT}, v{vT+2}
""")
            self.swap23(vT+2, vT+1, vT+3)
            a(f"""
v_mul_u32_u24 v{vT+2}, 3840, v{vT+2}
v_mul_u32_u24 v{vT+3}, 26, v{vT}
v_lshrrev_b32 v{vT+3}, 8, v{vT+3}
v_mul_u32_u24 v{vT+3}, 1120, v{vT+3}
v_lshl_add_u32 v{vT}, v{vT}, 4, v{vT+2}
v_add3_u32 v{gWO+i}, v{vT}, v{vT+3}, s{sT}
""")
        self.xfrag_lane(gHF)
        a(f"""
s_and_b32 s{sT}, s{sU}, 1
s_lshl_b32 s{sT}, s{sT}, 12
s_lshl_b32 s64, s{sKA}, 13
s_sub_u32 s65, 40960, s64
s_add_u32 s{sT+1}, s{sT}, s64
v_add_u32 v{gXF}, s{sT+1}, v{gHF}
s_add_u32 s{sT+1}, s{sT}, s65
v_add_u32 v{gXF+2}, s{sT+1}, v{gHF}
v_xor_b32 v{gXF+1}, 64, v{gXF}
v_xor_b32 v{gXF+3}, 64, v{gXF+2}
s_mul_i32 s8, s{sKA}, 245760
s_sub_u32 s9, 1228800, s8
s_lshr_b32 s{sT}, s2, 3
s_lshl2_add_u32 s{sT}, s{sT}, s{sU}
s_mul_i32 s{sT}, s{sT}, 6400
v_lshlrev_b32 v{gTC}, 7, v{vL}
v_add_u32 v{gTC}, s{sT}, v{gTC}
""")
        self.tr_base(gWm, 480)
        a(f"v_add_u32 v{gWm}, {R}, v{gWm}")
        units = self.units
        BIG = f32bits(-1.0e30)
        a(f"""
v_and_b32 v{vT}, 15, v{vL}
v_lshrrev_b32 v{vT+1}, 4, v{vL}
s_mul_i32 s{sT}, s{sU}, 40
v_mul_u32_u24 v{vT+2}, 320, v{vT}
v_lshl_add_u32 v{vT+2}, v{vT+1}, 4, v{vT+2}
s_add_u32 s{sT+1}, s{sT}, {QA}
v_add_u32 v{lQa}, s{sT+1}, v{vT+2}
s_add_u32 s{sT+1}, s{sT}, {KA}
v_add_u32 v{lKa}, s{sT+1}, v{vT+2}
v_min_u32 v{vT+3}, 7, v{vT}
v_mul_u32_u24 v{vT+3}, 320, v{vT+3}
v_lshl_add_u32 v{vT+3}, v{vT+1}, 4, v{vT+3}
v_add_u32 v{lKa+1}, s{sT+1}, v{vT+3}
v_lshrrev_b32 v{vT+2}, 2, v{vL}
v_and_b32 v{vT+3}, 3, v{vL}
v_mul_u32_u24 v{vT+4}, 320, v{vT+2}
v_lshl_add_u32 v{vT+4}, v{vT+3}, 3, v{vT+4}
s_and_b32 s{sT+2}, s{sU}, 1
s_lshl3_add_u32 s{sT+1}, s{sT+2}, s{sT}
s_add_u32 s{sT+1}, s{sT+1}, {VA}
s_mul_i32 s{sT+2}, s{sT+2}, 40
v_add_u32 v{lVt}, s{sT+1}, v{vT+4}
v_min_u32 v{vT+2}, 7, v{vT+2}
v_mul_u32_u24 v{vT+4}, 320, v{vT+2}
v_lshl_add_u32 v{vT+4}, v{vT+3}, 3, v{vT+4}
v_add_u32 v{lVt+1}, s{sT+1}, v{vT+4}
v_cmp_eq_u32 vcc, 0, v{vT+3}
v_mov_b32 v{vT+2}, {MISC+ONES}
""")
        for ui, (par, qh) in enumerate(units):
            o = (32*qh + par) * 160
            a(f"""
v_add_u32 v{vT+4}, {o+32}, v{lVt}
v_add_u32 v{vT+5}, {o+32+5120}, v{lVt+1}
v_subrev_u32 v{vT+4}, s{sT+2}, v{vT+4}
v_subrev_u32 v{vT+5}, s{sT+2}, v{vT+5}
v_cndmask_b32 v{lVo+2*ui}, v{vT+2}, v{vT+4}, vcc
v_cndmask_b32 v{lVo+2*ui+1}, v{vT+2}, v{vT+5}, vcc
""")
        a(f"""
v_mul_u32_u24 v{lPA}, 160, v{vT}
v_lshl_add_u32 v{lPA}, v{vT+1}, 3, v{lPA}
v_add_u32 v{lPA}, {R}, v{lPA}
v_lshl_add_u32 v{lPA+2}, v{vT}, 3, v{vMISC}
v_lshrrev_b32 v{vT+2}, 3, v{vT}
v_mul_u32_u24 v{vT+2}, 40960, v{vT+2}
v_and_b32 v{vT+3}, 7, v{vT}
v_lshl_add_u32 v{vT+2}, v{vT+3}, 5, v{vT+2}
v_and_b32 v{vT+3}, 1, v{vT+1}
v_lshl_add_u32 v{vT+2}, v{vT+3}, 4, v{vT+2}
v_lshrrev_b32 v{vT+3}, 1, v{vT+1}
v_lshl_add_u32 v{lPA+1}, v{vT+3}, 8, v{vT+2}
v_mul_u32_u24 v{vT+3}, 81920, v{vT+3}
v_add_u32 v{lPH}, v{vT+3}, v{vT+2}
s_cmp_eq_u32 s{sRB}, 0
s_cselect_b32 s{sT+2}, 8, 0
v_lshlrev_b32 v{vT+1}, 2, v{vT+1}
v_sub_u32 v{vT+2}, v{vT+1}, v{vT}
v_mov_b32 v{vT+3}, {BIG}
""")
        for tl in range(2):
            for r in range(4):
                a(f"""
v_add_u32 v{vT+4}, {16*tl + r - 1}, v{vT+2}
v_cmp_gt_u32 vcc, 8, v{vT+4}
v_cndmask_b32 v{lMK+8+4*tl+r}, v{vT+3}, 0, vcc
""")
                if tl == 0:
                    a(f"""
v_add_u32 v{vT+4}, {r}, v{vT+1}
v_cmp_le_u32 vcc, s{sT+2}, v{vT+4}
v_cndmask_b32 v{lMK+r}, v{vT+3}, v{lMK+8+r}, vcc
""")
                else:
                    a(f"v_mov_b32 v{lMK+4+r}, v{lMK+12+r}")
    units = [(par, qh) for qh in range(2) for par in range(2)]

    def loadK(self, b):
        k = K_[b]
        return [f"buffer_load_dwordx4 v[{k}:{k+3}], v{vLin}, s[{sWS}:{sWS+3}], s{sK} offen{KVSC}",
                f"buffer_load_dwordx2 v[{k+4}:{k+5}], v{vKb}, s[{sWS}:{sWS+3}], s{sK} offen offset:1024{KVSC}\ns_add_u32 s{sK}, s{sK}, 1408"]
    def loadV(self, b):
        v = V_[b]
        return [f"buffer_load_dwordx4 v[{v}:{v+3}], v{vVa}, s[{sWS}:{sWS+3}], s{sV} offen{KVSC}",
                f"buffer_load_dwordx4 v[{v+4}:{v+7}], v{vVa}, s[{sWS}:{sWS+3}], s{sV} offen offset:768{KVSC}\ns_add_u32 s{sV}, s{sV}, 1536"]
    def qk(self, Sn, K, Q):
        return [f"v_mfma_f32_32x32x16_bf16 v[{Sn}:{Sn+15}], v[{K}:{K+3}], v[{Q}:{Q+3}], 0",
                f"v_mfma_f32_32x32x8_bf16 v[{Sn}:{Sn+15}], v[{K+4}:{K+5}], v[{Q+4}:{Q+5}], v[{Sn}:{Sn+15}]"]
    def pv(self, O, V, P):
        return [f"v_smfmac_f32_32x32x32_bf16 v[{O}:{O+15}], v[{V}:{V+3}], v[{P}:{P+7}], v{vIDX}",
                f"v_smfmac_f32_32x32x32_bf16 v[{O}:{O+15}], v[{V+4}:{V+7}], v[{P+8}:{P+15}], v{vIDX}"]
    def flag_poll(self, ws_base, tmp):
        a = self.a; L = a.uid("Lf"); D = a.uid("Lfd")
        a(f"""
v_lshlrev_b32 v{vT}, 7, v{vL}
s_lshl_b32 s{sT}, s{sRB}, 10
s_add_u32 s{sT}, s{sT}, {ws_base}
s_mov_b32 s{sCNT}, 0x8000
s_mov_b64 exec, 0xff
{L}:
buffer_load_dwordx4 v[{tmp}:{tmp+3}], v{vT}, s[{sWS}:{sWS+3}], s{sT} offen sc1
s_waitcnt vmcnt(0)
v_cmp_eq_u32 vcc, s{sTAG}, v{tmp}
v_cmp_eq_u32 s[{sT+2}:{sT+3}], s{sTAG}, v{tmp+1}
v_cmp_eq_u32 s[{sT+4}:{sT+5}], s{sTAG}, v{tmp+2}
v_cmp_eq_u32 s[{sT+6}:{sT+7}], s{sTAG}, v{tmp+3}
s_and_b32 s{sT+2}, s{sT+2}, vcc_lo
s_and_b32 s{sT+4}, s{sT+4}, s{sT+6}
s_and_b32 s{sT+2}, s{sT+2}, s{sT+4}
s_cmp_eq_u32 s{sT+2}, 0xff
s_cbranch_scc1 {D}
s_sleep 2
s_sub_u32 s{sCNT}, s{sCNT}, 1
s_cmp_lg_u32 s{sCNT}, 0
s_cbranch_scc1 {L}
{D}:
s_mov_b64 exec, -1
""")
    def flag_store(self, ws_base, widx_sgpr):
        self.a(f"""
s_lshl_b32 s{sT}, s{sRB}, 3
s_add_u32 s{sT}, s{sT}, s{sHG}
s_lshl_b32 s{sT}, s{sT}, 7
s_lshl2_add_u32 s{sT}, s{widx_sgpr}, s{sT}
s_add_u32 s{sT}, s{sT}, {ws_base}
v_mov_b32 v{vT}, 0
v_mov_b32 v{vT+1}, s{sTAG}
s_mov_b64 exec, 1
s_waitcnt vmcnt(0)
""")
        n0 = len(self.a.ins)
        self.a(f"buffer_store_dword v{vT+1}, v{vT}, s[{sWS}:{sWS+3}], s{sT} offen sc1")
        self.dup_stores(n0)
        self.a("s_mov_b64 exec, -1")

    def m_main(self):
        a = self.a
        for b in range(4):
            q = Q_[b]; ad = 10 + (b >> 1); o = (b & 1) * 5120
            a(f"ds_read_b64 v[{q}:{q+1}], v{ad} offset:{o}\nds_read_b64 v[{q+2}:{q+3}], v{ad} offset:{o+8}")
        a("s_mov_b32 exec_hi, 0")
        for b in range(4):
            q = Q_[b]; ad = 10 + (b >> 1); o = (b & 1) * 5120
            a(f"ds_read_b64 v[{q+4}:{q+5}], v{ad} offset:{o+32}")
        a(f"""
s_mov_b32 exec_hi, -1
ds_read_b32 v13, v{vMISC} offset:{KMAX}
s_cmp_lg_u32 s11, 0
s_cbranch_scc1 L_m_nokv2
""")
        self.kv_first()
        a.label("L_m_nokv2")
        for i in range(68, 84, 2): a(f"v_mov_b64 v[{i}:{i+1}], 0")
        N = S_[1]
        for b in range(4): a(f"v_mov_b32 v{N+b}, 0")
        a("s_waitcnt lgkmcnt(0)")
        a(f"ds_read_b32 v15, v{vMISC} offset:{SAMEX}")
        a(f"ds_read_b32 v14, v{vMISC} offset:{TAGO}\nds_read_b32 v{vG}, v12 offset:{GBUF}\nds_read_b32 v{vG+1}, v12 offset:{GBUF+128}")
        for i in range(6):
            for b in range(4): a(f"v_dot2_f32_bf16 v{N+b}, v{Q_[b]+i}, v{Q_[b]+i}, v{N+b}")
        for b in range(4): a(f"v_mov_b32 v{N+4+b}, v{N+b}")
        for b in range(4): a(f"v_permlane32_swap_b32 v{N+b}, v{N+4+b}")
        for b in range(4): a(f"v_add_f32 v{N+b}, v{N+b}, v{N+4+b}")
        for b in range(4): a(f"v_mul_f32 v{N+b}, v{N+b}, v13")
        for b in range(4): a(f"v_sqrt_f32 v{N+b}, v{N+b}")
        a("s_mov_b32 exec_lo, 0")
        for b in range(4): a(f"v_mul_f32 v{N+b}, {f32bits(-(1.0 + 2.0**-6))}, v{N+b}")
        for b in range(4): a(f"v_lshrrev_b32 v{Q_[b]+4}, 16, v{N+b}")
        a("s_mov_b32 exec_lo, -1")
        eW = vE; eR = vE+1; ePs = vE+2; ePp = vE+3; eS4 = vE+4; eS2 = vE+5; eWb = vE+6; eO4 = vE+8; eO2 = vE+9; eAC = vE+10
        a(f"""
s_mul_i32 s{sT+1}, s{sW}, 6144
s_xor_b32 s{sT+2}, s{sW}, 1
s_mul_i32 s{sT+3}, s{sT+2}, 6144
s_add_u32 s{sT+1}, s{sT+1}, {RED}
s_add_u32 s{sT+3}, s{sT+3}, {RED}
v_add_u32 v{eW}, s{sT+1}, v{vLin}
v_add_u32 v{eR}, s{sT+3}, v{vLin}
s_lshl_b32 s{sT+1}, s{sW}, 2
s_lshl_b32 s{sT+2}, s{sT+2}, 2
v_add_u32 v{ePs}, s{sT+1}, v{vSIG}
v_add_u32 v{ePp}, s{sT+2}, v{vMISC}
v_add_u32 v{eAC+1}, s{sT+1}, v{vMISC}
v_and_b32 v{vT}, 15, v{vL}
v_bfe_u32 v{vT+1}, v{vL}, 4, 1
v_mul_u32_u24 v{vT+1}, 40960, v{vT+1}
v_lshl_add_u32 v{vT}, v{vT}, 4, v{vT+1}
v_lshrrev_b32 v{vT+1}, 5, v{vL}
v_mul_u32_u24 v{vT+2}, 81920, v{vT+1}
v_add_u32 v{eS2}, v{vT}, v{vT+2}
v_xor_b32 v{vT+1}, s10, v{vT+1}
v_lshl_add_u32 v{eS4}, v{vT+1}, 8, v{vT}
s_mul_i32 s64, s{sRB}, 163840
s_mul_i32 s{sT+2}, s{sHG}, 2560
s_add_u32 s64, s64, s{sT+2}
s_lshr_b32 s{sT+2}, s{sW}, 1
s_mul_i32 s{sT+2}, s{sT+2}, 1280
s_add_u32 s64, s64, s{sT+2}
s_add_u32 s64, s64, {WS_OAB + 80*256}
s_add_u32 s65, s64, 81920
s_waitcnt vmcnt(11) lgkmcnt(0)
""")
        for l in self.qk(S_[0], K_[0], Q_[0]): a(l)
        a(f"v_readfirstlane_b32 s{sTAG}, v14\nv_readfirstlane_b32 s{sSX}, v15")
        a(f"v_sub_f32 v{vG}, 1.0, v{vG}\nv_sub_f32 v{vG+1}, 1.0, v{vG+1}")
        a(f"s_mov_b32 s{sCNT}, 8")
        self.stamp(4)
        self.cstamp(9)
        a("s_nop 5")
        a(".p2align 6")
        a.label("L_mqa")
        for kb in range(4):
            for j in range(4):
                e = [f"v_exp_f32 v{S_[j]+i}, v{S_[j]+i}" for i in range(16)]
                m = self.qk(S_[(j+1) % 4], K_[kb if j < 3 else (kb+1) % 4], Q_[(j+1) % 4]) + self.pv(O_[(j+3) % 4], V_[kb if j > 0 else (kb+3) % 4], S_[(j+3) % 4])
                pre = [None]*4; post = [None]*4
                if MSCHED == "old":
                    if j == 1:
                        pre[2] = "s_waitcnt vmcnt(10)"
                        lv = self.loadV((kb+3) % 4); post[2] = lv[0]; post[3] = lv[1]
                    if j == 3:
                        pre[0] = "s_waitcnt vmcnt(10)"
                        lk = self.loadK(kb); post[2] = lk[0]; post[3] = lk[1]
                        if kb == 3:
                            post[0] = f"s_sub_u32 s{sCNT}, s{sCNT}, 1"
                            post[3] += f"\ns_cmp_lg_u32 s{sCNT}, 0"
                    if "nop" in EXP: post[1] = "s_nop 0"
                else:
                    lv = self.loadV((kb+3) % 4)
                    if j == 0: x1, x2 = self.loadK((kb+3) % 4)[1].split("\n"); post[1] = x1; post[2] = x2
                    if j == 1: post[1] = lv[0]; pre[2] = "s_waitcnt vmcnt(11)"
                    if j == 2: x1, x2 = lv[1].split("\n"); post[1] = x1; post[2] = x2
                    if j == 3:
                        pre[0] = "s_waitcnt vmcnt(10)"; post[1] = self.loadK(kb)[0]
                        if kb == 3:
                            post[2] = f"s_sub_u32 s{sCNT}, s{sCNT}, 1"
                            post[3] = f"s_cmp_lg_u32 s{sCNT}, 0"
                for x in range(4):
                    if pre[x]: a(pre[x])
                    a(m[x])
                    if post[x]: a(post[x])
                    for l in e[4*x:4*x+4]: a(l)
        if self.stamps == 3:
            a(f"s_memrealtime s[100:101]\ns_waitcnt lgkmcnt(0)\ns_mov_b32 m0, s{sCNT}\nv_writelane_b32 v254, s100, m0\ns_memtime s[100:101]\ns_waitcnt lgkmcnt(0)\nv_writelane_b32 v253, s100, m0\ns_cmp_lg_u32 s{sCNT}, 0")
        a("s_cbranch_scc1 L_mqa")
        a(f"s_setprio 3\nds_read_b32 v14, v{vMISC} offset:{GDONE}")
        for l in self.pv(O_[3], V_[3], S_[3]): a(l)
        if self.stamps == 3:
            a(f"s_lshl2_add_u32 s{sT}, s2, s{sW}\ns_lshl_b32 s{sT}, s{sT}, 9\ns_add_u32 s{sT}, s{sT}, {WS_DUMP}\nv_lshlrev_b32 v{vT}, 2, v{vL}\nbuffer_store_dword v254, v{vT}, s[{sWS}:{sWS+3}], s{sT} offen\nbuffer_store_dword v253, v{vT}, s[{sWS}:{sWS+3}], s{sT} offen offset:256")
        self.stamp(5)
        self.cstamp(10)
        a("s_waitcnt lgkmcnt(0)")
        self.check_fast(14, GDONE, 4)
        for b in range(2):
            for i in range(3):
                o = O_[2+b] + 4*i
                a(f"ds_write_b128 v{eW}, v[{o}:{o+3}] offset:{(3*b+i)*1024}")
        a(f"ds_add_u32 v{ePs}, v{vONE} offset:{PAIR}")
        self.poll(PAIR, 1, vaddr=ePp)
        if self.stamps == 5: self.stamp(3)
        for b in range(2):
            for i in range(3):
                o = S_[b] + 4*i
                a(f"ds_read_b128 v[{o}:{o+3}], v{eR} offset:{(3*b+i)*1024}")
        for b in range(2):
            a(f"s_waitcnt lgkmcnt({3*(1-b)})")
            for i in range(0, 12, 2): a(f"v_pk_add_f32 v[{O_[b]+i}:{O_[b]+i+1}], v[{O_[b]+i}:{O_[b]+i+1}], v[{S_[b]+i}:{S_[b]+i+1}]")
        for b in range(2):
            a(f"v_mov_b32 v{S_[2]+2*b}, v{O_[b]+8}\nv_mov_b32 v{S_[2]+2*b+1}, v{O_[b]+8}")
        for b in range(2):
            a(f"v_permlane32_swap_b32 v{S_[2]+2*b}, v{S_[2]+2*b+1}")
        a(f"""
v_min_f32 v{vT}, v{S_[2]+1}, v{S_[2]+3}
v_add_f32 v{vT+1}, v{S_[2]+1}, v{S_[2]+3}
s_mov_b32 s{sT}, {THR}
v_cmp_nle_f32 vcc, s{sT}, v{vT}
s_mov_b32 s{sT+1}, {f32bits(1.0e30)}
v_cmp_ngt_f32 s[{sT+2}:{sT+3}], s{sT+1}, v{vT+1}
s_or_b64 vcc, vcc, s[{sT+2}:{sT+3}]
s_cbranch_vccnz L_fallback
L_m_norm:
v_rcp_f32 v{S_[2]+1}, v{S_[2]+1}
v_rcp_f32 v{S_[2]+3}, v{S_[2]+3}
v_mul_f32 v{S_[2]+1}, v{S_[2]+1}, v{vG}
v_mul_f32 v{S_[2]+3}, v{S_[2]+3}, v{vG+1}
""")
        for b in range(2):
            for i in range(0, 12, 2): a(f"v_pk_mul_f32 v[{O_[b]+i}:{O_[b]+i+1}], v[{O_[b]+i}:{O_[b]+i+1}], v[{S_[2]+2*b}:{S_[2]+2*b+1}] op_sel:[0,1] op_sel_hi:[1,1]")
        a(f"s_cmp_lg_u32 s10, 0\ns_cbranch_scc1 L_m_odd")
        def cvt(d, s): a(f"v_cvt_pk_bf16_f32 v{d}, v{s}, v{s+1}\nv_cvt_pk_bf16_f32 v{d+1}, v{s+2}, v{s+3}")
        for b in range(2):
            d = S_[b]; cvt(d, O_[b]); cvt(d+2, O_[b]+4); cvt(d+4, O_[b]+8)
        for b in range(2):
            d = S_[b]; a(f"v_permlane32_swap_b32 v{d}, v{d+2}\nv_permlane32_swap_b32 v{d+1}, v{d+3}")
        a(f"v_permlane32_swap_b32 v{S_[0]+4}, v{S_[1]+4}\nv_permlane32_swap_b32 v{S_[0]+5}, v{S_[1]+5}")
        n0 = len(a.ins)
        for b in range(2):
            d = S_[b]; a(f"buffer_store_dwordx4 v[{d}:{d+3}], v{eS4}, s[{sWS}:{sWS+3}], s{64+b} offen sc1")
        a(f"buffer_store_dwordx2 v[{S_[0]+4}:{S_[0]+5}], v{eS2}, s[{sWS}:{sWS+3}], s64 offen offset:512 sc1")
        self.dup_stores(n0)
        a("s_branch L_m_pub")
        a.label("L_m_odd")
        for b in range(2):
            d = S_[b]; cvt(d, O_[b]); cvt(d+2, O_[b]+8); cvt(d+4, O_[b]+4)
        for b in range(2):
            d = S_[b]; a(f"v_permlane32_swap_b32 v{d+2}, v{d+4}\nv_permlane32_swap_b32 v{d+3}, v{d+5}")
        for b in range(2):
            d = S_[b]; a(f"v_permlane32_swap_b32 v{d+4}, v{d}\nv_permlane32_swap_b32 v{d+5}, v{d+1}")
        a(f"v_permlane32_swap_b32 v{S_[0]+4}, v{S_[1]+4}\nv_permlane32_swap_b32 v{S_[0]+5}, v{S_[1]+5}")
        n0 = len(a.ins)
        for b in range(2):
            d = S_[b]; a(f"buffer_store_dwordx4 v[{d}:{d+3}], v{eS4}, s[{sWS}:{sWS+3}], s{64+b} offen offset:768 sc1")
        a(f"buffer_store_dwordx2 v[{S_[1]+4}:{S_[1]+5}], v{eS2}, s[{sWS}:{sWS+3}], s64 offen offset:520 sc1")
        self.dup_stores(n0)
        a.label("L_m_pub")
        if self.stamps == 5: self.stamp(4)
        OF = 52; ACC = 132; WF = 152; NWF = 4
        a(f"ds_read_b32 v14, v{vMISC} offset:{BW0}")
        a(f"""
s_lshl2_add_u32 s{sT+8}, s{sRB}, s{sW}
s_lshl_b32 s{sT+10}, s{sT+8}, 4
s_mul_i32 s56, s{sT+8}, 40960
s_add_u32 s56, s56, {WS_OAB + 20480}
s_add_u32 s57, s56, 4096
s_add_u32 s58, s56, 8192
s_add_u32 s59, s56, 12288
s_add_u32 s60, s56, 16384
""")
        self.tr_base(eWb, 160)
        a(f"v_add_u32 v{eWb+1}, {R}, v{eWb}")
        self.srd(sOUT, 34, 2621440)
        a(f"""
v_and_b32 v{eO4}, 15, v{vL}
v_add_u32 v{eO4}, s{sT+10}, v{eO4}
v_mul_u32_u24 v{eO4}, 1280, v{eO4}
v_lshrrev_b32 v{vT+1}, 4, v{vL}
v_lshl_add_u32 v{eO2}, v{vT+1}, 3, v{eO4}
v_bfe_u32 v{vT+1}, v{vL}, 4, 1
v_lshl_add_u32 v{eO4}, v{vT+1}, 5, v{eO4}
v_lshrrev_b32 v{vT+1}, 5, v{vL}
v_lshl_add_u32 v{eO4}, v{vT+1}, 4, v{eO4}
s_mul_i32 s{sT+9}, s{sW}, 5120
s_add_u32 s{sT+9}, s{sT+9}, {ACCAREA}
v_add_u32 v{eAC}, s{sT+9}, v{vLin}
""")
        self.flag_store(WS_FB, sW)
        self.stamp(6)
        if self.stop not in ("oab", "nobg"):
            def oload(ks): return f"buffer_load_dwordx4 v[{OF+4*ks}:{OF+4*ks+3}], v{vLin}, s[{sWS}:{sWS+3}], s{56 + ks//4} offen offset:{(ks%4)*1024} sc1"
            a("s_waitcnt lgkmcnt(0)")
            self.check_fast(14, BW0, 4)
            def wreads(ks):
                wb, o = (eWb + 1, ks * 5120) if ks < 7 else (eWb, (ks - 7) * 5120); f = WF + 20 * (ks % NWF); out = []
                for t in range(5):
                    out.append(f"ds_read_b64_tr_b16 v[{f+4*t}:{f+4*t+1}], v{wb} offset:{o+32*t}")
                    out.append(f"ds_read_b64_tr_b16 v[{f+4*t+2}:{f+4*t+3}], v{wb} offset:{o+32*t+1280}")
                return out
            for ks in range(NWF):
                for l in wreads(ks): a(l)
            self.flag_poll(WS_FB, 20)
            self.stamp(7)
            nis = MPRE
            for ks in range(nis): a(oload(ks))
            for ks in range(20):
                a(f"s_waitcnt vmcnt({nis-1-ks})")
                if ks == 0: a("s_waitcnt lgkmcnt(0)")
                elif ks >= NWF: a(f"s_waitcnt lgkmcnt({min(10, 10*(19-ks))})")
                if self.stamps == 5 and ks == 0: self.stamp(1)
                if self.stamps == 5 and ks == 19: self.stamp(2)
                f = WF + 20 * (ks % NWF)
                r = wreads(ks + NWF) if ks + NWF < 20 else []
                for t in range(5):
                    C = "0" if ks == 0 else f"v[{ACC+4*t}:{ACC+4*t+3}]"
                    a(f"v_mfma_f32_16x16x32_bf16 v[{ACC+4*t}:{ACC+4*t+3}], v[{f+4*t}:{f+4*t+3}], v[{OF+4*ks}:{OF+4*ks+3}], {C}")
                    for l in r[2*t:2*t+2]: a(l)
                    if nis < 20 and t in MIL: a(oload(nis)); nis += 1
                if ks == 0: a(f"ds_read_b32 v14, v{vMISC} offset:{BWOL}")
                if ks == 1:
                    a("s_waitcnt lgkmcnt(10)"); self.check_fast(14, BWOL, 4)
                if ks == 6: a(f"ds_read_b32 v14, v{vMISC} offset:{LA2}")
                if ks == 8: self.check_fast(14, LA2, 4)
                if ks == 17: a(f"ds_read_b32 v14, v{eAC+1} offset:{ACCA}")
                if ks == 19:
                    self.check_fast(14, ACCA, 1, vaddr=eAC+1)
                    for t in range(5): a(f"ds_read_b128 v[{20+4*t}:{20+4*t+3}], v{eAC} offset:{1024*t}")
            self.stamp(8)
            a(f"s_mul_i32 s{sT+1}, s{sHG}, 160\ns_waitcnt lgkmcnt(0)")
            for i in range(0, 20, 2): a(f"v_pk_add_f32 v[{ACC+i}:{ACC+i+1}], v[{ACC+i}:{ACC+i+1}], v[{20+i}:{20+i+1}]")
            for t in range(5):
                d = 40 + 2*t
                a(f"v_cvt_pk_bf16_f32 v{d}, v{ACC+4*t}, v{ACC+4*t+1}\nv_cvt_pk_bf16_f32 v{d+1}, v{ACC+4*t+2}, v{ACC+4*t+3}")
            for p in range(2):
                d = 40 + 4*p
                a(f"v_permlane16_swap_b32 v{d}, v{d+2}\nv_permlane16_swap_b32 v{d+1}, v{d+3}")
            for p in range(2):
                d = 40 + 4*p
                a(f"buffer_store_dwordx4 v[{d}:{d+3}], v{eO4}, s[{sOUT}:{sOUT+3}], s{sT+1} offen offset:{64*p}")
            a(f"buffer_store_dwordx2 v[48:49], v{eO2}, s[{sOUT}:{sOUT+3}], s{sT+1} offen offset:128")
        a("s_branch L_fin")
        self.m_fallback()

    def m_fallback(self):
        a = self.a
        MX = S_[2] + 4
        a.label("L_fallback")
        a("s_mov_b32 exec_lo, 0")
        for b in range(2): a(f"v_mov_b32 v{Q_[b]+4}, 0\nv_mov_b32 v{Q_[b]+5}, 0")
        a("s_mov_b32 exec_lo, -1")
        a(f"v_mov_b32 v{MX}, 0xff7fffff\nv_mov_b32 v{MX+1}, 0xff7fffff")
        a(f"s_mov_b32 s{sK}, {WS_K}\ns_mov_b32 s{sCNT}, 64\ns_waitcnt vmcnt(0)")
        a.label("L_fb1")
        for l in self.loadK(0): a(l)
        a("s_waitcnt vmcnt(0)")
        for b in range(2):
            for l in self.qk(S_[b], K_[0], Q_[b]): a(l)
        for b in range(2):
            for i in range(8): a(f"v_max3_f32 v{MX+b}, v{S_[b]+2*i}, v{S_[b]+2*i+1}, v{MX+b}")
        a(f"s_sub_u32 s{sCNT}, s{sCNT}, 1\ns_cmp_lg_u32 s{sCNT}, 0\ns_cbranch_scc1 L_fb1")
        for b in range(2):
            m = MX + b; t = MX + 2
            a(f"""
v_mov_b32 v{t}, v{m}
v_permlane32_swap_b32 v{m}, v{t}
v_max_f32 v{m}, v{m}, v{t}
v_sub_f32 v{m}, 0, v{m}
v_and_b32 v{t}, 0xffff0000, v{m}
v_sub_f32 v{m}, v{m}, v{t}
v_and_b32 v{t+1}, 0xffff0000, v{m}
v_sub_f32 v{m}, v{m}, v{t+1}
s_mov_b32 exec_lo, 0
v_lshrrev_b32 v{t}, 16, v{t}
v_or_b32 v{Q_[b]+4}, v{t}, v{t+1}
v_lshrrev_b32 v{Q_[b]+5}, 16, v{m}
s_mov_b32 exec_lo, -1
""")
        for i in range(16): a(f"v_mov_b64 v[{O_[0]+2*i}:{O_[0]+2*i+1}], 0")
        a(f"s_mov_b32 s{sK}, {WS_K}\ns_mov_b32 s{sV}, {WS_V}\ns_mov_b32 s{sCNT}, 64")
        a.label("L_fb2")
        for l in self.loadK(0) + self.loadV(0): a(l)
        a("s_waitcnt vmcnt(0)")
        for b in range(2):
            for l in self.qk(S_[b], K_[0], Q_[b]): a(l)
        for b in range(2):
            for i in range(16): a(f"v_exp_f32 v{S_[b]+i}, v{S_[b]+i}")
        for b in range(2):
            for l in self.pv(O_[b], V_[0], S_[b]): a(l)
        a(f"s_nop 15\ns_sub_u32 s{sCNT}, s{sCNT}, 1\ns_cmp_lg_u32 s{sCNT}, 0\ns_cbranch_scc1 L_fb2")
        for b in range(2):
            a(f"v_mov_b32 v{S_[2]+2*b}, v{O_[b]+8}\nv_mov_b32 v{S_[2]+2*b+1}, v{O_[b]+8}")
        for b in range(2): a(f"v_permlane32_swap_b32 v{S_[2]+2*b}, v{S_[2]+2*b+1}")
        a("s_nop 1\ns_branch L_m_norm")

    def g_main(self):
        a = self.a
        if self.stop == "nobg":
            self.signal(GDONE); return
        a(f"s_cmp_eq_u32 s{sU}, 1\ns_cbranch_scc1 L_bg1\ns_cmp_eq_u32 s{sU}, 2\ns_cbranch_scc1 L_bg2\ns_cmp_eq_u32 s{sU}, 3\ns_cbranch_scc1 L_bg3")
        for u in range(4):
            if u: a.label(f"L_bg{u}")
            self.bg_path(u)
            if u < 3: a("s_branch L_bg_done")
        a.label("L_bg_done")
        self.local_attn()
        self.g_apart()

    def bg_path(self, u):
        a = self.a
        rp = u & 1; cg = u >> 1
        tiles = list(range(0, 8)) if cg == 0 else list(range(7, 15))
        npc = 4 if u < 3 else 3
        bp = [[0], [1], [2], [3, 4]][u]
        work = [(t, xs) for t in tiles for xs in range(2) if t != 7 or xs == cg]
        pub = [w for w in work if rp == 1 and w[1] == 1 and w[0] >= 5]
        work = pub + [w for w in work if w not in pub]
        def reads(s):
            par = s & 1; b = GF[par]; sec = 2 if s >= 10 else 0; kb = (s % 10) >> 1; so = RING[s % 3] - R
            out = [f"ds_read_b128 v[{b}:{b+3}], v{gXF+sec+par} offset:{kb*8192}",
                   f"ds_read_b128 v[{b+4}:{b+7}], v{gXF+sec+par} offset:{kb*8192+2048}"]
            for j, t in enumerate(tiles):
                f = b + 12 + 4*j
                out.append(f"ds_read_b64_tr_b16 v[{f}:{f+1}], v{gWm} offset:{so+32*t}")
                out.append(f"ds_read_b64_tr_b16 v[{f+2}:{f+3}], v{gWm} offset:{so+32*t+3840}")
            return out
        def mfmas(s):
            b = GF[s & 1]; out = []
            for n, (t, xs) in enumerate(work):
                f = b + 12 + 4*tiles.index(t); x = b + 4*xs; c = ACCG + 4*n
                C = "0" if s == 0 else f"v[{c}:{c+3}]"
                out.append(f"v_mfma_f32_16x16x32_bf16 v[{c}:{c+3}], v[{f}:{f+3}], v[{x}:{x+3}], {C}")
            return out
        def wdma(s):
            out = []
            for i in range(npc):
                pre = f"s_add_u32 s10, s{8 + (s >= 10)}, {(s % 10)*122880}" if i == 0 else "s_nop 0"
                out.append(f"s_mov_b32 m0, {RING[s % 3] + 1024*u + 4096*i}\n{pre}\nbuffer_load_dwordx4 v{gWO+i}, s[{sWQKV}:{sWQKV+3}], s10 offen lds")
            return out
        def adma(idx):
            out = []
            for k, p in enumerate(bp):
                if idx < 4:
                    off = XH + idx*5120
                    t = f"s_mov_b32 m0, {off + 1024*p}\n" + (f"s_mov_b32 s11, {off*8}" if k == 0 else "s_nop 0")
                else:
                    base = 64 + (idx-4) // 8; off = ((idx-4) % 8) * 5120
                    t = f"s_add_u32 m0, s{base}, {off + 1024*p}\n" + (f"s_lshl3_add_u32 s11, s{base}, {off*8}" if k == 0 else "s_nop 0")
                out.append(t + f"\nbuffer_load_dwordx4 v{vW5+p}, s[{sAWO}:{sAWO+3}], s11 offen lds")
            return out
        def touch(srd, part, nparts):
            lo = 50*part // nparts; hi = 50*(part+1) // nparts
            mask = ((1 << hi) - 1) ^ ((1 << lo) - 1)
            return f"s_mov_b32 exec_lo, {mask & 0xffffffff}\ns_mov_b32 exec_hi, {mask >> 32}\nbuffer_load_dword v0, v{gTC}, s[{srd}:{srd+3}], 0 offen\ns_mov_b64 exec, -1"
        vm = []
        def emit_vm(text, tag):
            if "nodma" in EXP and tag[1] > 2: text = "s_nop 0"
            if "noadma" in EXP and tag[0] == "A": text = "s_nop 0"
            a(text); vm.append(tag)
        def arrive(s):
            last = max(k for k, t in enumerate(vm) if t == ("W", s))
            if self.stamps == 8: a(f"s_memrealtime s[100:101]\ns_waitcnt lgkmcnt(0)\ns_mov_b32 s99, s100")
            a(f"s_waitcnt vmcnt({len(vm) - 1 - last}) lgkmcnt(0)")
            if self.stamps == 8: a(f"s_memrealtime s[100:101]\ns_waitcnt lgkmcnt(0)\ns_sub_u32 s100, s100, s99\ns_setprio 2\nv_writelane_b32 v253, s100, {s}\ns_setprio {GP}")
            self.signal(CNTG)
        for l in reads(0): a(l)
        a(f"ds_read_b32 v9, v{vMISC} offset:{TAGO}\nds_read_b32 v7, v{vMISC} offset:{SAMEX}")
        self.srd(sAWO, 20, 819200)
        self.srd(sBWO, 30, 819200)
        self.stamp(5)
        a("s_waitcnt lgkmcnt(0)")
        m = mfmas(0); k = 0
        for st in (1, 2):
            for x in wdma(st):
                a(m[k]); k += 1
                emit_vm(x, ("W", st))
        a(f"s_setprio 2\nv_readfirstlane_b32 s{sTAG}, v9\nv_readfirstlane_b32 s{sSX}, v7\ns_setprio {GP}")
        while k < PRE0: a(m[k]); k += 1
        arrive(1)
        pend = m[k:]
        for s in range(1, 20):
            m = pend if s == 1 else mfmas(s-1)
            k = 0
            a(m[k]); k += 1
            a(f"ds_read_b32 v{gFL}, v{vMISC} offset:{CNTG}")
            a(m[k]); k += 1
            if "nobar" not in EXP:
                a("s_waitcnt lgkmcnt(0)")
                self.check_fast(gFL, CNTG, 4*s, prio=GP)
            if self.stamps == 8: a(f"s_memrealtime s[100:101]\ns_waitcnt lgkmcnt(0)\ns_setprio 2\nv_writelane_b32 v254, s100, {s}\ns_setprio {GP}")
            r = reads(s)
            il = [(x, ("W", s+2)) for x in wdma(s+2)] if s + 2 < 20 else []
            items = []; n = 0
            while r or il:
                if il and (n in DSL[u] or not r): items.append(("V", il[0])); il = il[1:]
                else: items.append(("R", r[:RPI])); r = r[RPI:]
                n += 1
            items.append(("A", None))
            if s >= 2:
                idx = s - 2
                if idx >= 4:
                    v = (idx-4) % 8; need = 5*((idx-4)//8) + -(-5*(v+1) // 8)
                    assert s // 2 >= need, (s, idx, need)
                items += [("V", (x, ("A", s))) for x in adma(idx)]
            if s in TOUCH: items.append(("V", (touch(sBWO, TOUCH.index(s), len(TOUCH)), ("T", s))))
            for kind, x in items:
                if kind == "R":
                    for l in x: a(l if "nords" not in EXP else "s_nop 0")
                elif kind == "V": emit_vm(*x)
                elif s < 19: arrive(s+1)
                else:
                    a("s_waitcnt lgkmcnt(0)"); self.signal(GDONE)
                if k < len(m): a(m[k]); k += 1
            while k < len(m): a(m[k]); k += 1
        m = mfmas(19)
        if self.stamps == 8:
            a(f"s_lshl2_add_u32 s{sT}, s2, s{sU}\ns_lshl_b32 s{sT}, s{sT}, 9\ns_add_u32 s{sT}, s{sT}, {WS_DUMP}\nv_lshlrev_b32 v{vT}, 2, v{vL}\nbuffer_store_dword v254, v{vT}, s[{sWS}:{sWS+3}], s{sT} offen\nbuffer_store_dword v253, v{vT}, s[{sWS}:{sWS+3}], s{sT} offen offset:256")
        a(f"""
s_lshl3_add_u32 s{sT+8}, s{sRB}, s{sHG}
s_mul_i32 s{sT+9}, s{sT+8}, 5120
s_add_u32 s{sT+9}, s{sT+9}, {WS_HALO - R}
s_lshl_b32 s{sT+8}, s{sT+8}, 7
s_add_u32 s{sT+8}, s{sT+8}, {WS_FH}
s_mov_b32 s{sT+10}, s{sSX}
s_and_b32 s{sT+11}, s{sRB}, 3
s_cmp_eq_u32 s{sT+11}, 3
s_cselect_b32 s{sSX}, 0, s{sSX}
""")
        def cvt(n):
            c = ACCG + 4*n
            a(f"s_setprio 2\nv_cvt_pk_bf16_f32 v{c}, v{c}, v{c+1}\nv_cvt_pk_bf16_f32 v{c+1}, v{c+2}, v{c+3}\ns_setprio {GP}")
        def wr(n):
            t, xs = work[n]; c = ACCG + 4*n
            off = [QA - R, KA - R + 2560, VA - R + 2560][t // 5] + 32*(t % 5) + (2*rp + xs) * 2560
            a(f"ds_write_b64 v{lPA}, v[{c}:{c+1}] offset:{off}")
        LAG = 3
        npub = len(pub)
        def hflag():
            a(f"s_setprio 2\nv_mov_b32 v{vT}, 0\nv_mov_b32 v{vT+1}, s{sTAG}\ns_setprio {GP}\ns_mov_b64 exec, 1\ns_waitcnt vmcnt(0)")
            n0 = len(a.ins)
            a(f"buffer_store_dword v{vT+1}, v{vT}, s[{sWS}:{sWS+3}], s{sT+8} offen offset:{4*cg} sc1")
            self.dup_stores(n0)
            a("s_mov_b64 exec, -1")
        nst = npub - 1 + LAG
        for n in range(len(m) + LAG):
            if n < len(m): a(m[n])
            if n == 1: a(f"ds_read_b32 v{gFL}, v{vMISC} offset:{GDONE}")
            if n == 2:
                a("s_waitcnt lgkmcnt(0)"); self.check_fast(gFL, GDONE, 4, prio=GP)
            if n == len(m): self.stamp(6)
            if n >= LAG:
                cvt(n - LAG); wr(n - LAG)
                if npub and n == nst:
                    n0 = len(a.ins)
                    for q in range(npub):
                        t = work[q][0]; c = ACCG + 4*q
                        a(f"buffer_store_dwordx2 v[{c}:{c+1}], v{lPA}, s[{sWS}:{sWS+3}], s{sT+9} offen offset:{(t // 5 - 1)*2560 + 32*(t % 5)} sc1")
                    self.dup_stores(n0)
                if npub and n == nst + 3: hflag()
        if not npub:
            H = GF[0]; L = a.uid("Lh"); D = a.uid("Lhd"); Z = a.uid("Lhz")
            a("s_setprio 2")
            for i in range(6): a(f"v_mov_b64 v[{H+2*i}:{H+2*i+1}], 0")
            a(f"""
v_add_u32 v{vT+2}, {[KA, VA][cg]}, v{vLin}
v_mov_b32 v{vT}, 0
s_cmp_eq_u32 s{sRB}, 0
s_cbranch_scc1 {Z}
s_sub_u32 s{sT+8}, s{sT+8}, 1024
s_add_u32 s{sT+9}, s{sT+9}, {R - 8*5120 + 2560*cg}
s_mov_b32 s{sCNT}, 0x8000
s_mov_b64 exec, 1
{L}:
buffer_load_dwordx2 v[{vT+4}:{vT+5}], v{vT}, s[{sWS}:{sWS+3}], s{sT+8} offen sc1
s_waitcnt vmcnt(0)
v_readfirstlane_b32 s{sT}, v{vT+4}
v_readfirstlane_b32 s{sT+1}, v{vT+5}
s_xor_b32 s{sT}, s{sT}, s{sTAG}
s_xor_b32 s{sT+1}, s{sT+1}, s{sTAG}
s_or_b32 s{sT}, s{sT}, s{sT+1}
s_cbranch_scc0 {D}
s_sub_u32 s{sCNT}, s{sCNT}, 1
s_cmp_lg_u32 s{sCNT}, 0
s_cbranch_scc1 {L}
{D}:
s_mov_b64 exec, -1
buffer_load_dwordx4 v[{H}:{H+3}], v{vLin}, s[{sWS}:{sWS+3}], s{sT+9} offen sc1
buffer_load_dwordx4 v[{H+4}:{H+7}], v{vLin}, s[{sWS}:{sWS+3}], s{sT+9} offen offset:1024 sc1
s_mov_b32 exec_hi, 0
buffer_load_dwordx4 v[{H+8}:{H+11}], v{vLin}, s[{sWS}:{sWS+3}], s{sT+9} offen offset:2048 sc1
s_mov_b32 exec_hi, -1
s_waitcnt vmcnt(0)
{Z}:
ds_write_b128 v{vT+2}, v[{H}:{H+3}]
ds_write_b128 v{vT+2}, v[{H+4}:{H+7}] offset:1024
s_mov_b32 exec_hi, 0
ds_write_b128 v{vT+2}, v[{H+8}:{H+11}] offset:2048
s_mov_b32 exec_hi, -1
"""+"")
        self.signal(LA1)
        a(f"s_mov_b32 s{sSX}, s{sT+10}\ns_waitcnt lgkmcnt(0)")
        for idx in range(18, 20):
            for x in adma(idx): a(x)

    def local_attn(self):
        a = self.a
        QF = 104; KF = 120; VF = 152; SD = 32; PB = 64; OD = 80; TM = 20; GV = 184
        units = self.units; U = range(4)
        a("s_setprio 2")
        for i in range(8): a(f"v_mov_b64 v[{QF+2*i}:{QF+2*i+1}], 0")
        for ui, (par, qh) in enumerate(units):
            a(f"ds_read_b32 v{GV+ui}, v{lPA+2} offset:{GBUF + 4*(32*qh+par)}")
        a(f"""
s_mov_b32 s10, {CSC}
s_mul_i32 s64, s{sRB}, 163840
s_add_u32 s64, s64, {WS_OAB}
s_mul_i32 s{sT+8}, s{sU}, 40960
s_add_u32 s{sT+8}, s{sT+8}, s64
s_mul_i32 s{sT+2}, s{sHG}, 2560
s_add_u32 s64, s64, s{sT+2}
s_lshr_b32 s{sT+2}, s{sU}, 1
s_mul_i32 s{sT+2}, s{sT+2}, 1280
s_add_u32 s64, s64, s{sT+2}
s_and_b32 s{sT+2}, s{sU}, 1
s_lshl3_add_u32 s66, s{sT+2}, s64
s_mul_i32 s{sT+2}, s{sT+2}, 768
s_add_u32 s64, s64, s{sT+2}
s_add_u32 s65, s64, 81920
""")
        self.poll(LA1, 4)
        self.stamp(7)
        a("s_mov_b32 exec_hi, 0xffff")
        for ui, (par, qh) in enumerate(units):
            a(f"ds_read_b64 v[{QF+4*ui}:{QF+4*ui+1}], v{lQa} offset:{(32*qh+par)*160}")
        a("s_mov_b32 exec_hi, 0")
        for ui, (par, qh) in enumerate(units):
            a(f"ds_read_b64 v[{QF+4*ui+2}:{QF+4*ui+3}], v{lQa} offset:{(32*qh+par)*160+8}")
        a("s_mov_b32 exec_hi, -1")
        for ui, (par, qh) in enumerate(units):
            o = (32*qh+par)*160
            for tl in range(2):
                f = KF + 8*ui + 4*tl
                a(f"ds_read_b64 v[{f}:{f+1}], v{lKa+tl} offset:{o + 5120*tl}")
                a(f"ds_read_b64 v[{f+2}:{f+3}], v{lKa+tl} offset:{o + 5120*tl + 8}")
        for ui, (par, qh) in enumerate(units):
            a(f"s_waitcnt lgkmcnt(12)")
            for tl in range(2):
                f = KF + 8*ui + 4*tl; d = SD + 8*ui + 4*tl; mk = lMK + 8*qh + 4*tl
                a(f"v_mfma_f32_16x16x32_bf16 v[{d}:{d+3}], v[{f}:{f+3}], v[{QF+4*ui}:{QF+4*ui+3}], v[{mk}:{mk+3}]")
            o = (32*qh+par)*160; f = VF + 8*ui
            a(f"ds_read_b64_tr_b16 v[{f}:{f+1}], v{lVt} offset:{o}")
            a(f"ds_read_b64_tr_b16 v[{f+2}:{f+3}], v{lVt+1} offset:{o+5120}")
            a(f"ds_read_b64_tr_b16 v[{f+4}:{f+5}], v{lVo+2*ui}")
            a(f"ds_read_b64_tr_b16 v[{f+6}:{f+7}], v{lVo+2*ui+1}")
        for st in range(4):
            for ui in U:
                d = SD + 8*ui; m = TM + 2*ui
                a([f"v_max3_f32 v{m}, v{d}, v{d+1}, v{d+2}", f"v_max3_f32 v{m}, v{m}, v{d+3}, v{d+4}", f"v_max3_f32 v{m}, v{m}, v{d+5}, v{d+6}", f"v_max_f32 v{m}, v{m}, v{d+7}"][st])
        for sw in ("v_permlane16_swap_b32", "v_permlane32_swap_b32"):
            for ui in U: a(f"v_mov_b32 v{TM+2*ui+1}, v{TM+2*ui}")
            for ui in U: a(f"{sw} v{TM+2*ui}, v{TM+2*ui+1}")
            for ui in U: a(f"v_max_f32 v{TM+2*ui}, v{TM+2*ui}, v{TM+2*ui+1}")
        for ui in U: a(f"v_mul_f32 v{TM+2*ui}, s10, v{TM+2*ui}")
        for ui in U:
            for i in range(8): a(f"v_fma_f32 v{SD+8*ui+i}, v{SD+8*ui+i}, s10, -v{TM+2*ui}")
        ex = []
        for ui in U:
            ex += [f"v_exp_f32 v{SD+8*ui+i}, v{SD+8*ui+i}" for i in range(8)]
        a("s_waitcnt lgkmcnt(0)")
        for l in ex: a(l)
        for ui in U:
            for i in range(4): a(f"v_cvt_pk_bf16_f32 v{PB+4*ui+i}, v{SD+8*ui+2*i}, v{SD+8*ui+2*i+1}")
            for tl in (1, 0):
                f = VF + 8*ui + 4*tl; d = OD + 8*ui + 4*tl
                a(f"v_mfma_f32_16x16x32_bf16 v[{d}:{d+3}], v[{f}:{f+3}], v[{PB+4*ui}:{PB+4*ui+3}], 0")
        for ui in U: a(f"v_mov_b32 v{TM+2*ui}, v{OD+8*ui+4}\nv_mov_b32 v{TM+2*ui+1}, v{OD+8*ui+4}")
        for ui in U: a(f"v_permlane16_swap_b32 v{TM+2*ui}, v{TM+2*ui+1}")
        for ui in U: a(f"v_rcp_f32 v{TM+2*ui+1}, v{TM+2*ui+1}")
        for ui in U: a(f"v_mul_f32 v{TM+2*ui}, v{TM+2*ui+1}, v{GV+ui}")
        for ui in U:
            for i in range(4): a(f"v_pk_mul_f32 v[{OD+8*ui+2*i}:{OD+8*ui+2*i+1}], v[{OD+8*ui+2*i}:{OD+8*ui+2*i+1}], v[{TM+2*ui}:{TM+2*ui+1}] op_sel_hi:[1,0]")
        for ui in U:
            d = SD + 4*(ui >> 1) + 2*(ui & 1); h = SD + 16 + 2*ui
            a(f"v_cvt_pk_bf16_f32 v{d}, v{OD+8*ui}, v{OD+8*ui+1}\nv_cvt_pk_bf16_f32 v{d+1}, v{OD+8*ui+2}, v{OD+8*ui+3}")
            a(f"v_cvt_pk_bf16_f32 v{h}, v{OD+8*ui+4}, v{OD+8*ui+5}\nv_cvt_pk_bf16_f32 v{h+1}, v{OD+8*ui+6}, v{OD+8*ui+7}")
        for q in range(2):
            d = SD + 4*q
            a(f"v_permlane16_swap_b32 v{d}, v{d+2}\nv_permlane16_swap_b32 v{d+1}, v{d+3}")
        for q in range(2):
            h = SD + 16 + 4*q
            a(f"v_permlane16_swap_b32 v{h}, v{h+2}\nv_permlane16_swap_b32 v{h+1}, v{h+3}")
        h = SD + 16
        a(f"v_permlane32_swap_b32 v{h}, v{h+4}\nv_permlane32_swap_b32 v{h+1}, v{h+5}")
        n0 = len(a.ins)
        for q in range(2):
            d = SD + 4*q
            a(f"buffer_store_dwordx4 v[{d}:{d+3}], v{lPA+1}, s[{sWS}:{sWS+3}], s{64+q} offen sc1")
        a(f"buffer_store_dwordx2 v[{h}:{h+1}], v{lPH}, s[{sWS}:{sWS+3}], s66 offen offset:512 sc1")
        self.dup_stores(n0)

    def g_apart(self):
        a = self.a
        vWb = 20; OF = 32; ACC = 112; WF = 132; NW = 6
        def bk(ks_expr_base, lds0, stride_w):
            out = []
            for p in range(5):
                pre = f"s_add_u32 s{sT+4}, s{sT+10}, {ks_expr_base*40960}" if p == 0 else "s_nop 0"
                out.append(f"s_add_u32 m0, s{sT+9}, {lds0 + 1024*p}\n{pre}\nbuffer_load_dwordx4 v{vW5+p}, s[{sBWO}:{sBWO+3}], s{sT+4} offen lds")
            return out
        def guarded(items, lim):
            out = []
            for x in items:
                L = a.uid("Lbi"); out.append(f"s_cmp_ge_u32 s{sU}, {lim}\ns_cbranch_scc1 {L}\n{x}\n{L}:")
            return out
        def reads(ks):
            wb = vWb + (1 if ks >= 10 else 0); o = (ks % 10) * 5120; f = WF + 20 * (ks % NW); out = []
            for t in range(5):
                out.append(f"ds_read_b64_tr_b16 v[{f+4*t}:{f+4*t+1}], v{wb} offset:{o+32*t}")
                out.append(f"ds_read_b64_tr_b16 v[{f+4*t+2}:{f+4*t+3}], v{wb} offset:{o+32*t+1280}")
            return out
        self.tr_base(vWb, 160)
        a(f"""
v_add_u32 v{vWb+1}, 51200, v{vWb}
s_lshl_b32 s{sT+1}, s{sU}, 2
v_add_u32 v24, s{sT+1}, v{vSIG}
s_mul_i32 s{sT+1}, s{sU}, 5120
s_add_u32 s{sT+1}, s{sT+1}, {ACCAREA}
v_add_u32 v25, s{sT+1}, v{vLin}
""")
        self.flag_store(WS_FA, sU)
        self.signal(CNTA)
        self.stamp(8)
        if self.stop == "oab": return
        a(f"s_setprio 0\ns_mul_i32 s{sT+9}, s{sU}, 5120\ns_lshl_b32 s{sT+10}, s{sT+9}, 3")
        self.poll(CNTA, 4, prio=0)
        a(f"s_cmp_eq_u32 s{sU}, 3\ns_cbranch_scc1 L_ga_poll")
        for x in bk(0, R, 3) + bk(3, R + 15360, 3): a(x)
        for ks in range(NW):
            for l in reads(ks): a(l)
        self.signal(CNTA)
        self.poll(FAS, 1, prio=0)
        a("s_branch L_ga_go")
        a.label("L_ga_poll")
        for ks in range(NW):
            for l in reads(ks): a(l)
        self.signal(CNTA)
        a("s_setprio 2")
        self.flag_poll(WS_FA, 252)
        a("s_setprio 0")
        self.signal(FAS)
        a.label("L_ga_go")
        self.stamp(9)
        a(f"s_add_u32 s64, s{sT+8}, 4096\ns_add_u32 s65, s{sT+8}, 8192\ns_add_u32 s66, s{sT+8}, 12288\ns_add_u32 s67, s{sT+8}, 16384")
        def oload(ks): return f"buffer_load_dwordx4 v[{OF+4*ks}:{OF+4*ks+3}], v{vLin}, s[{sWS}:{sWS+3}], s{[sT+8, 64, 65, 66, 67][ks//4]} offen offset:{(ks%4)*1024} sc1"
        NPRE = 8
        for ks in range(NPRE): a(oload(ks))
        q = [("O", oload(ks)) for ks in range(NPRE, 20)]
        L = a.uid("Lb6")
        d2 = bk(7, 0, 4) + guarded(bk(11, 20480, 4), 2) + [f"s_cmp_lg_u32 s{sU}, 3\ns_cbranch_scc1 {L}\n" + "\n".join(bk(3, R + 15360, 4)) + f"\n{L}:"]
        d3 = bk(13, 30720, 4) + guarded(bk(17, 51200, 4), 3)
        nissued = NPRE
        for ks in range(20):
            if ks < 5: a(f"s_waitcnt vmcnt({nissued - 1 - ks})")
            if ks == 5:
                a("s_waitcnt vmcnt(0)"); self.poll(CNTA, 8, prio=0)
            if ks == 0: self.signal(BW0)
            if ks >= NW: a(f"s_waitcnt lgkmcnt({min(10, 10*(19-ks))})")
            if self.stamps == 5 and ks == 0: self.stamp(1)
            f = WF + 20 * (ks % NW)
            r = reads(ks + NW) if ks + NW < 20 else []
            for t in range(5):
                C = "0" if ks == 0 else f"v[{ACC+4*t}:{ACC+4*t+3}]"
                a(f"v_mfma_f32_16x16x32_bf16 v[{ACC+4*t}:{ACC+4*t+3}], v[{f+4*t}:{f+4*t+3}], v[{OF+4*ks}:{OF+4*ks+3}], {C}")
                for l in r[2*t:2*t+2]: a(l)
                if q and t != 4: a(q.pop(0)[1]); nissued += 1
                if ks >= 5 and d2 and t != 4: a(d2.pop(0))
                if ks >= 10 and d3 and t != 4: a(d3.pop(0))
            if ks == 6: self.signal(CNTA)
            if ks == 9:
                a("s_waitcnt vmcnt(0)"); self.signal(BWOL)
                self.poll(CNTA, 12, prio=0)
                if self.stamps == 5: self.stamp(2)
            if ks == 13: self.signal(CNTA)
            if ks == 17:
                a("s_waitcnt vmcnt(0)"); self.signal(LA2)
                a(f"ds_read_b32 v{vT}, v{vMISC} offset:{CNTA}")
        assert not d2 and not d3
        self.check_fast(vT, CNTA, 16, prio=0)
        for t in range(5): a(f"ds_write_b128 v25, v[{ACC+4*t}:{ACC+4*t+3}] offset:{1024*t}")
        a(f"ds_add_u32 v24, v{vONE} offset:{ACCA}")
        self.stamp(10)
```

```python
from gen import *
import gen

SL = [0, 36864, 73728, 110592]
SOF = [0, 1, 2, 3, 0, 1, 2, 3, 0, 1]
LSEQ = os.environ.get('LSEQ', 'I0 B I1 L0 I2 L1 I3 F0 I4 L2 F1 I5 L3 F2 I6 L4 F3 I7 L5 F4 I8 L6 F5 I9 L7 L8 L9').split()
ROT = os.environ.get('ROT', 'swap')
P0AFTER = int(os.environ.get('P0A', '-1'))
P0W2 = 147456; GATE2 = 160768
WS_G = 0x3000; WS_FY = 0xC0000; WS_Y = 0x1000000
sR2 = 12; sCT = 13; sK0 = 14
MD = 148
QKR = 152

class F2(Gen):
    def prologue(self):
        a = self.a
        a(f"""
s_cmp_ge_u32 s2, 256
s_cbranch_scc1 L_end
s_load_dwordx16 s[16:31], s[0:1], 0
s_load_dwordx8 s[32:39], s[0:1], 64
s_getpc_b64 s[8:9]
L_pc0:
""")
        if self.stamps: a("s_memrealtime s[100:101]")
        a(f"""
v_lshrrev_b32 v{vT}, 6, v0
v_and_b32 v{vL}, 63, v0
s_lshr_b32 s11, s2, 3
v_readfirstlane_b32 s{sW}, v{vT}
s_and_b32 s10, s2, 7
s_and_b32 s{sRB}, s11, 3
s_lshl2_add_u32 s{sRB}, s10, s{sRB}
s_lshr_b32 s{sHG}, s11, 2
s_and_b32 s{sT}, s11, 1
s_lshl1_add_u32 s{sR2}, s10, s{sT}
s_lshr_b32 s{sCT}, s11, 1
s_mul_i32 s{sT+1}, s{sCT}, 52
s_lshr_b32 s{sT+1}, s{sT+1}, 8
s_mul_i32 s{sT+1}, s{sT+1}, 5
s_sub_u32 s{sK0}, s{sCT}, s{sT+1}
s_lshl_b32 s{sK0}, s{sK0}, 1
v_mov_b32 v{vMISC}, {MISC}
v_lshlrev_b32 v{vLin}, 4, v{vL}
v_lshlrev_b32 v{vSIG}, 2, v{vL}
v_add_u32 v{vSIG}, {SCR}, v{vSIG}
v_cmp_eq_u32 vcc, 0, v{vL}
s_cmp_lt_u32 s{sW}, 4
v_cndmask_b32 v{vSIG}, v{vSIG}, v{vMISC}, vcc
v_cndmask_b32 v{vONE}, 0, 1, vcc
s_cbranch_scc1 L_M
""")
    def kb_next(self, s):
        self.a(f"s_add_u32 s{s}, s{s}, 1\ns_cmp_eq_u32 s{s}, 10\ns_cselect_b32 s{s}, 0, s{s}")

    def g_pre(self):
        a = self.a
        vW3 = 20
        a(f"""
s_sub_u32 s{sU}, s{sW}, 4
v_lshrrev_b32 v{vT}, 3, v{vL}
v_mul_u32_u24 v{vT}, 1280, v{vT}
v_lshrrev_b32 v{vT+1}, 4, v{vL}
v_xor_b32 v{vT+1}, v{vT+1}, v{vL}
v_and_b32 v{vT+1}, 7, v{vT+1}
v_lshl_add_u32 v{vXO}, v{vT+1}, 4, v{vT}
v_xor_b32 v{vXO+1}, 64, v{vXO}
v_add_u32 v{vXO+1}, 10240, v{vXO+1}
s_cmp_eq_u32 s{sW}, 7
s_cbranch_scc1 L_P0
s_setprio 1
s_mul_i32 s8, s{sR2}, 163840
s_mov_b32 s9, s{sK0}
s_cmp_lt_u32 s{sCT}, 12
s_cselect_b32 s10, 3, 1
s_cselect_b32 s{sT}, 0, 12
s_mul_i32 s10, s10, 1280
s_sub_u32 s{sT}, s{sCT}, s{sT}
s_mul_i32 s{sT}, s{sT}, 320
s_lshl_b32 s11, s10, 4                   ; 16 rows
""")
        for p in range(5):
            a(f"""
v_add_u32 v{vT}, {64*p}, v{vL}
v_mul_u32_u24 v{vT+1}, 3277, v{vT}
v_lshrrev_b32 v{vT+1}, 16, v{vT+1}
v_mul_u32_u24 v{vT+2}, 20, v{vT+1}
v_sub_u32 v{vT}, v{vT}, v{vT+2}
v_bfe_u32 v{vT+2}, v{vT+1}, 3, 1
v_lshlrev_b32 v{vT+2}, 1, v{vT+2}
v_xor_b32 v{vT}, v{vT}, v{vT+2}
v_mul_u32_u24 v{vT+1}, s10, v{vT+1}
v_lshl_add_u32 v{vT}, v{vT}, 4, v{vT+1}
v_add_u32 v{vW3+p}, s{sT}, v{vT}
""")
        a("s_waitcnt lgkmcnt(0)")
        if self.stamps: a(f"s_mov_b32 s{sST}, s100")
        self.srd(sX, 16, 2621440)
        a(f"""
s_cmp_lt_u32 s{sCT}, 12
s_cselect_b32 s{sWQ}, s18, s24
s_cselect_b32 s{sWQ+1}, s19, s25
s_mov_b32 s{sWQ+2}, 819200
s_cselect_b32 s{sWQ+2}, 2457600, s{sWQ+2}
s_mov_b32 s{sWQ+3}, 0x20000
s_cmp_eq_u32 s{sW}, 5
s_cbranch_scc1 L_ld5
s_cmp_eq_u32 s{sW}, 6
s_cbranch_scc1 L_ld6
""")
        share = [[("x", r) for r in range(12)],
                 [("w", p) for p in range(8)] + [("x", r) for r in range(12, 16)],
                 [("w", p) for p in range(8, 20)]]
        for ld in range(3):
            if ld: a.label(f"L_ld{4+ld}")
            def issue(i):
                sl = SL[SOF[i]]
                if ROT == "swap": a(f"s_and_b32 s9, s{sR2}, 1\ns_xor_b32 s9, s9, {i}\ns_add_u32 s9, s9, s{sK0}")
                elif ROT == "none": a(f"s_add_u32 s9, s{sK0}, {i}")
                elif ROT == "swap2": a(f"s_and_b32 s9, s{sR2}, 1\ns_lshl_b32 s9, s9, {1 if i < 8 else 0}\ns_xor_b32 s9, s9, {i}\ns_add_u32 s9, s9, s{sK0}")
                a(f"s_cmp_ge_u32 s9, 10\ns_cselect_b32 s{sT+4}, 10, 0\ns_sub_u32 s9, s9, s{sT+4}")
                a(f"s_lshl_b32 s{sT+4}, s9, 7\ns_add_u32 s{sT+4}, s{sT+4}, s8\ns_mul_i32 s{sT+5}, s9, s11\ns_lshl_b32 s{sT+5}, s{sT+5}, 2")
                cur = None
                for kind, n in share[ld]:
                    if kind == "x":
                        key = ("x", n >> 1)
                        pre = f"s_add_u32 s{sT+6}, s{sT+4}, {(n >> 1)*20480}" if key != cur else "s_nop 0"
                        a(f"s_mov_b32 m0, {sl + 1024*n}\n{pre}\nbuffer_load_dwordx4 v{vXO + (n & 1)}, s[{sX}:{sX+3}], s{sT+6} offen lds")
                    else:
                        key = ("w", n // 5)
                        pre = f"s_mul_i32 s{sT+6}, s11, {n // 5}\ns_add_u32 s{sT+6}, s{sT+6}, s{sT+5}" if key != cur else "s_nop 0"
                        a(f"s_mov_b32 m0, {sl + 16384 + 1024*n}\n{pre}\nbuffer_load_dwordx4 v{vW3 + n % 5}, s[{sWQ}:{sWQ+3}], s{sT+6} offen lds")
                    cur = key
            def landed(i, cnt):
                a(f"s_waitcnt vmcnt({cnt})"); self.signal(FLW + 4*i)
                if self.stamps == 7 and i in (0, 2, 4, 6, 8, 9): self.stamp({0:5, 2:6, 4:7, 6:8, 8:9, 9:10}[i])
            issued = []
            for op in LSEQ:
                if op == "B": a("s_barrier")
                elif op == "P": self.poll(P0D, 1)
                elif op[0] == "I": issue(int(op[1:])); issued.append(int(op[1:]))
                elif op[0] == "F": self.poll(FREE + 4*int(op[1:]), 4)
                else: landed(int(op[1:]), 12*(len(issued) - 1 - issued.index(int(op[1:]))))
            a("s_branch L_g_join")
        a.label("L_P0")
        a("s_setprio 3")
        vEP = 249; vXF = 244; vWp = 248; vGp = 246; T0 = 240; T1 = 236; T2 = 232
        a(f"""
s_lshl_b32 s{sT+8}, s10, 4
s_add_u32 s{sT+8}, s{sT+8}, s{sCT}
s_mul_i32 s{sT+9}, s{sT+8}, 20480
s_lshl_b32 s{sT+8}, s{sT+8}, 4
s_lshl_b32 s{sT}, s11, 7
s_mov_b32 exec_hi, 0
v_lshlrev_b32 v{vT}, 12, v{vL}
v_add_u32 v{vT}, s{sT}, v{vT}
v_min_u32 v{vT}, L_code_end-L_pc0, v{vT}
v_mov_b32 v{vT+1}, s9
v_add_co_u32 v{vT}, vcc, s8, v{vT}
v_addc_co_u32 v{vT+1}, vcc, 0, v{vT+1}, vcc
global_load_dword v0, v[{vT}:{vT+1}], off
s_mov_b64 exec, -1
""")
        a(f"""
v_and_b32 v{vXF}, 15, v{vL}
v_mul_u32_u24 v{vXF}, 1280, v{vXF}
v_and_b32 v{vGp}, 48, v{vL}
v_add_u32 v{vXF}, v{vXF}, v{vGp}
v_add_u32 v{vGp}, {GATE2}, v{vGp}
""")
        self.tr_base(vWp, 40, swap=False)
        a(f"v_add_u32 v{vWp}, {P0W2}, v{vWp}\nv_mov_b32 v{vT+5}, 0\ns_waitcnt lgkmcnt(0)")
        if self.stamps: a(f"s_mov_b32 s{sST}, s100")
        self.srd(sX, 16, 2621440); self.srd(sWS, 38, WS_SIZE); self.srd(sGATE, 32, 1280)
        a(f"""
s_bitcmp1_b32 s{sR2}, 0
s_cselect_b32 s{sWKV}, s28, s26
s_cselect_b32 s{sWKV+1}, s29, s27
s_mov_b32 s{sWKV+2}, 25600
s_mov_b32 s{sWKV+3}, 0x20000
buffer_load_dword v{vEP}, v{vT+5}, s[{sWS}:{sWS+3}], 0 offen sc1
s_barrier
""")
        if P0AFTER >= 0: self.poll(FREE + 4*P0AFTER, 4, sleep=2)
        a(f"""
s_mov_b32 m0, {GATE2}
s_nop 0
buffer_load_dwordx4 v{vLin}, s[{sGATE}:{sGATE+3}], 0 offen lds
buffer_load_dwordx4 v{vLin}, s[{sGATE}:{sGATE+3}], 0 offen offset:1024 lds
""")
        XR = 140
        def whalf(h):
            for wp in range(13):
                a(f"s_mov_b32 m0, {P0W2 + 1024*wp}\ns_movk_i32 s{sT+7}, {12800*h + 1024*wp}")
                a(f"buffer_load_dwordx4 v{vLin}, s[{sWKV}:{sWKV+3}], s{sT+7} offen lds")
        whalf(0)
        for ks in range(20):
            a(f"buffer_load_dwordx4 v[{XR+4*ks}:{XR+4*ks+3}], v{vXF}, s[{sX}:{sX+3}], s{sT+9} offen offset:{ks*64}")
        self.stamp(1)
        def fr(ks): return 20 + 12 * (ks % 10)
        def loop(isV):
            for h in range(2):
                a("s_waitcnt vmcnt(20)" if h == 0 else "s_waitcnt vmcnt(0)")
                for ks in range(10*h, 10*h + 10):
                    f = fr(ks)
                    for t in range(2):
                        o = (ks % 10)*1280 + 32*t
                        a(f"ds_read_b64_tr_b16 v[{f+4*t}:{f+1+4*t}], v{vWp} offset:{o}")
                        a(f"ds_read_b64_tr_b16 v[{f+2+4*t}:{f+3+4*t}], v{vWp} offset:{o+160}")
                    if not isV: a(f"ds_read_b128 v[{f+8}:{f+11}], v{vGp} offset:{ks*64}")
                a("s_waitcnt lgkmcnt(0)")
                if h == 0:
                    whalf(1); a("s_waitcnt vmcnt(23)")
                for ks in range(10*h, 10*h + 10):
                    f = fr(ks)
                    for t, T in ((0, T0), (1, T1), (2, T2)):
                        if t == 2 and isV: continue
                        xf = f"v[{XR+4*ks}:{XR+4*ks+3}]"; wf = f"v[{f+4*t}:{f+3+4*t}]"
                        A, B = (xf, wf) if isV else (wf, xf)
                        a(f"v_mfma_f32_16x16x32_bf16 v[{T}:{T+3}], {A}, {B}, " + ("0" if ks == 0 else f"v[{T}:{T+3}]"))
        a(f"s_bitcmp1_b32 s{sR2}, 0\ns_cbranch_scc1 L_P0V")
        loop(False)
        a(f"""
v_and_b32 v{vT}, 15, v{vL}
v_lshrrev_b32 v{vT+1}, 4, v{vL}
v_add_u32 v{vT}, s{sT+8}, v{vT}
v_lshlrev_b32 v{vT+4}, 2, v{vT}
v_mul_u32_u24 v{vT}, 48, v{vT}
v_lshl_add_u32 v{vT}, v{vT+1}, 3, v{vT}
s_mov_b32 s{sT}, {WS_K}
s_movk_i32 s{sT+1}, {WS_G}
v_mov_b32 v{vT+2}, 0
v_cvt_pk_bf16_f32 v{T0}, v{T0}, v{T0+1}
v_cvt_pk_bf16_f32 v{T0+1}, v{T0+2}, v{T0+3}
v_cvt_pk_bf16_f32 v{T1}, v{T1}, v{T1+1}
v_cvt_pk_bf16_f32 v{T1+1}, v{T1+2}, v{T1+3}
buffer_store_dwordx2 v[{T0}:{T0+1}], v{vT}, s[{sWS}:{sWS+3}], s{sT} offen sc1
s_mov_b32 exec_hi, 0
s_mov_b32 exec_lo, 0xffff0000
v_mov_b32 v{T1}, 0x3f803f80
v_mov_b32 v{T1+1}, 0x3f80
s_mov_b32 exec_lo, -1
buffer_store_dwordx2 v[{T1}:{T1+1}], v{vT}, s[{sWS}:{sWS+3}], s{sT} offen offset:32 sc1
s_mov_b32 exec_lo, 0xffff
v_mul_f32 v{T2}, {0x80000000 | LOG2E}, v{T2}
v_exp_f32 v{T2}, v{T2}
v_add_f32 v{T2}, 1.0, v{T2}
v_rcp_f32 v{T2}, v{T2}
buffer_store_dword v{T2}, v{vT+4}, s[{sWS}:{sWS+3}], s{sT+1} offen sc1
v_dot2_f32_bf16 v{vT+2}, v{T1}, v{T1}, v{vT+2}
v_dot2_f32_bf16 v{vT+2}, v{T1+1}, v{T1+1}, v{vT+2}
s_mov_b64 exec, -1
v_dot2_f32_bf16 v{vT+2}, v{T0}, v{T0}, v{vT+2}
v_dot2_f32_bf16 v{vT+2}, v{T0+1}, v{T0+1}, v{vT+2}
v_mov_b32 v{vT+3}, v{vT+2}
v_permlane16_swap_b32 v{vT+2}, v{vT+3}
v_add_f32 v{vT+2}, v{vT+2}, v{vT+3}
v_mov_b32 v{vT+3}, v{vT+2}
v_permlane32_swap_b32 v{vT+2}, v{vT+3}
v_add_f32 v{vT+2}, v{vT+2}, v{vT+3}
v_max_f32_dpp v{vT+2}, v{vT+2}, v{vT+2} row_ror:8 row_mask:0xf bank_mask:0xf
v_max_f32_dpp v{vT+2}, v{vT+2}, v{vT+2} row_ror:4 row_mask:0xf bank_mask:0xf
v_max_f32_dpp v{vT+2}, v{vT+2}, v{vT+2} row_ror:2 row_mask:0xf bank_mask:0xf
v_max_f32_dpp v{vT+2}, v{vT+2}, v{vT+2} row_ror:1 row_mask:0xf bank_mask:0xf
v_mov_b32 v{vT+5}, v{vT+2}
s_branch L_P0pub
""")
        a.label("L_P0V")
        loop(True)
        a(f"""
v_and_b32 v{vT}, 15, v{vL}
v_lshrrev_b32 v{vT+1}, 5, v{vL}
v_mul_u32_u24 v{vT+1}, 336, v{vT+1}
v_lshl_add_u32 v{vT+1}, v{vT}, 4, v{vT+1}
v_bfe_u32 v{vT+2}, v{vL}, 4, 1
v_lshl_add_u32 v{vT+1}, v{vT+2}, 3, v{vT+1}
s_mul_i32 s{sT}, s{sT+8}, 42
s_add_u32 s{sT}, s{sT}, {WS_V}
v_cvt_pk_bf16_f32 v{T0}, v{T0}, v{T0+1}
v_cvt_pk_bf16_f32 v{T0+1}, v{T0+2}, v{T0+3}
v_cvt_pk_bf16_f32 v{T1}, v{T1}, v{T1+1}
v_cvt_pk_bf16_f32 v{T1+1}, v{T1+2}, v{T1+3}
buffer_store_dwordx2 v[{T0}:{T0+1}], v{vT+1}, s[{sWS}:{sWS+3}], s{sT} offen sc1
s_mov_b32 exec_lo, 0x00100010
s_mov_b32 exec_hi, 0x00100010
v_mov_b32 v{T1}, 0x3f803f80
v_mov_b32 v{T1+1}, 0x3f803f80
s_mov_b32 exec_lo, 0x001f001f
s_mov_b32 exec_hi, 0x001f001f
buffer_store_dwordx2 v[{T1}:{T1+1}], v{vT+1}, s[{sWS}:{sWS+3}], s{sT} offen offset:256 sc1
s_mov_b64 exec, -1
v_mov_b32 v{vT+5}, 0
""")
        a.label("L_P0pub")
        a(f"""
v_readfirstlane_b32 s{sTAG}, v{vEP}
s_mul_i32 s{sTAG}, s{sTAG}, 0x41C64E6D
s_add_u32 s{sTAG}, s{sTAG}, 0x3039
v_mov_b32 v{vT+4}, s{sTAG}
s_getreg_b32 s{sT+11}, hwreg(HW_REG_XCC_ID, 0, 4)
v_add_u32 v{vT+5}, 15, v{vT+5}
v_and_b32 v{vT+5}, -16, v{vT+5}
v_or_b32 v{vT+5}, s{sT+11}, v{vT+5}
s_lshl_b32 s{sT}, s2, 3
s_add_u32 s{sT}, s{sT}, {WS_GRAN}
v_mov_b32 v{vT}, 0
s_waitcnt vmcnt(0)
s_mov_b64 exec, 1
buffer_store_dwordx2 v[{vT+4}:{vT+5}], v{vT}, s[{sWS}:{sWS+3}], s{sT} offen sc1
ds_write_b32 v{vMISC}, v{vT+4} offset:{TAGO}
s_mov_b64 exec, -1
""")
        self.stamp(2)
        self.poll(FREE + 4*GPOLL_AFTER, 4)
        a(f"""
v_lshlrev_b32 v{vT}, 5, v{vL}
s_movk_i32 s{sT}, {WS_GRAN}
s_mov_b32 s{sCNT}, 0x8000
L_gpoll:
buffer_load_dwordx4 v[120:123], v{vT}, s[{sWS}:{sWS+3}], s{sT} offen sc1
buffer_load_dwordx4 v[124:127], v{vT}, s[{sWS}:{sWS+3}], s{sT} offen offset:16 sc1
s_waitcnt vmcnt(0)
v_cmp_eq_u32 vcc, s{sTAG}, v120
v_cmp_eq_u32 s[{sT+2}:{sT+3}], s{sTAG}, v122
v_cmp_eq_u32 s[{sT+4}:{sT+5}], s{sTAG}, v124
v_cmp_eq_u32 s[{sT+6}:{sT+7}], s{sTAG}, v126
s_and_b64 vcc, vcc, s[{sT+2}:{sT+3}]
s_and_b64 s[{sT+4}:{sT+5}], s[{sT+4}:{sT+5}], s[{sT+6}:{sT+7}]
s_and_b64 vcc, vcc, s[{sT+4}:{sT+5}]
s_cmp_eq_u64 vcc, -1
s_cbranch_scc1 L_gdone
s_sleep 16
s_sub_u32 s{sCNT}, s{sCNT}, 1
s_cmp_lg_u32 s{sCNT}, 0
s_cbranch_scc1 L_gpoll
L_gdone:
s_lshl_b32 s{sT}, s{sRB}, 8
s_add_u32 s{sT}, s{sT}, {WS_G}
v_lshlrev_b32 v130, 2, v{vL}
buffer_load_dword v131, v130, s[{sWS}:{sWS+3}], s{sT} offen sc1
s_bitcmp1_b32 s2, 0
s_cselect_b64 vcc, -1, 0
v_cndmask_b32 v128, v121, v123, vcc
v_cndmask_b32 v129, v125, v127, vcc
s_bitcmp1_b32 s2, 1
s_cselect_b64 vcc, -1, 0
v_cndmask_b32 v128, v128, v129, vcc
v_and_b32 v128, 15, v128
v_cmp_ne_u32 vcc, s{sT+11}, v128
s_bfe_u32 s{sT+2}, s2, 0x10002
s_lshl_b32 s{sT+2}, 0x55555555, s{sT+2}
s_or_b32 s{sT+3}, vcc_lo, vcc_hi
s_and_b32 s{sT+3}, s{sT+3}, s{sT+2}
s_cselect_b32 s{sT+3}, 0, 1
v_mov_b32 v128, s{sT+3}
v_max3_f32 v121, v121, v123, v125
v_max_f32 v121, v121, v127
v_max_f32_dpp v121, v121, v121 row_ror:8 row_mask:0xf bank_mask:0xf
v_max_f32_dpp v121, v121, v121 row_ror:4 row_mask:0xf bank_mask:0xf
v_max_f32_dpp v121, v121, v121 row_ror:2 row_mask:0xf bank_mask:0xf
v_max_f32_dpp v121, v121, v121 row_ror:1 row_mask:0xf bank_mask:0xf
v_mov_b32 v122, v121
v_permlane16_swap_b32 v121, v122
v_max_f32 v121, v121, v122
v_mov_b32 v122, v121
v_permlane32_swap_b32 v121, v122
v_max_f32 v121, v121, v122
s_mov_b64 exec, 1
ds_write_b32 v{vMISC}, v121 offset:{KMAX}
ds_write_b32 v{vMISC}, v128 offset:{SAMEX}
s_mov_b64 exec, -1
""")
        self.signal(KVR)
        a(f"""
v_add_u32 v130, v{vMISC}, v130
s_waitcnt vmcnt(0)
ds_write_b32 v130, v131 offset:{GBUF}
s_cmp_lg_u32 s2, 0
s_cbranch_scc1 L_noepoch
s_mov_b64 exec, 1
v_mov_b32 v{vT}, 0
v_mov_b32 v{vT+4}, s{sTAG}
buffer_store_dword v{vT+4}, v{vT}, s[{sWS}:{sWS+3}], 0 offen sc1
s_mov_b64 exec, -1
L_noepoch:
""")
        self.signal(KVR)
        a.label("L_g_join")
        self.stamp(4)

    def m_pre(self):
        a = self.a
        ACC = 20; FB = [100, 136]; AX = 232; AW = 240; vFL = 248
        a.label("L_M")
        a(f"""
s_cmp_lg_u32 s{sW}, 0
s_cbranch_scc1 L_m_noinit
v_mov_b64 v[{vT}:{vT+1}], 0
v_mov_b64 v[{vT+2}:{vT+3}], 0
v_add_u32 v{vT+4}, v{vLin}, v{vMISC}
ds_write_b128 v{vT+4}, v[{vT}:{vT+3}]
v_mov_b32 v{vT}, 0x3f803f80
v_mov_b32 v{vT+1}, 0x3f803f80
ds_write_b64 v{vMISC}, v[{vT}:{vT+1}] offset:{ONES}
L_m_noinit:
s_waitcnt lgkmcnt(0)
""")
        if self.stamps: a(f"s_mov_b32 s{sST}, s100")
        a("s_barrier")
        self.srd(sWS, 38, WS_SIZE)
        self.xfrag_lane(AX)
        a(f"s_lshr_b32 s{sT}, s{sW}, 1\ns_lshl_b32 s{sT}, s{sT}, 13\nv_add_u32 v{AX}, s{sT}, v{AX}\nv_xor_b32 v{AX+1}, 64, v{AX}")
        self.tr_base(AW, 320, swap=False)
        a(f"""
s_and_b32 s10, s{sW}, 1
s_mul_i32 s{sT}, s10, 160
s_add_u32 s{sT}, s{sT}, 16384
v_add_u32 v{AW}, s{sT}, v{AW}
v_bfe_u32 v{vT}, v{vL}, 4, 1
v_lshlrev_b32 v{vT}, 5, v{vT}
s_cmp_eq_u32 s10, 0
s_cselect_b32 s{sT}, 1, -1
v_mul_i32_i24 v{vT}, s{sT}, v{vT}
v_sub_u32 v{AW+1}, v{AW}, v{vT}
v_add_u32 v{AW}, v{AW}, v{vT}
""")
        for sl in range(1, 4):
            for e in range(2):
                a(f"v_add_u32 v{AX+2*sl+e}, {SL[sl]}, v{AX+e}\nv_add_u32 v{AW+2*sl+e}, {SL[sl]}, v{AW+e}")
        a(f"""
v_and_b32 v{vT}, 31, v{vL}
v_lshrrev_b32 v{vT+1}, 5, v{vL}
v_mul_u32_u24 v{vKb}, 48, v{vT}
v_lshl_add_u32 v{vKa}, v{vT+1}, 4, v{vKb}
v_lshl_add_u32 v{vKb}, v{vT+1}, 3, v{vKb}
v_mul_u32_u24 v{vT+2}, 336, v{vT+1}
v_lshl_add_u32 v{vVa}, v{vT}, 4, v{vT+2}
v_mov_b32 v{vT+3}, 0x7fffffff
v_cmp_lt_u32 vcc, 20, v{vT}
v_cndmask_b32 v{vVa}, v{vVa}, v{vT+3}, vcc
s_mul_i32 s{sK}, s10, 49152
s_add_u32 s{sK}, s{sK}, {WS_K}
s_mul_i32 s{sV}, s10, 43008
s_add_u32 s{sV}, s{sV}, {WS_V}
v_mul_u32_u24 v10, 160, v{vT}
v_lshl_add_u32 v10, v{vT+1}, 4, v10
v_lshl_add_u32 v12, v{vT}, 2, v{vMISC}
v_mov_b32 v{vIDX}, 0xdddddddd
v_and_b32 v{vT}, 15, v{vL}
v_mul_u32_u24 v13, 160, v{vT}
v_lshrrev_b32 v{vT+1}, 4, v{vL}
v_lshl_add_u32 v14, v{vT+1}, 3, v13
v_bfe_u32 v{vT+1}, v{vL}, 4, 1
v_lshl_add_u32 v13, v{vT+1}, 5, v13
v_lshrrev_b32 v{vT+1}, 5, v{vL}
v_lshl_add_u32 v13, v{vT+1}, 4, v13
s_lshl1_add_u32 s{sT+8}, s{sCT}, s10
s_mul_i32 s{sT+8}, s{sT+8}, 327680
s_lshr_b32 s{sT}, s{sW}, 1
s_lshl1_add_u32 s{sT}, s{sR2}, s{sT}
s_mul_i32 s{sT}, s{sT}, 10240
s_add_u32 s{sT+8}, s{sT+8}, s{sT}
s_add_u32 s{sT+8}, s{sT+8}, {WS_Y}
s_add_u32 s{sT+9}, s{sT+8}, 5120
s_cmp_lt_u32 s{sCT}, 12
s_cselect_b32 s{sT+10}, 1.0, {CSC}
""")
        for i in range(4): a(f"v_mov_b64 v[{V_[3]+2*i}:{V_[3]+2*i+1}], 0")
        self.stamp(1)
        def reads(j):
            i = j >> 1; hs = j & 1; f = FB[hs]; sl = SOF[i]; out = []
            for rt in range(4): out.append(f"ds_read_b128 v[{f+4*rt}:{f+4*rt+3}], v{AX+2*sl+hs} offset:{rt*2048}")
            for t in range(5):
                ff = f + 16 + 4*t
                out.append(f"ds_read_b64_tr_b16 v[{ff}:{ff+1}], v{AW+2*sl+(t&1)} offset:{hs*10240 + 32*t}")
                out.append(f"ds_read_b64_tr_b16 v[{ff+2}:{ff+3}], v{AW+2*sl+(t&1)} offset:{hs*10240 + 32*t + 1280}")
            return out
        def mfmas(j):
            f = FB[j & 1]; out = []
            for t in range(5):
                for rt in range(4):
                    c = ACC + 4*(5*rt + t)
                    out.append(f"v_mfma_f32_16x16x32_bf16 v[{c}:{c+3}], v[{f+16+4*t}:{f+19+4*t}], v[{f+4*rt}:{f+4*rt+3}], " + ("0" if j == 0 else f"v[{c}:{c+3}]"))
            return out
        self.poll(FLW + 0, 3)
        for l in reads(0): a(l)
        for j in range(20):
            i = j >> 1
            a("s_waitcnt lgkmcnt(0)")
            m = mfmas(j); r = reads(j+1) if j < 19 else []
            if j & 1:
                self.signal(FREE + 4*i) if i < 9 else self.signal(MD)
                if self.stamps == 7 and i in (0, 2, 4, 6, 8): self.stamp(5 + i // 2)
            a(m[0])
            if (j & 1) and j < 19: self.check_fast(vFL, FLW + 4*(i+1), 3)
            if j == 19:
                a(f"v_readfirstlane_b32 s11, v{vFL}\ns_cmp_eq_u32 s11, 0\ns_cbranch_scc1 L_m_nokv1")
                self.kv_first()
                a.label("L_m_nokv1")
            for n in range(1, 20):
                if r: a(r.pop(0))
                if n == 17 and not (j & 1): a(f"ds_read_b32 v{vFL}, v{vMISC} offset:{FLW + 4*(i+1)}")
                a(m[n])
            assert not r
        self.stamp(2)
        self.poll(KVR, 1)
        a(f"ds_read_b32 v{vT+1}, v{vMISC} offset:{SAMEX}\nds_read_b32 v{vT+2}, v{vMISC} offset:{TAGO}")
        a(f"s_cmp_lt_u32 s{sCT}, 12\ns_cbranch_scc1 L_m_nosc")
        for i in range(80): a(f"v_mul_f32 v{ACC+i}, s{sT+10}, v{ACC+i}")
        a.label("L_m_nosc")
        PKD = 100
        for rt in range(4):
            for t in range(5):
                c = ACC + 4*(5*rt + t); d = PKD + 12*rt + 2*t
                a(f"v_cvt_pk_bf16_f32 v{d}, v{c}, v{c+1}\nv_cvt_pk_bf16_f32 v{d+1}, v{c+2}, v{c+3}")
        for rt in range(4):
            for p in range(2):
                d = PKD + 12*rt + 4*p
                a(f"v_permlane16_swap_b32 v{d}, v{d+2}\nv_permlane16_swap_b32 v{d+1}, v{d+3}")
        a(f"""
s_waitcnt lgkmcnt(0)
v_readfirstlane_b32 s{sSX}, v{vT+1}
v_readfirstlane_b32 s{sTAG}, v{vT+2}
s_lshr_b32 s{sT}, s{sW}, 1
s_and_b32 s{sT}, s{sT}, s{sR2}
s_sub_u32 s{sT+1}, s{sCT}, 4
s_cmp_lt_u32 s{sT+1}, 8
s_cselect_b32 s{sT}, s{sT}, 0
s_mov_b32 s{sT+11}, s{sSX}
s_andn2_b32 s{sSX}, s{sSX}, s{sT}
""")
        n0 = len(a.ins)
        for rt in range(4):
            so = sT + 8 + (rt >> 1); o = (rt & 1) * 2560; d = PKD + 12*rt
            a(f"buffer_store_dwordx4 v[{d}:{d+3}], v13, s[{sWS}:{sWS+3}], s{so} offen offset:{o} sc1")
            a(f"buffer_store_dwordx4 v[{d+4}:{d+7}], v13, s[{sWS}:{sWS+3}], s{so} offen offset:{o+64} sc1")
            a(f"buffer_store_dwordx2 v[{d+8}:{d+9}], v14, s[{sWS}:{sWS+3}], s{so} offen offset:{o+128} sc1")
        self.dup_stores(n0)
        a(f"""
s_lshl_b32 s{sT}, s{sR2}, 4
s_add_u32 s{sT}, s{sT}, s{sCT}
s_lshl_b32 s{sT}, s{sT}, 7
s_lshl2_add_u32 s{sT}, s{sW}, s{sT}
s_add_u32 s{sT}, s{sT}, {WS_FY}
v_mov_b32 v{vT}, 0
v_mov_b32 v{vT+1}, s{sTAG}
""")
        for i in range(68, 100, 2): a(f"v_mov_b64 v[{i}:{i+1}], 0")
        a("s_mov_b64 exec, 1\ns_waitcnt vmcnt(0)")
        n0 = len(a.ins)
        a(f"buffer_store_dword v{vT+1}, v{vT}, s[{sWS}:{sWS+3}], s{sT} offen sc1")
        self.dup_stores(n0)
        a(f"s_mov_b64 exec, -1\ns_mov_b32 s{sSX}, s{sT+11}")
        self.stamp(3)
```

```python
import sys
from gen import *
import os
if os.environ.get('F2', '0') == '1':
    from genf2 import F2 as G
else:
    G = Gen

HEADER = open("gated_mix__sliding_local_dilated__grouped_kv_mqa__prompt.s.ref").read().split("; @launch")[0]

def dump_lds(g, lds_off, nbytes, ws_off, waves, first_wave=0):
    a = g.a
    a(f"""
v_lshlrev_b32 v20, 4, v{vL}
s_sub_u32 s{sT}, s{sW}, {first_wave}
s_lshl_b32 s{sT}, s{sT}, 10
v_add_u32 v20, s{sT}, v20
s_mul_i32 s{sT+1}, s2, {nbytes}
s_add_u32 s{sT+1}, s{sT+1}, {ws_off}
""")
    n = -(-nbytes // (1024*waves))
    for i in range(n):
        a(f"""
v_add_u32 v21, {lds_off + i*1024*waves}, v20
v_add_u32 v22, {i*1024*waves}, v20
v_cmp_gt_u32 vcc, {nbytes}, v22
s_and_saveexec_b64 s[{sT+2}:{sT+3}], vcc
ds_read_b128 v[24:27], v21
s_waitcnt lgkmcnt(0)
buffer_store_dwordx4 v[24:27], v22, s[{sWS}:{sWS+3}], s{sT+1} offen
s_mov_b64 exec, -1
s_waitcnt vmcnt(0)
""")

def build(stamps=False, stop=None):
    g = G(stamps=stamps, stop=stop)
    a = g.a
    g.prologue()
    g.g_pre()
    a("s_branch L_gmain" if stop != "pre" else "s_branch L_fin")
    g.m_pre()
    if stop == "pre":
        pass
    else:
        g.m_main()
        a.label("L_gmain")
        g.g_main()
    a.label("L_fin")
    if stamps:
        g.stamp(11)
        a(f"s_mov_b32 s{sWS}, s38\ns_load_dwordx2 s[{sWS}:{sWS+1}], s[0:1], 88\ns_mov_b32 s{sWS+2}, {WS_SIZE}\ns_mov_b32 s{sWS+3}, 0x20000\ns_waitcnt lgkmcnt(0)")
        a(f"s_lshl_b32 s{sT}, s2, 3\ns_add_u32 s{sT}, s{sT}, s{sW}\ns_lshl_b32 s{sT}, s{sT}, 6\ns_add_u32 s{sT}, s{sT}, {WS_DBG}\nv_mov_b32 v4, 0")
        for q in range(3):
            for i in range(4): a(f"v_mov_b32 v{8+i}, s{sST+4*q+i}")
            a(f"s_mov_b64 exec, 1\nbuffer_store_dwordx4 v[8:11], v4, s[{sWS}:{sWS+3}], s{sT} offen offset:{16*q}\ns_mov_b64 exec, -1\ns_waitcnt vmcnt(0)")
    if stamps == 6:
        a(f"""
s_and_b32 s{sT}, s{sW}, 3
s_cmp_lg_u32 s{sT}, 0
s_cbranch_scc1 L_end
s_mov_b32 s40, s36
s_mov_b32 s41, s37
s_mov_b32 s42, 256
s_mov_b32 s43, 0x20000
s_lshl_b32 s{sT}, s{sW}, 3
s_not_b32 s{sST}, s{sST}
v_mov_b32 v4, 0
s_mov_b64 exec, 1
""")
        for k, i in enumerate([0, 1, 3, 4, 5, 6, 7, 11]):
            a(f"v_mov_b32 v8, s{sST+i}\nbuffer_atomic_umax v8, v4, s[40:43], s{sT} offen offset:{4*k} sc1\ns_waitcnt vmcnt(0)")
    a.label("L_end")
    a("s_endpgm")
    a.ins += g.ool
    a.label("L_code_end")
    body = a.finalize()
    return HEADER + f"""; @launch grid=(256,1,1) block=(512,1,1) lds={LDS_SIZE}
.amdgcn_target "amdgcn-amd-amdhsa--gfx950"
.text
.globl {KNAME}
.p2align 8
.type {KNAME},@function
{KNAME}:
{body}
.section .rodata,"a"
.p2align 6
.amdhsa_kernel {KNAME}
  .amdhsa_next_free_vgpr 256
  .amdhsa_next_free_sgpr 102
  .amdhsa_accum_offset 256
  .amdhsa_group_segment_fixed_size 0
  .amdhsa_kernarg_size 96
  .amdhsa_user_sgpr_count 2
  .amdhsa_user_sgpr_kernarg_segment_ptr 1
  .amdhsa_system_sgpr_workgroup_id_x 1
.end_amdhsa_kernel
"""
if __name__ == "__main__":
    import argparse
    ap = argparse.ArgumentParser()
    ap.add_argument("--stamps", type=int, default=0)
    ap.add_argument("--stop", default=None)
    ap.add_argument("-o", default="k.s")
    args = ap.parse_args()
    open(args.o, "w").write(build(args.stamps, args.stop))
    print("wrote", args.o)
```

```python
from asmlib import *
import struct, math

KNAME = "gated_mix__sliding_local_dilated__grouped_kv_mqa__prompt_kernel"
def f32bits(x): return struct.unpack("<I", struct.pack("<f", x))[0]
XM = 0; XH = 81920; R = 102400; MISC = R + 60416; LDS_SIZE = 163840
P0W = XH; GATE = R + 56320; QBUF = R + 46080
SLOT = [R+15360, R+25600, R+35840, R+46080, R+5120, XH, XH+10240, R+15360, R+25600, R+35840]
RING = [R, R+15360, R+30720]
QA = R; KA = R + 10240; VA = R + 23040
RED = R + 35840
ARING = [R, R+10240, R+20480]
ACCAREA = 81920
FLW = 0; FREE = 64; KVR = 40; P0D = 116; KMAX = 120; GDONE = 124; ONES = 128; CNTG = 144
SCR = R + 58368; GBUF = 256; SAMEX = 112; FAS = 592; BW0 = 596; INVD = 600; HL = 604; CNTA = 512; BWOL = 560; LA1 = 564; LA2 = 568; PAIR = 576; ACCA = 608; TAGO = 632
WS_GRAN = 0x1000; WS_K = 0x40000; WS_V = 0x60000; WS_FA = 0x80000; WS_FB = 0xA0000; WS_FH = 0xC0000; WS_HALO = 0x1000000; WS_OAB = 0x100000
WS_DBG = 0x700000; WS_DUMP = 0x800000; WS_SIZE = 0x4000000
CSC = f32bits(20 ** -0.5 * math.log2(math.e))
LOG2E = f32bits(math.log2(math.e))
THR = f32bits(2.0 ** -64)
sW = 3; sRB = 4; sHG = 5; sTAG = 6; sCNT = 7; sK = 8; sV = 9; sKA = 12; sKB = 13; sTAU = 14; sU = 15; sSX = 39
sX = 40; sWQKV = 44; sAWO = 48; sWQ = 52; sWKV = 56; sBWO = 60; sGATE = 64; sOUT = 68; sWS = 72
sT = 76; sST = 88
vL = 1; vMISC = 2; vONE = 3; vSIG = 19; vT = 4
vW5 = 10; vXO = 15; vLin = 17
S_ = [20, 36, 52, 68]; O_ = [84, 100, 116, 132]; Q_ = [148, 154, 160, 166]; K_ = [172, 178, 184, 190]; V_ = [196, 204, 212, 220]
vIDX = 228; vKa = 229; vKb = 230; vVa = 231; vG = 232; vE = 234

import os
EXP = os.environ.get('EXP', '') + ',noacq,mw1'
GPOLL_AFTER = int(os.environ.get('GPA', '5'))
MSCHED = os.environ.get('MSCHED', 'old')
KVSC = '' if 'kvplain' in EXP else ' sc1'
MPRE = int(os.environ.get('MPRE', '6')); MIL = eval(os.environ.get('MIL', '(0, 2)'))
GSL = int(os.environ.get('GSL', '4'))
CPF = eval(os.environ.get('CPF', '[]'))
WST = int(os.environ.get('WST', '-1')); WSU = os.environ.get('WSU', '012')
WST2 = int(os.environ.get('WST2', '-1'))
SLW = ''; SLE = 56; SLO = 0
MW2 = int(os.environ.get('MW2', '1'))
PRE0 = 10
RPI = int(os.environ.get('RPI', '3'))
TOUCH = eval(os.environ.get('TOUCH', '[]'))
DSL = eval(os.environ.get('DSL', '[(2,5)]*4'))
GP = int(os.environ.get('GP', '0'))
gWO = 20; gXF = 24; gHF = 226; gWm = 28; gFL = 29; gTC = 30; ACCG = 32; GF = [104, 148]
lQa = 192; lKa = 193; lVt = 195; lVo = 197; lMK = 208; lPA = 205; lPH = 224

class Gen:
    def __init__(self, stamps=0, stop=None):
        self.a = Asm(); self.stamps = stamps; self.stop = stop; self.ool = []
    def stamp(self, i):
        if self.stamps: self.a(f"s_memrealtime s[100:101]\ns_waitcnt lgkmcnt(0)\ns_mov_b32 s{sST+i}, s100")
    def cstamp(self, i):
        if self.stamps: self.a(f"s_memtime s[100:101]\ns_waitcnt lgkmcnt(0)\ns_mov_b32 s{sST+i}, s100")
    def srd(self, d, ptr, size):
        self.a(f"s_mov_b32 s{d}, s{ptr}\ns_mov_b32 s{d+1}, s{ptr+1}\ns_mov_b32 s{d+2}, {size}\ns_mov_b32 s{d+3}, 0x20000")
    def poll(self, off, val, prio=None, tmp=vT, st=sT, vaddr=vMISC, sleep=0):
        a = self.a; L = a.uid("Lp"); D = a.uid("Lpd")
        a(f"s_mov_b32 s{sCNT}, 0x20000")
        a.label(L)
        a(f"ds_read_b32 v{tmp}, v{vaddr} offset:{off}\ns_waitcnt lgkmcnt(0)")
        if prio is not None: a("s_setprio 2")
        a(f"v_readfirstlane_b32 s{st}, v{tmp}")
        if prio is not None: a(f"s_setprio {prio}")
        a(f"s_cmp_ge_u32 s{st}, {val}\ns_cbranch_scc1 {D}")
        if sleep: a(f"s_sleep {sleep}")
        a(f"s_sub_u32 s{sCNT}, s{sCNT}, 1\ns_cmp_lg_u32 s{sCNT}, 0\ns_cbranch_scc1 {L}")
        a.label(D)
    def check_or_poll(self, vflag, off, val, prio=None):
        a = self.a; D = a.uid("Lck")
        if prio is not None: a("s_setprio 2")
        a(f"v_readfirstlane_b32 s{sT}, v{vflag}")
        if prio is not None: a(f"s_setprio {prio}")
        a(f"s_cmp_ge_u32 s{sT}, {val}\ns_cbranch_scc1 {D}")
        self.poll(off, val, prio=prio, tmp=vflag)
        a.label(D)
    def signal(self, off, vaddr=None):
        if vaddr is None:
            self.a(f"ds_add_u32 v{vSIG}, v{vONE} offset:{off}")
        else:
            self.a(f"s_mov_b64 exec, 1\nds_add_u32 v{vaddr}, v{vONE} offset:{off}\ns_mov_b64 exec, -1")
    def dup_stores(self, n0):
        a = self.a
        blk = a.ins[n0:]; del a.ins[n0:]
        X = a.uid("Lxs"); B = a.uid("Lxb")
        a(f"s_cmp_eq_u32 s{sSX}, 0\ns_cbranch_scc1 {X}")
        for i in blk: a(i.text.replace(" sc1", ""))
        a.label(B)
        self.ool += [Ins(X + ":")] + blk + [Ins(f"s_branch {B}")]
    def capture(self, fn):
        n = len(self.a.ins); fn(); out = self.a.ins[n:]; del self.a.ins[n:]; return out
    def check_fast(self, vflag, off, val, prio=None, vaddr=vMISC):
        a = self.a; S = a.uid("Lslow"); B = a.uid("Lback")
        if prio is not None: a("s_setprio 2")
        a(f"v_readfirstlane_b32 s{sT}, v{vflag}")
        if prio is not None: a(f"s_setprio {prio}")
        a(f"s_cmp_lt_u32 s{sT}, {val}\ns_cbranch_scc1 {S}")
        a.label(B)
        def slow():
            a.label(S); self.poll(off, val, prio=prio, tmp=vflag, vaddr=vaddr); a(f"s_branch {B}")
        self.ool += self.capture(slow)
    def xfrag_lane(self, d):
        self.a(f"""
v_and_b32 v{vT}, 15, v{vL}
v_lshrrev_b32 v{vT+1}, 1, v{vT}
v_lshrrev_b32 v{vT+2}, 4, v{vL}
v_xor_b32 v{vT+1}, v{vT+1}, v{vT+2}
v_lshlrev_b32 v{vT+1}, 4, v{vT+1}
v_lshl_add_u32 v{d}, v{vT}, 7, v{vT+1}
""")
    def tr_base(self, d, stride, swap=True):
        a = self.a
        if swap:
            a(f"v_lshrrev_b32 v{vT}, 5, v{vL}\nv_bfe_u32 v{vT+1}, v{vL}, 2, 3\nv_lshl_add_u32 v{vT}, v{vT}, 4, v{vT+1}")
        else:
            a(f"v_lshrrev_b32 v{vT}, 4, v{vL}\nv_bfe_u32 v{vT+1}, v{vL}, 2, 2\nv_lshl_add_u32 v{vT}, v{vT}, 3, v{vT+1}")
        a(f"v_mul_u32_u24 v{vT}, {stride}, v{vT}\nv_and_b32 v{vT+1}, 3, v{vL}\nv_lshl_add_u32 v{d}, v{vT+1}, 3, v{vT}")
    def swap23(self, d, s, t):
        self.a(f"""
v_and_b32 v{d}, 0x13, v{s}
v_and_b32 v{t}, 4, v{s}
v_lshl_or_b32 v{d}, v{t}, 1, v{d}
v_bfe_u32 v{t}, v{s}, 3, 1
v_lshl_or_b32 v{d}, v{t}, 2, v{d}
""")
    def dma(self, voff, srd, soff, m0expr):
        self.a(m0expr)
        self.a(f"buffer_load_dwordx4 v{voff}, s[{srd}:{srd+3}], {soff} offen lds")
    def issue_w160(self, srd, s_koff, lds_base, p0=0, p1=10):
        a = self.a
        for p in range(p0, p1):
            if p == 5 or (p == p0 and p0 > 5): a(f"s_add_u32 s{sT+3}, s{s_koff}, 40960")
            so = s_koff if p < 5 else sT + 3
            self.dma(vW5 + p % 5, srd, f"s{so}", f"s_mov_b32 m0, {lds_base + 1024*p}")

    def w160(self):
        a = self.a
        a(f"s_mul_i32 s{sT+7}, s{sHG}, 160")
        for p in range(5):
            a(f"""
v_add_u32 v{vT}, {64*p}, v{vL}
v_mul_u32_u24 v{vT+1}, 6554, v{vT}
v_lshrrev_b32 v{vT+1}, 16, v{vT+1}
v_mul_u32_u24 v{vT+2}, 10, v{vT+1}
v_sub_u32 v{vT}, v{vT}, v{vT+2}
""")
            self.swap23(vT+2, vT+1, vT+3)
            a(f"v_mul_u32_u24 v{vT+2}, 1280, v{vT+2}\nv_lshl_add_u32 v{vT}, v{vT}, 4, v{vT+2}\nv_add_u32 v{vW5+p}, s{sT+7}, v{vT}")

    def prologue(self):
        a = self.a
        a(f"""
s_cmp_ge_u32 s2, 256
s_cbranch_scc1 L_end
s_load_dwordx16 s[16:31], s[0:1], 0
s_load_dwordx8 s[32:39], s[0:1], 64
s_getpc_b64 s[8:9]
L_pc0:
""")
        if self.stamps: a("s_memrealtime s[100:101]")
        a(f"""
v_lshrrev_b32 v{vT}, 6, v0
v_and_b32 v{vL}, 63, v0
s_lshr_b32 s11, s2, 3
v_readfirstlane_b32 s{sW}, v{vT}
s_lshl_b32 s{sT}, s11, 7
s_cmp_lg_u32 s{sW}, 0
s_cbranch_scc1 L_nopf
s_mov_b32 exec_hi, 0
v_lshlrev_b32 v{vT}, 12, v{vL}
v_add_u32 v{vT}, s{sT}, v{vT}
v_min_u32 v{vT}, L_code_end-L_pc0, v{vT}
v_mov_b32 v{vT+1}, s9
v_add_co_u32 v{vT}, vcc, s8, v{vT}
v_addc_co_u32 v{vT+1}, vcc, 0, v{vT+1}, vcc
global_load_dword v0, v[{vT}:{vT+1}], off
s_mov_b64 exec, -1
L_nopf:
s_and_b32 s10, s2, 7
s_and_b32 s{sRB}, s11, 3
s_lshl2_add_u32 s{sRB}, s10, s{sRB}
s_lshr_b32 s{sHG}, s11, 2
s_and_b32 s{sKA}, s{sRB}, 1
s_mul_i32 s{sKA}, s{sKA}, 5
s_and_b32 s{sKB}, s{sRB}, 3
s_lshl_b32 s{sKB}, s{sKB}, 2
s_lshr_b32 s{sKB}, 0x8350, s{sKB}
s_and_b32 s{sKB}, s{sKB}, 15
s_lshr_b32 s{sTAU}, s{sHG}, 1
v_mov_b32 v{vMISC}, {MISC}
v_lshlrev_b32 v{vLin}, 4, v{vL}
v_lshrrev_b32 v{vT}, 3, v{vL}
v_mul_u32_u24 v{vT}, 1280, v{vT}
v_lshrrev_b32 v{vT+1}, 4, v{vL}
v_xor_b32 v{vT+1}, v{vT+1}, v{vL}
v_and_b32 v{vT+1}, 7, v{vT+1}
v_lshl_add_u32 v{vXO}, v{vT+1}, 4, v{vT}
v_xor_b32 v{vXO+1}, 64, v{vXO}
v_add_u32 v{vXO+1}, 10240, v{vXO+1}
s_lshl2_add_u32 s{sT+8}, s{sRB}, s{sTAU}
s_mul_i32 s{sT+9}, s{sT+8}, 20480
s_lshl_b32 s{sT+10}, s{sTAU}, 11
s_lshr_b32 s{sT}, s{sW}, 1
s_add_u32 s{sT}, s{sT}, 8                  ; kb = 8 + (w>>1)
s_lshl_b32 s{sT+1}, s{sT}, 7
s_add_u32 s{sT+1}, s{sT+1}, s{sT+9}        ; soffset (x)
s_lshl_b32 s{sT+2}, s{sT}, 13
s_add_u32 s{sT+2}, s{sT+2}, s{sT+10}
s_and_b32 s{sT+3}, s{sW}, 1
s_lshl_b32 s{sT+4}, s{sT+3}, 10
s_add_u32 s{sT+2}, s{sT+2}, s{sT+4}        ; m0 (x)
s_cmp_eq_u32 s{sT+3}, 1
s_cselect_b64 vcc, -1, 0
v_cndmask_b32 v18, v{vXO}, v{vXO+1}, vcc
s_xor_b32 s{sT+4}, s{sT+4}, 1024
s_add_u32 s{sT+5}, s{sT+4}, {GATE}
s_cmp_eq_u32 s{sW}, 4
s_cselect_b32 s{sT+4}, 24576, s{sT+4}
s_cselect_b32 s{sT+5}, {P0W+24576}, s{sT+5}
s_cmp_lt_u32 s{sW}, 4
s_cselect_b32 s{sT+1}, s{sT+1}, s{sT+4}
s_cselect_b32 s{sT+2}, s{sT+2}, s{sT+5}
s_cselect_b64 vcc, -1, 0
v_cndmask_b32 v18, v{vLin}, v18, vcc
s_lshl_b32 s{sT+4}, s{sW}, 7
s_add_u32 s{sT+4}, s{sT+4}, s{sT+9}
s_lshl_b32 s{sT+5}, s{sW}, 13
s_add_u32 s{sT+5}, s{sT+5}, s{sT+10}
s_lshl_b32 s{sT+6}, s{sW}, 10
""")
        a("s_waitcnt lgkmcnt(0)")
        if self.stamps: a(f"s_mov_b32 s{sST}, s100")
        if self.stamps == 4: self.stamp(5)
        self.srd(sX, 16, 2621440)
        a(f"""
s_mov_b32 m0, s{sT+5}
s_bitcmp1_b32 s{sHG}, 0
buffer_load_dwordx4 v{vXO}, s[{sX}:{sX+3}], s{sT+4} offen lds
s_cselect_b32 s{sWKV}, s28, s26
s_cselect_b32 s{sWKV+1}, s29, s27
s_add_u32 m0, s{sT+5}, 1024
s_mov_b32 s{sWKV+2}, 25600
buffer_load_dwordx4 v{vXO+1}, s[{sX}:{sX+3}], s{sT+4} offen lds
s_mov_b32 s{sWKV+3}, 0x20000
""")
        for i in range(3):
            a(f"s_add_u32 m0, s{sT+6}, {P0W}")
            a(f"s_nop 0\nbuffer_load_dwordx4 v{vLin}, s[{sWKV}:{sWKV+3}], s{sT+6} offen lds")
            if i < 2: a(f"s_add_u32 s{sT+6}, s{sT+6}, 8192")
        a(f"""
s_cmp_eq_u32 s{sW}, 4
s_cselect_b32 s{sGATE}, s{sWKV}, s32
s_cselect_b32 s{sGATE+1}, s{sWKV+1}, s33
s_cselect_b32 s{sGATE+2}, s{sWKV+2}, 1280
s_cmp_lt_u32 s{sW}, 4
s_cselect_b32 s{sGATE}, s16, s{sGATE}
s_cselect_b32 s{sGATE+1}, s17, s{sGATE+1}
s_cselect_b32 s{sGATE+2}, s{sX+2}, s{sGATE+2}
s_mov_b32 s{sGATE+3}, 0x20000
s_mov_b32 m0, s{sT+2}
""")
        self.srd(sWS, 38, WS_SIZE)
        a(f"""
buffer_load_dwordx4 v18, s[{sGATE}:{sGATE+3}], s{sT+1} offen lds
""")
        if self.stamps == 4: self.stamp(6)
        a(f"""
v_lshlrev_b32 v{vSIG}, 2, v{vL}
v_add_u32 v{vSIG}, {SCR}, v{vSIG}
v_cmp_eq_u32 vcc, 0, v{vL}
s_cmp_lt_u32 s{sW}, 4
v_cndmask_b32 v{vSIG}, v{vSIG}, v{vMISC}, vcc
v_cndmask_b32 v{vONE}, 0, 1, vcc
s_cbranch_scc1 L_M
""")

    def stouch(self, ptr, per_wg, starts, n, wreg, tmp=sT):
        a = self.a
        step = starts[1] - starts[0]
        a(f"""
s_mul_i32 s{tmp}, s{wreg}, {step}
s_min_u32 s{tmp}, s{tmp}, {starts[-1]}
s_mul_i32 s{tmp+1}, s2, {per_wg}
s_add_u32 s{tmp}, s{tmp}, s{tmp+1}
s_lshl_b32 s{tmp}, s{tmp}, 7
s_add_u32 s{tmp}, s{ptr}, s{tmp}
s_addc_u32 s{tmp+1}, s{ptr+1}, 0
""")
        return [f"s_load_dword s22, s[{tmp}:{tmp+1}], {128*i}" for i in range(n)]
    def kv_first(self):
        for l in self.loadK(0) + self.loadV(0) + self.loadK(1) + self.loadV(1) + self.loadK(2) + self.loadV(2) + self.loadK(3): self.a(l)
    def m_setup2(self):
        a = self.a; ACC = 232
        a(f"""
v_and_b32 v{vT}, 31, v{vL}
v_lshrrev_b32 v{vT+1}, 5, v{vL}
v_min_u32 v{vKb}, 32, v{vL}
v_lshlrev_b32 v{vKb}, 3, v{vKb}
v_lshlrev_b32 v{vT+2}, 8, v{vT+1}
v_lshl_add_u32 v{vVa}, v{vT}, 4, v{vT+2}
v_lshlrev_b32 v{vT+2}, 7, v{vT+1}
v_lshl_add_u32 v{vT+2}, v{vT}, 4, v{vT+2}
v_add_u32 v{vT+2}, 256, v{vT+2}
v_cmp_lt_u32 vcc, 15, v{vT}
v_cndmask_b32 v{vVa}, v{vVa}, v{vT+2}, vcc
v_mov_b32 v{vT+3}, 0x7fffffff
v_cmp_lt_u32 vcc, 20, v{vT}
v_cndmask_b32 v{vVa}, v{vVa}, v{vT+3}, vcc
s_and_b32 s10, s{sW}, 1
s_mul_i32 s{sK}, s10, 45056
s_add_u32 s{sK}, s{sK}, {WS_K}
s_mul_i32 s{sV}, s10, 49152
s_add_u32 s{sV}, s{sV}, {WS_V}
v_mul_u32_u24 v{vT+2}, 160, v{vT}
v_lshl_add_u32 v{vT+2}, v{vT+1}, 4, v{vT+2}
s_lshr_b32 s{sT}, s{sW}, 1
s_mul_i32 s{sT}, s{sT}, 80
s_add_u32 s{sT}, s{sT}, {QBUF}
s_mul_i32 s{sT+1}, s10, 5120
v_add_u32 v{vT+2}, s{sT}, v{vT+2}
v_add_u32 v10, s{sT+1}, v{vT+2}
s_sub_u32 s{sT+1}, 5120, s{sT+1}
v_add_u32 v11, s{sT+1}, v{vT+2}
s_lshl_b32 s{sT+1}, s10, 7
v_lshl_add_u32 v12, v{vT}, 2, v{vMISC}
v_add_u32 v12, s{sT+1}, v12
v_mov_b32 v{vIDX}, 0xdddddddd
v_and_b32 v{vT}, 15, v{vL}
v_lshrrev_b32 v{vT+1}, 4, v{vL}
s_lshl_b32 s{sT+1}, s{sW}, 4
v_add_u32 v{vT}, s{sT+1}, v{vT}
v_mul_u32_u24 v13, 160, v{vT}
v_lshl_add_u32 v13, v{vT+1}, 3, v13
v_add_u32 v13, {QBUF}, v13
v_lshl_add_u32 v14, v{vT}, 2, v{vMISC}
""")
        for i in range(12): a(f"v_mov_b64 v[{ACC+2*i}:{ACC+2*i+1}], 0")
        for i in range(84, 148, 2): a(f"v_mov_b64 v[{i}:{i+1}], 0")
        for i in range(4): a(f"v_mov_b64 v[{V_[3]+2*i}:{V_[3]+2*i+1}], 0")


    def kb_of(self, d, i):
        self.a(f"s_add_u32 s{d}, s{sKB}, {i}\ns_cmp_ge_u32 s{d}, 10\ns_cselect_b32 s{sT+1}, 10, 0\ns_sub_u32 s{d}, s{d}, s{sT+1}")
    def m_pre(self):
        a = self.a
        vXB = 76; vWa = 77; vWb = 78; vGB = 79; vFL = 80; ACC = 232
        a.label("L_M")
        a(f"""
s_lshl2_add_u32 s{sT+8}, s{sRB}, s{sW}
s_mul_i32 s{sT+8}, s{sT+8}, 20480
s_lshl_b32 s{sT+9}, s{sW}, 11
s_cmp_lg_u32 s{sW}, 0
s_cbranch_scc1 L_m_noinit
v_mov_b64 v[{vT}:{vT+1}], 0
v_mov_b64 v[{vT+2}:{vT+3}], 0
v_add_u32 v{vT+4}, v{vLin}, v{vMISC}
ds_write_b128 v{vT+4}, v[{vT}:{vT+3}]
v_mov_b32 v{vT}, 0x3f803f80
v_mov_b32 v{vT+1}, 0x3f803f80
ds_write_b64 v{vMISC}, v[{vT}:{vT+1}] offset:{ONES}
L_m_noinit:
""")
        def xissue(i):
            self.kb_of(sT+5, i)
            a(f"s_lshl_b32 s{sT+6}, s{sT+5}, 7\ns_add_u32 s{sT+6}, s{sT+6}, s{sT+8}\ns_lshl_b32 s{sT+7}, s{sT+5}, 13\ns_add_u32 s{sT+7}, s{sT+7}, s{sT+9}")
            for e in range(2):
                self.dma(vXO+e, sX, f"s{sT+6}", f"s_add_u32 m0, s{sT+7}, {XM + e*1024}")
        self.xfrag_lane(vXB)
        a(f"v_add_u32 v{vXB}, s{sT+9}, v{vXB}")
        self.tr_base(vWa, 160)
        a(f"""
v_add_u32 v{vWa}, {XH}, v{vWa}
v_and_b32 v{vT}, 48, v{vL}
v_add_u32 v{vGB}, {GATE}, v{vT}
""")
        AD = 148
        def setup():
            self.m_setup2()
            a(f"v_add_u32 v{vWb}, {R+35840-XH}, v{vWa}")
            for i in range(10):
                a(f"s_add_u32 s{sT+2}, s{sKB}, {i}\ns_cmp_ge_u32 s{sT+2}, 10\ns_cselect_b32 s{sT+3}, 10, 0\ns_sub_u32 s{sT+2}, s{sT+2}, s{sT+3}")
                a(f"""
s_lshl_b32 s{sT+3}, s{sT+2}, 13
s_lshl_b32 s{sT+2}, s{sT+2}, 7
v_add_u32 v{AD+3*i}, s{sT+3}, v{vXB}
v_add_u32 v{AD+3*i+2}, s{sT+2}, v{vGB}
v_xor_b32 v{AD+3*i+1}, 64, v{AD+3*i}
""")
        setup()
        a("s_waitcnt lgkmcnt(0)")
        if "st1" in EXP:
            for l in self.stouch(18, 75, [0, 19, 38, 56], 19, sW, tmp=sT+2): a(l)
        if "st2" in EXP:
            for l in self.stouch(20, 25, [0, 7, 14, 18], 7, sW, tmp=sT+2): a(l)
            for l in self.stouch(30, 25, [0, 7, 14, 18], 7, sW, tmp=sT+2): a(l)
        a(f"s_cmp_eq_u32 s{sW}, s{sTAU}\ns_cbranch_scc1 L_m_nox1")
        for i in range(5): xissue(i)
        if self.stamps == 4: self.stamp(7)
        a("s_waitcnt vmcnt(10)\ns_branch L_m_nox2")
        a.label("L_m_nox1")
        a("s_waitcnt vmcnt(0)")
        a.label("L_m_nox2")
        a("s_barrier")
        self.stamp(1)
        FB = [20, 48]
        def reads(j):
            i = j >> 1; hs = j & 1; f = FB[hs]; sl = SLOT[i]
            wb, woff = (vWb, sl - (R+35840)) if sl >= R+35840 else (vWa, sl - XH)
            g = [[f"ds_read_b128 v[{f}:{f+3}], v{AD+3*i+hs}", f"ds_read_b128 v[{f+24}:{f+27}], v{AD+3*i+2} offset:{hs*64}"]]
            for t in range(5):
                ff = f + 4 + 4*t
                g.append([f"ds_read_b64_tr_b16 v[{ff}:{ff+1}], v{wb} offset:{woff + hs*5120 + 32*t}",
                          f"ds_read_b64_tr_b16 v[{ff+2}:{ff+3}], v{wb} offset:{woff + hs*5120 + 32*t + 1280}"])
            return g
        def mfma(j, n):
            f = FB[j & 1]; t = (n + 5) % 6
            return f"v_mfma_f32_16x16x32_bf16 v[{ACC+4*t}:{ACC+4*t+3}], v[{f+4+4*t}:{f+7+4*t}], v[{f}:{f+3}], v[{ACC+4*t}:{ACC+4*t+3}]"
        need_free = {0, 1, 2, 3, 4, 5}
        if self.stamps == 4: self.stamp(8)
        self.poll(FLW + 0, 1)
        if self.stamps == 4: self.stamp(9); self.cstamp(4)
        a("s_waitcnt vmcnt(8)")
        for g in reads(0):
            for l in g: a(l)
        a(f"ds_read_b32 v{vFL}, v{vMISC} offset:{FLW + 4}")
        for j in range(20):
            i = j >> 1
            nxt = reads(j+1) if j < 19 else None
            for n in range(6):
                a(f"s_waitcnt lgkmcnt({10 if nxt else 10 - 2*n})")
                a(mfma(j, n))
                if n == 0 and (j & 1) and j < 19:
                    self.check_fast(vFL, FLW + 4*(i+1), 1)
                    if i + 1 < 5: a(f"s_waitcnt vmcnt({8 - 2*(i+1)})")
                if n == 0 and j == 19:
                    a(f"v_readfirstlane_b32 s11, v{vFL}\ns_cmp_eq_u32 s11, 0\ns_cbranch_scc1 L_m_nokv1")
                    self.kv_first()
                    a.label("L_m_nokv1")
                if nxt:
                    for l in nxt[n]: a(l)
                if self.stamps == 7 and n == 5 and j in (1, 5, 9, 13, 17): self.stamp(5 + j // 4)
                if n == 5 and (j & 1) and j < 19:
                    if i in need_free: self.signal(FREE + 4*i)
                    a(f"ds_read_b32 v{vFL}, v{vMISC} offset:{FLW + 4*(i+2)}")
                    if i == 8: a(f"ds_read_b32 v{vFL+1}, v{vMISC} offset:{FREE+12}")
        self.check_fast(vFL+1, FREE + 12, 4)
        if self.stamps == 4: self.cstamp(10)
        self.stamp(2)
        a(f"s_mov_b32 s{sT}, {CSC}")
        for b in range(4): a(f"v_mov_b64 v[{Q_[b]+4}:{Q_[b]+5}], 0")
        g = ACC + 20
        a(f"v_mul_f32 v{g}, {0x80000000 | LOG2E}, v{g}\nv_exp_f32 v{g}, v{g}")
        for t in range(5):
            c = ACC + 4*t
            for r in range(4): a(f"v_mul_f32 v{c+r}, s{sT}, v{c+r}")
            a(f"v_cvt_pk_bf16_f32 v{c}, v{c}, v{c+1}\nv_cvt_pk_bf16_f32 v{c+1}, v{c+2}, v{c+3}")
            a(f"ds_write_b64 v13, v[{c}:{c+1}] offset:{32*t}")
        a(f"""
v_add_f32 v{g}, 1.0, v{g}
v_rcp_f32 v{g}, v{g}
s_mov_b64 exec, 0xffff
ds_write_b32 v14, v{g} offset:{GBUF}
s_mov_b64 exec, -1
ds_read_b32 v{vFL}, v{vMISC} offset:{KVR}
s_waitcnt lgkmcnt(0)
s_cmp_lg_u32 s11, 0
s_cbranch_scc1 L_m_nokv3
v_readfirstlane_b32 s11, v{vFL}
s_cmp_eq_u32 s11, 0
s_cbranch_scc1 L_m_nokv3
""")
        self.kv_first()
        a("L_m_nokv3:\ns_barrier")
        self.stamp(3)

    def g_pre(self):
        a = self.a
        a.label("L_G")
        a(f"s_setprio 1\ns_sub_u32 s{sU}, s{sW}, 4\ns_cmp_eq_u32 s{sW}, 7\ns_cbranch_scc1 L_P0")
        self.srd(sWQ, 24, 819200)
        self.w160()
        a(f"""
s_add_u32 s{sT+4}, s{sKB}, s{sU}
s_cmp_ge_u32 s{sT+4}, 10
s_cselect_b32 s{sT+1}, 10, 0
s_sub_u32 s{sT+4}, s{sT+4}, s{sT+1}
s_mul_i32 s{sT+4}, s{sT+4}, 81920
s_mul_i32 s{sT+5}, s{sU}, 10240
s_add_u32 s{sT+3}, s{sT+4}, 40960
""")
        gs = self.capture(self.g_setup)
        cuts = [k for k in range(1, len(gs)) if gs[k].mn in ("v_add_u32", "v_mov_b64", "v_mul_u32_u24") and not gs[k-1].mn.startswith(("s_cmp", "v_cmp"))
                and not any(gs[q].mn.startswith("s_cselect") for q in range(k, min(k+3, len(gs))))]
        pos = [min(cuts, key=lambda c: abs(c - (p+1)*len(gs)//10)) for p in range(9)] + [len(gs)]
        k = 0
        for p in range(10):
            self.dma(vW5 + p % 5, sWQ, f"s{sT+4 if p < 5 else sT+3}", f"s_add_u32 m0, s{sT+5}, {R+15360+1024*p}")
            a.ins += gs[k:pos[p]]; k = pos[p]
        if self.stamps == 4: self.stamp(7)
        a("s_waitcnt vmcnt(10)\ns_barrier")
        self.stamp(1)
        def issue(i):
            self.kb_of(sT+4, i)
            a(f"s_mul_i32 s{sT+4}, s{sT+4}, 81920")
            self.issue_w160(sWQ, sT+4, SLOT[i])
        def landed(i, cnt):
            a(f"s_waitcnt vmcnt({cnt})"); self.signal(FLW + 4*i)
            if self.stamps == 7: self.stamp({0:5,3:6,7:7,9:8, 1:5,4:6,8:7, 2:5,5:6,6:7}[i])
        a(f"s_cmp_eq_u32 s{sW}, 5\ns_cbranch_scc1 L_ld5\ns_cmp_eq_u32 s{sW}, 6\ns_cbranch_scc1 L_ld6")
        landed(0, 0); issue(3); landed(3, 0)
        self.poll(FREE + 0, 4); issue(7)
        self.poll(FREE + 4*2, 4); issue(9)
        landed(7, 10); landed(9, 0)
        a("s_branch L_g_join")
        a.label("L_ld5")
        issue(4); landed(1, 10); landed(4, 0)
        self.poll(FREE + 4*1, 4); issue(8); landed(8, 0)
        a("s_branch L_g_join")
        a.label("L_ld6")
        landed(2, 0)
        for rt in range(4):
            L = a.uid("Lxs")
            a(f"s_cmp_eq_u32 s{sTAU}, {rt}\ns_cbranch_scc1 {L}\ns_lshl_b32 s{sT+8}, s{sRB}, 2\ns_add_u32 s{sT+8}, s{sT+8}, {rt}\ns_mul_i32 s{sT+8}, s{sT+8}, 20480")
            for i in range(5, 10):
                self.kb_of(sT+5, i)
                a(f"s_lshl_b32 s{sT+6}, s{sT+5}, 7\ns_add_u32 s{sT+6}, s{sT+6}, s{sT+8}\ns_lshl_b32 s{sT+7}, s{sT+5}, 13")
                for e in range(2):
                    self.dma(vXO+e, sX, f"s{sT+6}", f"s_add_u32 m0, s{sT+7}, {XM + rt*2048 + e*1024}")
            a.label(L)
        self.poll(P0D, 1); issue(5); issue(6)
        landed(5, 10); landed(6, 0)
        a("s_branch L_g_join")
        a.label("L_P0")
        vEP = 249; vXF = 244; vWp = 248; T0 = 0;
        T0 = 240; T1 = 236
        a(f"v_mov_b32 v{vT+5}, 0\nbuffer_load_dword v{vEP}, v{vT+5}, s[{sWS}:{sWS+3}], 0 offen sc1")
        self.xfrag_lane(vXF)
        a(f"v_add_u32 v{vXF}, s{sT+10}, v{vXF}\nv_add_u32 v{vXF+2}, 40960, v{vXF}\nv_xor_b32 v{vXF+1}, 64, v{vXF}\nv_xor_b32 v{vXF+3}, 64, v{vXF+2}")
        self.tr_base(vWp, 40, swap=False)
        a(f"v_add_u32 v{vWp}, {P0W}, v{vWp}")
        a(f"s_lshl_b32 s{sT+8}, s{sT+8}, 4")
        if self.stamps == 4: self.stamp(7)
        a("s_waitcnt vmcnt(1)\ns_barrier")
        self.stamp(1)
        NB = 16
        def fr(ks): return 20 + 12 * (ks % NB)
        def reads(ks):
            f = fr(ks); kb = ks >> 1; hs = ks & 1
            xa = vXF + (2 if kb >= 5 else 0) + hs
            a(f"ds_read_b128 v[{f}:{f+3}], v{xa} offset:{(kb%5)*8192}")
            for t in range(2):
                o = ks*1280 + 32*t
                a(f"ds_read_b64_tr_b16 v[{f+4+4*t}:{f+5+4*t}], v{vWp} offset:{o}")
                a(f"ds_read_b64_tr_b16 v[{f+6+4*t}:{f+7+4*t}], v{vWp} offset:{o+160}")
        def loop(isV):
            AHEAD = 3
            for ks in range(AHEAD): reads(ks)
            for ks in range(20):
                if ks + AHEAD < 20:
                    a(f"s_waitcnt lgkmcnt({5*(AHEAD-1)})")
                else:
                    a(f"s_waitcnt lgkmcnt({5*(19-ks)})")
                    if ks == 19:
                        self.signal(P0D)
                        if self.stamps == 4: self.stamp(8)
                f = fr(ks)
                for t, T in ((0, T0), (1, T1)):
                    xf = f"v[{f}:{f+3}]"; wf = f"v[{f+4+4*t}:{f+7+4*t}]"
                    A, B = (xf, wf) if isV else (wf, xf)
                    C = "0" if ks == 0 else f"v[{T}:{T+3}]"
                    a(f"v_mfma_f32_16x16x32_bf16 v[{T}:{T+3}], {A}, {B}, {C}")
                if ks + AHEAD < 20: reads(ks + AHEAD)
        a(f"s_bitcmp1_b32 s{sHG}, 0\ns_cbranch_scc1 L_P0V")
        loop(False)
        a(f"""
v_and_b32 v{vT}, 15, v{vL}
s_and_b32 s{sT+1}, s{sT+8}, 16
v_add_u32 v{vT}, s{sT+1}, v{vT}
v_lshlrev_b32 v{vT+3}, 3, v{vT}
v_lshrrev_b32 v{vT+1}, 5, v{vL}
v_lshlrev_b32 v{vT+1}, 9, v{vT+1}
v_lshl_add_u32 v{vT}, v{vT}, 4, v{vT+1}
v_bfe_u32 v{vT+1}, v{vL}, 4, 1
v_lshl_add_u32 v{vT}, v{vT+1}, 3, v{vT}
s_lshr_b32 s{sT}, s{sT+8}, 5
s_mul_i32 s{sT}, s{sT}, 1408
s_add_u32 s{sT}, s{sT}, {WS_K}
v_mov_b32 v{vT+2}, 0
v_cvt_pk_bf16_f32 v{T0}, v{T0}, v{T0+1}
v_cvt_pk_bf16_f32 v{T0+1}, v{T0+2}, v{T0+3}
v_cvt_pk_bf16_f32 v{T1}, v{T1}, v{T1+1}
v_cvt_pk_bf16_f32 v{T1+1}, v{T1+2}, v{T1+3}
buffer_store_dwordx2 v[{T0}:{T0+1}], v{vT}, s[{sWS}:{sWS+3}], s{sT} offen sc1
s_mov_b32 exec_hi, 0
s_mov_b32 exec_lo, 0xffff0000
v_mov_b32 v{T1}, 0x3f803f80
v_mov_b32 v{T1+1}, 0x3f80
v_lshl_add_u32 v{vT+3}, v{vL}, 3, 64
v_add_u32 v{vT+3}, 64, v{vT+3}
s_mov_b32 exec_lo, -1
buffer_store_dwordx2 v[{T1}:{T1+1}], v{vT+3}, s[{sWS}:{sWS+3}], s{sT} offen offset:1024 sc1
s_mov_b32 exec_lo, 0xffff
v_dot2_f32_bf16 v{vT+2}, v{T1}, v{T1}, v{vT+2}
v_dot2_f32_bf16 v{vT+2}, v{T1+1}, v{T1+1}, v{vT+2}
s_mov_b64 exec, -1
v_dot2_f32_bf16 v{vT+2}, v{T0}, v{T0}, v{vT+2}
v_dot2_f32_bf16 v{vT+2}, v{T0+1}, v{T0+1}, v{vT+2}
v_mov_b32 v{vT+3}, v{vT+2}
v_permlane16_swap_b32 v{vT+2}, v{vT+3}
v_add_f32 v{vT+2}, v{vT+2}, v{vT+3}
v_mov_b32 v{vT+3}, v{vT+2}
v_permlane32_swap_b32 v{vT+2}, v{vT+3}
v_add_f32 v{vT+2}, v{vT+2}, v{vT+3}
v_max_f32_dpp v{vT+2}, v{vT+2}, v{vT+2} row_ror:8 row_mask:0xf bank_mask:0xf
v_max_f32_dpp v{vT+2}, v{vT+2}, v{vT+2} row_ror:4 row_mask:0xf bank_mask:0xf
v_max_f32_dpp v{vT+2}, v{vT+2}, v{vT+2} row_ror:2 row_mask:0xf bank_mask:0xf
v_max_f32_dpp v{vT+2}, v{vT+2}, v{vT+2} row_ror:1 row_mask:0xf bank_mask:0xf
v_mov_b32 v{vT+5}, v{vT+2}
s_branch L_P0pub
""")
        a.label("L_P0V")
        loop(True)
        a(f"""
v_and_b32 v{vT}, 15, v{vL}
v_lshrrev_b32 v{vT+1}, 5, v{vL}
v_bfe_u32 v{vT+2}, v{vL}, 4, 1
v_lshlrev_b32 v{vT+2}, 3, v{vT+2}
v_lshl_add_u32 v{vT+2}, v{vT}, 4, v{vT+2}
v_lshl_add_u32 v{vT+3}, v{vT+1}, 7, v{vT+2}
v_lshl_add_u32 v{vT+1}, v{vT+1}, 8, v{vT+2}
s_mul_i32 s{sT}, s{sT+8}, 48
s_add_u32 s{sT}, s{sT}, {WS_V}
v_cvt_pk_bf16_f32 v{T0}, v{T0}, v{T0+1}
v_cvt_pk_bf16_f32 v{T0+1}, v{T0+2}, v{T0+3}
v_cvt_pk_bf16_f32 v{T1}, v{T1}, v{T1+1}
v_cvt_pk_bf16_f32 v{T1+1}, v{T1+2}, v{T1+3}
buffer_store_dwordx2 v[{T0}:{T0+1}], v{vT+1}, s[{sWS}:{sWS+3}], s{sT} offen sc1
s_mov_b32 exec_lo, 0x00f000f0
s_mov_b32 exec_hi, 0x00f000f0
v_mov_b32 v{T1}, 0x3f803f80
v_mov_b32 v{T1+1}, 0x3f803f80
s_mov_b32 exec_lo, 0x00ff00ff
s_mov_b32 exec_hi, 0x00ff00ff
buffer_store_dwordx2 v[{T1}:{T1+1}], v{vT+3}, s[{sWS}:{sWS+3}], s{sT} offen offset:512 sc1
s_mov_b64 exec, -1
v_mov_b32 v{vT+5}, 0
""")
        a.label("L_P0pub")
        a(f"""
s_waitcnt vmcnt(2)
v_readfirstlane_b32 s{sTAG}, v{vEP}
s_mul_i32 s{sTAG}, s{sTAG}, 0x41C64E6D
s_add_u32 s{sTAG}, s{sTAG}, 0x3039
v_mov_b32 v{vT+4}, s{sTAG}
s_getreg_b32 s{sT+11}, hwreg(HW_REG_XCC_ID, 0, 4)
v_add_u32 v{vT+5}, 15, v{vT+5}
v_and_b32 v{vT+5}, -16, v{vT+5}
v_or_b32 v{vT+5}, s{sT+11}, v{vT+5}
s_lshl_b32 s{sT}, s2, 3
s_add_u32 s{sT}, s{sT}, {WS_GRAN}
v_mov_b32 v{vT}, 0
s_waitcnt vmcnt(0)
s_mov_b64 exec, 1
buffer_store_dwordx2 v[{vT+4}:{vT+5}], v{vT}, s[{sWS}:{sWS+3}], s{sT} offen sc1
ds_write_b32 v{vMISC}, v{vT+4} offset:{TAGO}
s_mov_b64 exec, -1
""")
        self.stamp(2)
        self.w160()
        self.g_setup()
        if GPOLL_AFTER >= 4: self.w_stage0(3)
        self.poll(FREE + 4*GPOLL_AFTER, 4)
        a(f"""
v_lshlrev_b32 v{vT}, 5, v{vL}
s_movk_i32 s{sT}, {WS_GRAN}
s_mov_b32 s{sCNT}, 0x8000
""")
        if self.stamps == 7: self.stamp(5)
        a(f"""
L_gpoll:
buffer_load_dwordx4 v[120:123], v{vT}, s[{sWS}:{sWS+3}], s{sT} offen sc1
buffer_load_dwordx4 v[124:127], v{vT}, s[{sWS}:{sWS+3}], s{sT} offen offset:16 sc1
s_waitcnt vmcnt(0)
v_cmp_eq_u32 vcc, s{sTAG}, v120
v_cmp_eq_u32 s[{sT+2}:{sT+3}], s{sTAG}, v122
v_cmp_eq_u32 s[{sT+4}:{sT+5}], s{sTAG}, v124
v_cmp_eq_u32 s[{sT+6}:{sT+7}], s{sTAG}, v126
s_and_b64 vcc, vcc, s[{sT+2}:{sT+3}]
s_and_b64 s[{sT+4}:{sT+5}], s[{sT+4}:{sT+5}], s[{sT+6}:{sT+7}]
s_and_b64 vcc, vcc, s[{sT+4}:{sT+5}]
s_cmp_eq_u64 vcc, -1
s_cbranch_scc1 L_gdone
s_sleep {GSL}
s_sub_u32 s{sCNT}, s{sCNT}, 1
s_cmp_lg_u32 s{sCNT}, 0
s_cbranch_scc1 L_gpoll
L_gdone:
""")
        if self.stamps == 7: self.stamp(6); a(f"s_mov_b32 s{sST+10}, s{sCNT}")
        self.signal(KVR)
        a(f"""
s_bitcmp1_b32 s2, 0
s_cselect_b64 vcc, -1, 0
v_cndmask_b32 v128, v121, v123, vcc
v_cndmask_b32 v129, v125, v127, vcc
s_bitcmp1_b32 s2, 1
s_cselect_b64 vcc, -1, 0
v_cndmask_b32 v128, v128, v129, vcc
v_and_b32 v128, 15, v128
v_cmp_ne_u32 vcc, s{sT+11}, v128
s_bfe_u32 s{sT+2}, s2, 0x10002
s_lshl_b32 s{sT+2}, 0x55555555, s{sT+2}
s_or_b32 s{sT+3}, vcc_lo, vcc_hi
s_and_b32 s{sT+3}, s{sT+3}, s{sT+2}
s_cselect_b32 s{sT+3}, 0, 1
v_mov_b32 v128, s{sT+3}
v_max3_f32 v121, v121, v123, v125
v_max_f32 v121, v121, v127
v_max_f32_dpp v121, v121, v121 row_ror:8 row_mask:0xf bank_mask:0xf
v_max_f32_dpp v121, v121, v121 row_ror:4 row_mask:0xf bank_mask:0xf
v_max_f32_dpp v121, v121, v121 row_ror:2 row_mask:0xf bank_mask:0xf
v_max_f32_dpp v121, v121, v121 row_ror:1 row_mask:0xf bank_mask:0xf
v_mov_b32 v122, v121
v_permlane16_swap_b32 v121, v122
v_max_f32 v121, v121, v122
v_mov_b32 v122, v121
v_permlane32_swap_b32 v121, v122
v_max_f32 v121, v121, v122
s_mov_b64 exec, 1
ds_write_b32 v{vMISC}, v121 offset:{KMAX}
ds_write_b32 v{vMISC}, v128 offset:{SAMEX}
s_cmp_lg_u32 s2, 0
s_cbranch_scc1 L_noepoch
v_mov_b32 v{vT}, 0
v_mov_b32 v{vT+4}, s{sTAG}
buffer_store_dword v{vT+4}, v{vT}, s[{sWS}:{sWS+3}], 0 offen sc1
L_noepoch:
s_mov_b64 exec, -1
""")
        if GPOLL_AFTER < 4: self.w_stage0(3)
        a("s_branch L_g_join2")
        a.label("L_g_join")
        self.w_stage0(4)
        a.label("L_g_join2")
        a("s_waitcnt vmcnt(0) lgkmcnt(0)")
        self.stamp(4)
        a("s_setprio 0\ns_barrier")
        self.stamp(3)


    def w_stage0(self, npc):
        a = self.a
        if self.stop in ("pre", "nobg"): return
        self.srd(sWQKV, 18, 2457600)
        a(f"s_lshl_b32 s10, s{sU}, 10\ns_add_u32 s10, s10, {R}")
        if npc == 4 and "mw1" in EXP:
            a(f"""
s_mul_i32 s{sT+2}, s2, 3
s_add_u32 s{sT+2}, s{sT+2}, s{sU}
s_mul_i32 s{sT+2}, s{sT+2}, 3200
v_lshlrev_b32 v{vT}, 7, v{vL}
s_mov_b32 exec_lo, 0x1ffffff
s_mov_b32 exec_hi, 0
buffer_load_dword v0, v{vT}, s[{sWQKV}:{sWQKV+3}], s{sT+2} offen
s_mov_b64 exec, -1
""")
        self.poll(FREE + 4*4, 4)
        if npc == 4: self.poll(P0D, 1)
        for i in range(npc): self.dma(gWO+i, sWQKV, "s8", f"s_add_u32 m0, s10, {4096*i}")

    def g_setup(self):
        a = self.a
        a(f"s_mul_i32 s{sT}, s{sHG}, 160\ns_lshl_b32 s{sT+1}, s{sU}, 6")
        for i in range(4):
            a(f"""
v_add_u32 v{vT}, s{sT+1}, v{vL}
v_add_u32 v{vT}, {256*i}, v{vT}
v_mul_u32_u24 v{vT+1}, 2185, v{vT}
v_lshrrev_b32 v{vT+1}, 16, v{vT+1}
v_mul_u32_u24 v{vT+2}, 30, v{vT+1}
v_sub_u32 v{vT}, v{vT}, v{vT+2}
""")
            self.swap23(vT+2, vT+1, vT+3)
            a(f"""
v_mul_u32_u24 v{vT+2}, 3840, v{vT+2}
v_mul_u32_u24 v{vT+3}, 26, v{vT}
v_lshrrev_b32 v{vT+3}, 8, v{vT+3}
v_mul_u32_u24 v{vT+3}, 1120, v{vT+3}
v_lshl_add_u32 v{vT}, v{vT}, 4, v{vT+2}
v_add3_u32 v{gWO+i}, v{vT}, v{vT+3}, s{sT}
""")
        self.xfrag_lane(gHF)
        a(f"""
s_and_b32 s{sT}, s{sU}, 1
s_lshl_b32 s{sT}, s{sT}, 12
s_lshl_b32 s64, s{sKA}, 13
s_sub_u32 s65, 40960, s64
s_add_u32 s{sT+1}, s{sT}, s64
v_add_u32 v{gXF}, s{sT+1}, v{gHF}
s_add_u32 s{sT+1}, s{sT}, s65
v_add_u32 v{gXF+2}, s{sT+1}, v{gHF}
v_xor_b32 v{gXF+1}, 64, v{gXF}
v_xor_b32 v{gXF+3}, 64, v{gXF+2}
s_mul_i32 s8, s{sKA}, 245760
s_sub_u32 s9, 1228800, s8
s_lshr_b32 s{sT}, s2, 3
s_lshl2_add_u32 s{sT}, s{sT}, s{sU}
s_mul_i32 s{sT}, s{sT}, 6400
v_lshlrev_b32 v{gTC}, 7, v{vL}
v_add_u32 v{gTC}, s{sT}, v{gTC}
""")
        self.tr_base(gWm, 480)
        a(f"v_add_u32 v{gWm}, {R}, v{gWm}")
        BIG = f32bits(-1.0e30)
        a(f"""
v_and_b32 v{vT}, 15, v{vL}
v_lshrrev_b32 v{vT+1}, 4, v{vL}
s_lshr_b32 s{sT}, s{sU}, 1
s_mul_i32 s{sT}, s{sT}, 80
s_and_b32 s{sT+2}, s{sU}, 1
s_mul_i32 s{sT+1}, s{sT+2}, 5120
s_add_u32 s{sT}, s{sT}, s{sT+1}
v_mul_u32_u24 v{vT+2}, 320, v{vT}
v_lshl_add_u32 v{vT+2}, v{vT+1}, 4, v{vT+2}
s_add_u32 s{sT+1}, s{sT}, {QA}
v_add_u32 v{lQa}, s{sT+1}, v{vT+2}
s_add_u32 s{sT+1}, s{sT}, {KA}
v_add_u32 v{lKa}, s{sT+1}, v{vT+2}
v_min_u32 v{vT+3}, 7, v{vT}
v_mul_u32_u24 v{vT+3}, 320, v{vT+3}
v_lshl_add_u32 v{vT+3}, v{vT+1}, 4, v{vT+3}
v_add_u32 v{lKa+1}, s{sT+1}, v{vT+3}
v_lshrrev_b32 v{vT+2}, 2, v{vL}
v_and_b32 v{vT+3}, 3, v{vL}
v_mul_u32_u24 v{vT+4}, 320, v{vT+2}
v_lshl_add_u32 v{vT+4}, v{vT+3}, 3, v{vT+4}
s_add_u32 s{sT+1}, s{sT}, {VA}
v_add_u32 v{lVt}, s{sT+1}, v{vT+4}
v_min_u32 v{vT+2}, 7, v{vT+2}
v_mul_u32_u24 v{vT+4}, 320, v{vT+2}
v_lshl_add_u32 v{vT+4}, v{vT+3}, 3, v{vT+4}
v_add_u32 v{lVt+1}, s{sT+1}, v{vT+4}
v_cmp_eq_u32 vcc, 0, v{vT+3}
v_mov_b32 v{vT+2}, {MISC+ONES}
""")
        for ui, (hh, par) in enumerate(self.units):
            o = par*160 + 32 + 8*hh
            a(f"""
v_add_u32 v{vT+4}, {o}, v{lVt}
v_add_u32 v{vT+5}, {o+5120}, v{lVt+1}
v_cndmask_b32 v{lVo+2*ui}, v{vT+2}, v{vT+4}, vcc
v_cndmask_b32 v{lVo+2*ui+1}, v{vT+2}, v{vT+5}, vcc
""")
        a(f"""
v_mul_u32_u24 v{lPA}, 160, v{vT}
v_lshl_add_u32 v{lPA}, v{vT+1}, 3, v{lPA}
v_add_u32 v{lPA}, {R}, v{lPA}
s_lshl_b32 s{sT+1}, s{sT+2}, 7
v_lshl_add_u32 v{lPA+2}, v{vT}, 3, v{vMISC}
v_add_u32 v{lPA+2}, s{sT+1}, v{lPA+2}
v_lshrrev_b32 v{vT+2}, 3, v{vT}
v_mul_u32_u24 v{vT+2}, 40960, v{vT+2}
v_and_b32 v{vT+3}, 7, v{vT}
v_lshl_add_u32 v{vT+2}, v{vT+3}, 5, v{vT+2}
v_and_b32 v{vT+3}, 1, v{vT+1}
v_lshl_add_u32 v{vT+2}, v{vT+3}, 4, v{vT+2}
v_lshrrev_b32 v{vT+3}, 1, v{vT+1}
v_lshl_add_u32 v{lPA+1}, v{vT+3}, 8, v{vT+2}
v_lshlrev_b32 v{lPH}, 5, v{vT}
v_lshl_add_u32 v{lPH}, v{vT+1}, 3, v{lPH}
v_bfe_u32 v{vT+2}, v{vL}, 1, 4
v_mul_u32_u24 v{vT+2}, 160, v{vT+2}
v_lshrrev_b32 v{vT+3}, 5, v{vL}
v_lshl_add_u32 v{vT+2}, v{vT+3}, 5, v{vT+2}
v_and_b32 v{vT+3}, 1, v{vL}
v_lshl_add_u32 v{lPH+1}, v{vT+3}, 4, v{vT+2}
s_or_b32 s{sT+2}, s{sT+2}, s{sRB}
s_cselect_b32 s{sT+2}, 0, 8
v_lshlrev_b32 v{vT+1}, 2, v{vT+1}
v_sub_u32 v{vT+2}, v{vT+1}, v{vT}
v_mov_b32 v{vT+3}, {BIG}
""")
        for tl in range(2):
            for r in range(4):
                a(f"""
v_add_u32 v{vT+4}, {16*tl + r - 1}, v{vT+2}
v_cmp_gt_u32 vcc, 8, v{vT+4}
v_cndmask_b32 v{lMK+4*tl+r}, v{vT+3}, 0, vcc
""")
                if tl == 0:
                    a(f"""
v_add_u32 v{vT+4}, {r}, v{vT+1}
v_cmp_le_u32 vcc, s{sT+2}, v{vT+4}
v_cndmask_b32 v{lMK+r}, v{vT+3}, v{lMK+r}, vcc
""")
    units = [(hh, par) for hh in range(2) for par in range(2)]

    def loadK(self, b, KVSC=' sc1'):
        k = K_[b]
        return [f"buffer_load_dwordx4 v[{k}:{k+3}], v{vLin}, s[{sWS}:{sWS+3}], s{sK} offen{KVSC}",
                f"buffer_load_dwordx2 v[{k+4}:{k+5}], v{vKb}, s[{sWS}:{sWS+3}], s{sK} offen offset:1024{KVSC}\ns_add_u32 s{sK}, s{sK}, 1408"]
    def loadV(self, b, KVSC=' sc1'):
        v = V_[b]
        return [f"buffer_load_dwordx4 v[{v}:{v+3}], v{vVa}, s[{sWS}:{sWS+3}], s{sV} offen{KVSC}",
                f"buffer_load_dwordx4 v[{v+4}:{v+7}], v{vVa}, s[{sWS}:{sWS+3}], s{sV} offen offset:768{KVSC}\ns_add_u32 s{sV}, s{sV}, 1536"]
    def qk(self, Sn, K, Q):
        return [f"v_mfma_f32_32x32x16_bf16 v[{Sn}:{Sn+15}], v[{K}:{K+3}], v[{Q}:{Q+3}], 0",
                f"v_mfma_f32_32x32x8_bf16 v[{Sn}:{Sn+15}], v[{K+4}:{K+5}], v[{Q+4}:{Q+5}], v[{Sn}:{Sn+15}]"]
    def pv(self, O, V, P):
        return [f"v_smfmac_f32_32x32x32_bf16 v[{O}:{O+15}], v[{V}:{V+3}], v[{P}:{P+7}], v{vIDX}",
                f"v_smfmac_f32_32x32x32_bf16 v[{O}:{O+15}], v[{V+4}:{V+7}], v[{P+8}:{P+15}], v{vIDX}"]
    def flag_poll(self, ws_base, tmp):
        a = self.a; L = a.uid("Lf"); D = a.uid("Lfd")
        a(f"""
v_lshlrev_b32 v{vT}, 7, v{vL}
s_lshl_b32 s{sT}, s{sRB}, 10
s_add_u32 s{sT}, s{sT}, {ws_base}
s_mov_b32 s{sCNT}, 0x8000
s_mov_b64 exec, 0xff
{L}:
buffer_load_dwordx4 v[{tmp}:{tmp+3}], v{vT}, s[{sWS}:{sWS+3}], s{sT} offen sc1
s_waitcnt vmcnt(0)
v_cmp_eq_u32 vcc, s{sTAG}, v{tmp}
v_cmp_eq_u32 s[{sT+2}:{sT+3}], s{sTAG}, v{tmp+1}
v_cmp_eq_u32 s[{sT+4}:{sT+5}], s{sTAG}, v{tmp+2}
v_cmp_eq_u32 s[{sT+6}:{sT+7}], s{sTAG}, v{tmp+3}
s_and_b32 s{sT+2}, s{sT+2}, vcc_lo
s_and_b32 s{sT+4}, s{sT+4}, s{sT+6}
s_and_b32 s{sT+2}, s{sT+2}, s{sT+4}
s_cmp_eq_u32 s{sT+2}, 0xff
s_cbranch_scc1 {D}
s_sleep 2
s_sub_u32 s{sCNT}, s{sCNT}, 1
s_cmp_lg_u32 s{sCNT}, 0
s_cbranch_scc1 {L}
{D}:
s_mov_b64 exec, -1
""")
    def flag_store(self, ws_base, widx_sgpr):
        self.a(f"""
s_lshl_b32 s{sT}, s{sRB}, 3
s_add_u32 s{sT}, s{sT}, s{sHG}
s_lshl_b32 s{sT}, s{sT}, 7
s_lshl2_add_u32 s{sT}, s{widx_sgpr}, s{sT}
s_add_u32 s{sT}, s{sT}, {ws_base}
v_mov_b32 v{vT}, 0
v_mov_b32 v{vT+1}, s{sTAG}
s_mov_b64 exec, 1
s_waitcnt vmcnt(0)
""")
        n0 = len(self.a.ins)
        self.a(f"buffer_store_dword v{vT+1}, v{vT}, s[{sWS}:{sWS+3}], s{sT} offen sc1")
        self.dup_stores(n0)
        self.a("s_mov_b64 exec, -1")

    def m_main(self):
        a = self.a
        for b in range(4):
            q = Q_[b]; ad = 10 + (b >> 1); o = (b & 1) * 40
            a(f"ds_read_b64 v[{q}:{q+1}], v{ad} offset:{o}\nds_read_b64 v[{q+2}:{q+3}], v{ad} offset:{o+8}")
        a("s_mov_b32 exec_hi, 0")
        for b in range(4):
            q = Q_[b]; ad = 10 + (b >> 1); o = (b & 1) * 40
            a(f"ds_read_b64 v[{q+4}:{q+5}], v{ad} offset:{o+32}")
        a(f"""
s_mov_b32 exec_hi, -1
ds_read_b32 v13, v{vMISC} offset:{KMAX}
s_cmp_lg_u32 s11, 0
s_cbranch_scc1 L_m_nokv2
""")
        self.kv_first()
        a.label("L_m_nokv2")
        for i in range(68, 84, 2): a(f"v_mov_b64 v[{i}:{i+1}], 0")
        N = S_[1]
        for b in range(4): a(f"v_mov_b32 v{N+b}, 0")
        a("s_waitcnt lgkmcnt(0)")
        a(f"ds_read_b32 v15, v{vMISC} offset:{SAMEX}")
        a(f"ds_read_b32 v14, v{vMISC} offset:{TAGO}\nds_read_b32 v{vG}, v12 offset:{GBUF}")
        for i in range(6):
            for b in range(4): a(f"v_dot2_f32_bf16 v{N+b}, v{Q_[b]+i}, v{Q_[b]+i}, v{N+b}")
        for b in range(4): a(f"v_mov_b32 v{N+4+b}, v{N+b}")
        for b in range(4): a(f"v_permlane32_swap_b32 v{N+b}, v{N+4+b}")
        for b in range(4): a(f"v_add_f32 v{N+b}, v{N+b}, v{N+4+b}")
        for b in range(4): a(f"v_mul_f32 v{N+b}, v{N+b}, v13")
        for b in range(4): a(f"v_sqrt_f32 v{N+b}, v{N+b}")
        a("s_mov_b32 exec_lo, 0")
        for b in range(4): a(f"v_mul_f32 v{N+b}, {f32bits(-(1.0 + 2.0**-6))}, v{N+b}")
        for b in range(4): a(f"v_lshrrev_b32 v{Q_[b]+4}, 16, v{N+b}")
        a("s_mov_b32 exec_lo, -1")
        eW = vE; eR = vE+1; ePs = vE+2; ePp = vE+3; eS4 = vE+4; eS2 = vE+5; eWb = vE+6; eO4 = vE+8; eO2 = vE+9; eAC = vE+10
        a(f"""
s_mul_i32 s{sT+1}, s{sW}, 6144
s_xor_b32 s{sT+2}, s{sW}, 1
s_mul_i32 s{sT+3}, s{sT+2}, 6144
s_add_u32 s{sT+1}, s{sT+1}, {RED}
s_add_u32 s{sT+3}, s{sT+3}, {RED}
v_add_u32 v{eW}, s{sT+1}, v{vLin}
v_add_u32 v{eR}, s{sT+3}, v{vLin}
s_lshl_b32 s{sT+1}, s{sW}, 2
s_lshl_b32 s{sT+2}, s{sT+2}, 2
v_add_u32 v{ePs}, s{sT+1}, v{vSIG}
v_add_u32 v{ePp}, s{sT+2}, v{vMISC}
v_add_u32 v{eAC+1}, s{sT+1}, v{vMISC}
v_and_b32 v{vT}, 15, v{vL}
v_bfe_u32 v{vT+1}, v{vL}, 4, 1
v_mul_u32_u24 v{vT+1}, 40960, v{vT+1}
v_lshl_add_u32 v{vT}, v{vT}, 4, v{vT+1}
v_lshrrev_b32 v{vT+1}, 5, v{vL}
v_lshl_add_u32 v{eS4}, v{vT+1}, 8, v{vT}
v_xor_b32 v{eS2}, 256, v{eS4}
s_mul_i32 s64, s{sRB}, 163840
s_mul_i32 s{sT+2}, s{sHG}, 2560
s_add_u32 s64, s64, s{sT+2}
s_lshr_b32 s{sT+2}, s{sW}, 1
s_mul_i32 s{sT+2}, s{sT+2}, 1280
s_add_u32 s64, s64, s{sT+2}
s_mul_i32 s{sT+2}, s10, 81920
s_add_u32 s64, s64, s{sT+2}
s_add_u32 s64, s64, {WS_OAB + 80*256}
s_waitcnt vmcnt(12) lgkmcnt(0)
""")
        for l in self.qk(S_[0], K_[0], Q_[0]): a(l)
        a(f"v_readfirstlane_b32 s{sTAG}, v14\nv_readfirstlane_b32 s{sSX}, v15")
        a(f"v_sub_f32 v{vG}, 1.0, v{vG}")
        ACQ = "noacq" not in EXP
        if "st3" in EXP:
            for l in self.stouch(20, 25, [0, 7, 14, 18], 7, sW, tmp=sT+2): a(l)
            for l in self.stouch(30, 25, [0, 7, 14, 18], 7, sW, tmp=sT+2): a(l)
        a(f"s_mov_b32 s{sCNT}, {7 if ACQ else 8}")
        self.stamp(4)
        self.cstamp(9)
        STL = "stl" in EXP
        if STL:
            def pair(d, lo, hi, off): a(f"s_add_u32 s{d}, s{lo}, s{off}\ns_addc_u32 s{d+1}, s{hi}, 0")
            a(f"""
s_lshl2_add_u32 s{sT}, s{sRB}, s{sW}
s_mul_i32 s{sT}, s{sT}, 40960
s_mul_i32 s{sT+1}, s{sHG}, 2560
s_add_u32 s{sT}, s{sT}, s{sT+1}
s_add_u32 s{sT}, s{sT}, {WS_OAB}
""")
            pair(40, sWS, sWS+1, sT)
            a("s_add_u32 s42, s40, 512\ns_addc_u32 s43, s41, 0\ns_add_u32 s50, s40, 20480\ns_addc_u32 s51, s41, 0\ns_add_u32 s52, s40, 20992\ns_addc_u32 s53, s41, 0\ns_mov_b64 s[54:55], s[52:53]")
            a(f"s_lshr_b32 s{sT}, s2, 3\ns_lshl2_add_u32 s{sT}, s{sT}, s{sW}\ns_mul_i32 s{sT}, s{sT}, 6400")
            pair(44, 30, 31, sT)
            a("s_add_u32 s46, s44, 2176\ns_addc_u32 s47, s45, 0\ns_add_u32 s48, s44, 4352\ns_addc_u32 s49, s45, 0")
            a(f"""
s_lshl3_add_u32 s{sT}, s{sRB}, s{sHG}
s_mul_i32 s{sT+1}, s{sT}, 5120
s_mul_i32 s{sT+4}, s{sW}, 1280
s_add_u32 s{sT+1}, s{sT+1}, s{sT+4}
s_add_u32 s{sT+1}, s{sT+1}, {WS_HALO}
""")
            pair(sT+2, sWS, sWS+1, sT+1)
            for i in range(10): a(f"s_load_dword{SLW} s[56:{SLE}], s[{sT+2}:{sT+3}], {128*i + SLO}" if SLW else f"s_load_dword s56, s[{sT+2}:{sT+3}], {128*i}")
            a(f"s_lshl_b32 s{sT+1}, s{sT}, 7\ns_lshl_b32 s{sT+4}, s{sW}, 17\ns_min_u32 s{sT+4}, s{sT+4}, {2 << 17}\ns_add_u32 s{sT+1}, s{sT+1}, s{sT+4}\ns_add_u32 s{sT+1}, s{sT+1}, {WS_FA}")
            pair(sT+2, sWS, sWS+1, sT+1)
            a(f"s_load_dword s56, s[{sT+2}:{sT+3}], 0")
        a("s_nop 5")
        def body(sc, first):
            for kb in range(4):
                for j in range(4):
                    e = [f"v_exp_f32 v{S_[j]+i}, v{S_[j]+i}" for i in range(16)]
                    m = self.qk(S_[(j+1) % 4], K_[kb if j < 3 else (kb+1) % 4], Q_[(j+1) % 4]) + self.pv(O_[(j+3) % 4], V_[kb if j > 0 else (kb+3) % 4], S_[(j+3) % 4])
                    pre = [None]*4; post = [None]*4
                    if j == 1:
                        pre[2] = "s_waitcnt vmcnt(10)"
                        lv = self.loadV((kb+3) % 4, sc); post[2] = lv[0]; post[3] = lv[1]
                    if j == 3:
                        pre[0] = "s_waitcnt vmcnt(10)"
                        lk = self.loadK(kb, sc); post[2] = lk[0]; post[3] = lk[1]
                        if kb == 3 and not first:
                            post[0] = f"s_sub_u32 s{sCNT}, s{sCNT}, 1"
                            post[3] += f"\ns_cmp_lg_u32 s{sCNT}, 0"
                    if STL:
                        n = 4*kb + j
                        t = f"s_load_dword s56, s[40:41], {128*n + (128 if n == 15 and False else 0)}"
                        slot = 2 if j in (0, 2) else 0
                        post[slot] = (post[slot] + "\n" if post[slot] else "") + t
                        if n == 15: post[1] = "\n".join(f"s_mov_b64 s[{40+2*i}:{41+2*i}], s[{42+2*i}:{43+2*i}]" for i in range(7))
                    if first and kb == 3 and j == 2: post[2] = f"ds_read_b32 v14, v{vMISC} offset:{INVD}"
                    for x in range(4):
                        if pre[x]: a(pre[x])
                        a(m[x])
                        if post[x]: a(post[x])
                        for l in e[4*x:4*x+4]: a(l)
        if ACQ:
            body(" sc1", True)
            a("s_waitcnt lgkmcnt(0)")
            self.check_fast(14, INVD, 1)
            a(f"s_mov_b32 s{sCNT}, 7")
        a(".p2align 6")
        a.label("L_mqa")
        body("" if ACQ else " sc1", False)
        if self.stamps == 3:
            a(f"s_memrealtime s[100:101]\ns_waitcnt lgkmcnt(0)\ns_mov_b32 m0, s{sCNT}\nv_writelane_b32 v254, s100, m0\ns_memtime s[100:101]\ns_waitcnt lgkmcnt(0)\nv_writelane_b32 v253, s100, m0\ns_cmp_lg_u32 s{sCNT}, 0")
        a("s_cbranch_scc1 L_mqa")
        a(f"s_setprio 3\nds_read_b32 v14, v{vMISC} offset:{GDONE}")
        for l in self.pv(O_[3], V_[3], S_[3]): a(l)
        if self.stamps == 3:
            a(f"s_lshl2_add_u32 s{sT}, s2, s{sW}\ns_lshl_b32 s{sT}, s{sT}, 9\ns_add_u32 s{sT}, s{sT}, {WS_DUMP}\nv_lshlrev_b32 v{vT}, 2, v{vL}\nbuffer_store_dword v254, v{vT}, s[{sWS}:{sWS+3}], s{sT} offen\nbuffer_store_dword v253, v{vT}, s[{sWS}:{sWS+3}], s{sT} offen offset:256")
        self.stamp(5)
        self.cstamp(10)
        a("s_waitcnt lgkmcnt(0)")
        self.check_fast(14, GDONE, 4)
        for b in range(2):
            for i in range(3):
                o = O_[2+b] + 4*i
                a(f"ds_write_b128 v{eW}, v[{o}:{o+3}] offset:{(3*b+i)*1024}")
        a(f"ds_add_u32 v{ePs}, v{vONE} offset:{PAIR}")
        self.poll(PAIR, 1, vaddr=ePp)
        if self.stamps == 5: self.stamp(3)
        for b in range(2):
            for i in range(3):
                o = S_[b] + 4*i
                a(f"ds_read_b128 v[{o}:{o+3}], v{eR} offset:{(3*b+i)*1024}")
        for b in range(2):
            a(f"s_waitcnt lgkmcnt({3*(1-b)})")
            for i in range(0, 12, 2): a(f"v_pk_add_f32 v[{O_[b]+i}:{O_[b]+i+1}], v[{O_[b]+i}:{O_[b]+i+1}], v[{S_[b]+i}:{S_[b]+i+1}]")
        for b in range(2):
            a(f"v_mov_b32 v{S_[2]+2*b}, v{O_[b]+8}\nv_mov_b32 v{S_[2]+2*b+1}, v{O_[b]+8}")
        for b in range(2):
            a(f"v_permlane32_swap_b32 v{S_[2]+2*b}, v{S_[2]+2*b+1}")
        a(f"""
v_min_f32 v{vT}, v{S_[2]+1}, v{S_[2]+3}
v_add_f32 v{vT+1}, v{S_[2]+1}, v{S_[2]+3}
s_mov_b32 s{sT}, {THR}
v_cmp_nle_f32 vcc, s{sT}, v{vT}
s_mov_b32 s{sT+1}, {f32bits(1.0e30)}
v_cmp_ngt_f32 s[{sT+2}:{sT+3}], s{sT+1}, v{vT+1}
s_or_b64 vcc, vcc, s[{sT+2}:{sT+3}]
s_cbranch_vccnz L_fallback
L_m_norm:
v_rcp_f32 v{S_[2]+1}, v{S_[2]+1}
v_rcp_f32 v{S_[2]+3}, v{S_[2]+3}
v_mul_f32 v{S_[2]+1}, v{S_[2]+1}, v{vG}
v_mul_f32 v{S_[2]+3}, v{S_[2]+3}, v{vG}
""")
        for b in range(2):
            for i in range(0, 12, 2): a(f"v_pk_mul_f32 v[{O_[b]+i}:{O_[b]+i+1}], v[{O_[b]+i}:{O_[b]+i+1}], v[{S_[2]+2*b}:{S_[2]+2*b+1}] op_sel:[0,1] op_sel_hi:[1,1]")
        def cvt(d, s): a(f"v_cvt_pk_bf16_f32 v{d}, v{s}, v{s+1}\nv_cvt_pk_bf16_f32 v{d+1}, v{s+2}, v{s+3}")
        d0 = S_[0]; d1 = S_[1]
        cvt(d0, O_[0]); cvt(d0+2, O_[0]+4); cvt(d1+2, O_[1]+8); cvt(d1+4, O_[1]+4); cvt(d1, O_[1]); cvt(d0+4, O_[0]+8); cvt(d0+6, O_[1])
        a(f"v_permlane32_swap_b32 v{d0}, v{d0+2}\nv_permlane32_swap_b32 v{d0+1}, v{d0+3}")
        a(f"v_permlane32_swap_b32 v{d1+2}, v{d1+4}\nv_permlane32_swap_b32 v{d1+3}, v{d1+5}")
        a(f"buffer_store_dwordx4 v[{d0}:{d0+3}], v{eS4}, s[{sWS}:{sWS+3}], s64 offen sc1")
        a(f"v_permlane32_swap_b32 v{d1+4}, v{d1}\nv_permlane32_swap_b32 v{d1+5}, v{d1+1}")
        a(f"s_mov_b32 exec_hi, 0\nbuffer_store_dwordx4 v[{d0+4}:{d0+7}], v{eS4}, s[{sWS}:{sWS+3}], s64 offen offset:512 sc1\ns_mov_b32 exec_hi, -1")
        a(f"buffer_store_dwordx4 v[{d1}:{d1+3}], v{eS2}, s[{sWS}:{sWS+3}], s64 offen offset:768 sc1")
        a.label("L_m_pub")
        if self.stamps == 5: self.stamp(4)
        OF = 52; ACC = 132; WF = 152; NWF = 4
        a(f"ds_read_b32 v14, v{vMISC} offset:{BW0}")
        a(f"""
s_lshl2_add_u32 s{sT+8}, s{sRB}, s{sW}
s_lshl_b32 s{sT+10}, s{sT+8}, 4
s_mul_i32 s56, s{sT+8}, 40960
s_add_u32 s56, s56, {WS_OAB + 20480}
s_add_u32 s57, s56, 4096
s_add_u32 s58, s56, 8192
s_add_u32 s59, s56, 12288
s_add_u32 s60, s56, 16384
""")
        self.tr_base(eWb, 160)
        a(f"v_add_u32 v{eWb+1}, {R}, v{eWb}")
        self.srd(sOUT, 34, 2621440)
        a(f"""
v_and_b32 v{eO4}, 15, v{vL}
v_add_u32 v{eO4}, s{sT+10}, v{eO4}
v_mul_u32_u24 v{eO4}, 1280, v{eO4}
v_lshrrev_b32 v{vT+1}, 4, v{vL}
v_lshl_add_u32 v{eO2}, v{vT+1}, 3, v{eO4}
v_bfe_u32 v{vT+1}, v{vL}, 4, 1
v_lshl_add_u32 v{eO4}, v{vT+1}, 5, v{eO4}
v_lshrrev_b32 v{vT+1}, 5, v{vL}
v_lshl_add_u32 v{eO4}, v{vT+1}, 4, v{eO4}
s_mul_i32 s{sT+9}, s{sW}, 5120
s_add_u32 s{sT+9}, s{sT+9}, {ACCAREA}
v_add_u32 v{eAC}, s{sT+9}, v{vLin}
""")
        self.flag_store(WS_FB, sW)
        self.stamp(6)
        if self.stop not in ("oab", "nobg"):
            def oload(ks): return f"buffer_load_dwordx4 v[{OF+4*ks}:{OF+4*ks+3}], v{vLin}, s[{sWS}:{sWS+3}], s{56 + ks//4} offen offset:{(ks%4)*1024} sc1"
            a("s_waitcnt lgkmcnt(0)")
            self.check_fast(14, BW0, 4)
            def wreads(ks):
                wb, o = (eWb + 1, ks * 5120) if ks < 7 else (eWb, (ks - 7) * 5120); f = WF + 20 * (ks % NWF); out = []
                for t in range(5):
                    out.append(f"ds_read_b64_tr_b16 v[{f+4*t}:{f+4*t+1}], v{wb} offset:{o+32*t}")
                    out.append(f"ds_read_b64_tr_b16 v[{f+4*t+2}:{f+4*t+3}], v{wb} offset:{o+32*t+1280}")
                return out
            for ks in range(NWF):
                for l in wreads(ks): a(l)
            self.flag_poll(WS_FB, 20)
            self.stamp(7)
            nis = MPRE
            for ks in range(nis): a(oload(ks))
            for ks in range(20):
                a(f"s_waitcnt vmcnt({nis-1-ks})")
                if ks == 0: a("s_waitcnt lgkmcnt(0)")
                elif ks >= NWF: a(f"s_waitcnt lgkmcnt({min(10, 10*(19-ks))})")
                if self.stamps == 5 and ks == 0: self.stamp(1)
                if self.stamps == 5 and ks == 19: self.stamp(2)
                f = WF + 20 * (ks % NWF)
                r = wreads(ks + NWF) if ks + NWF < 20 else []
                for t in range(5):
                    C = "0" if ks == 0 else f"v[{ACC+4*t}:{ACC+4*t+3}]"
                    a(f"v_mfma_f32_16x16x32_bf16 v[{ACC+4*t}:{ACC+4*t+3}], v[{f+4*t}:{f+4*t+3}], v[{OF+4*ks}:{OF+4*ks+3}], {C}")
                    for l in r[2*t:2*t+2]: a(l)
                    if nis < 20 and t in MIL: a(oload(nis)); nis += 1
                if ks == 0: a(f"ds_read_b32 v14, v{vMISC} offset:{BWOL}")
                if ks == 1:
                    a("s_waitcnt lgkmcnt(10)"); self.check_fast(14, BWOL, 4)
                if ks == 6: a(f"ds_read_b32 v14, v{vMISC} offset:{LA2}")
                if ks == 8: self.check_fast(14, LA2, 4)
                if ks == 17: a(f"ds_read_b32 v14, v{eAC+1} offset:{ACCA}")
                if ks == 19:
                    self.check_fast(14, ACCA, 1, vaddr=eAC+1)
                    for t in range(5): a(f"ds_read_b128 v[{20+4*t}:{20+4*t+3}], v{eAC} offset:{1024*t}")
            self.stamp(8)
            a(f"s_mul_i32 s{sT+1}, s{sHG}, 160\ns_waitcnt lgkmcnt(0)")
            for i in range(0, 20, 2): a(f"v_pk_add_f32 v[{ACC+i}:{ACC+i+1}], v[{ACC+i}:{ACC+i+1}], v[{20+i}:{20+i+1}]")
            for t in range(5):
                d = 40 + 2*t
                a(f"v_cvt_pk_bf16_f32 v{d}, v{ACC+4*t}, v{ACC+4*t+1}\nv_cvt_pk_bf16_f32 v{d+1}, v{ACC+4*t+2}, v{ACC+4*t+3}")
            for p in range(2):
                d = 40 + 4*p
                a(f"v_permlane16_swap_b32 v{d}, v{d+2}\nv_permlane16_swap_b32 v{d+1}, v{d+3}")
            for p in range(2):
                d = 40 + 4*p
                a(f"buffer_store_dwordx4 v[{d}:{d+3}], v{eO4}, s[{sOUT}:{sOUT+3}], s{sT+1} offen offset:{64*p}")
            a(f"buffer_store_dwordx2 v[48:49], v{eO2}, s[{sOUT}:{sOUT+3}], s{sT+1} offen offset:128")
        a("s_branch L_fin")
        self.m_fallback()

    def m_fallback(self):
        a = self.a
        MX = S_[2] + 4
        a.label("L_fallback")
        a("s_mov_b32 exec_lo, 0")
        for b in range(2): a(f"v_mov_b32 v{Q_[b]+4}, 0\nv_mov_b32 v{Q_[b]+5}, 0")
        a("s_mov_b32 exec_lo, -1")
        a(f"v_mov_b32 v{MX}, 0xff7fffff\nv_mov_b32 v{MX+1}, 0xff7fffff")
        a(f"s_mov_b32 s{sK}, {WS_K}\ns_mov_b32 s{sCNT}, 64\ns_waitcnt vmcnt(0)")
        a.label("L_fb1")
        for l in self.loadK(0): a(l)
        a("s_waitcnt vmcnt(0)")
        for b in range(2):
            for l in self.qk(S_[b], K_[0], Q_[b]): a(l)
        for b in range(2):
            for i in range(8): a(f"v_max3_f32 v{MX+b}, v{S_[b]+2*i}, v{S_[b]+2*i+1}, v{MX+b}")
        a(f"s_sub_u32 s{sCNT}, s{sCNT}, 1\ns_cmp_lg_u32 s{sCNT}, 0\ns_cbranch_scc1 L_fb1")
        for b in range(2):
            m = MX + b; t = MX + 2
            a(f"""
v_mov_b32 v{t}, v{m}
v_permlane32_swap_b32 v{m}, v{t}
v_max_f32 v{m}, v{m}, v{t}
v_sub_f32 v{m}, 0, v{m}
v_and_b32 v{t}, 0xffff0000, v{m}
v_sub_f32 v{m}, v{m}, v{t}
v_and_b32 v{t+1}, 0xffff0000, v{m}
v_sub_f32 v{m}, v{m}, v{t+1}
s_mov_b32 exec_lo, 0
v_lshrrev_b32 v{t}, 16, v{t}
v_or_b32 v{Q_[b]+4}, v{t}, v{t+1}
v_lshrrev_b32 v{Q_[b]+5}, 16, v{m}
s_mov_b32 exec_lo, -1
""")
        for i in range(16): a(f"v_mov_b64 v[{O_[0]+2*i}:{O_[0]+2*i+1}], 0")
        a(f"s_mov_b32 s{sK}, {WS_K}\ns_mov_b32 s{sV}, {WS_V}\ns_mov_b32 s{sCNT}, 64")
        a.label("L_fb2")
        for l in self.loadK(0) + self.loadV(0): a(l)
        a("s_waitcnt vmcnt(0)")
        for b in range(2):
            for l in self.qk(S_[b], K_[0], Q_[b]): a(l)
        for b in range(2):
            for i in range(16): a(f"v_exp_f32 v{S_[b]+i}, v{S_[b]+i}")
        for b in range(2):
            for l in self.pv(O_[b], V_[0], S_[b]): a(l)
        a(f"s_nop 15\ns_sub_u32 s{sCNT}, s{sCNT}, 1\ns_cmp_lg_u32 s{sCNT}, 0\ns_cbranch_scc1 L_fb2")
        for b in range(2):
            a(f"v_mov_b32 v{S_[2]+2*b}, v{O_[b]+8}\nv_mov_b32 v{S_[2]+2*b+1}, v{O_[b]+8}")
        for b in range(2): a(f"v_permlane32_swap_b32 v{S_[2]+2*b}, v{S_[2]+2*b+1}")
        a("s_nop 1\ns_branch L_m_norm")

    def g_main(self):
        a = self.a
        if self.stop == "nobg":
            self.signal(GDONE); return
        a(f"s_cmp_eq_u32 s{sU}, 1\ns_cbranch_scc1 L_bg1\ns_cmp_eq_u32 s{sU}, 2\ns_cbranch_scc1 L_bg2\ns_cmp_eq_u32 s{sU}, 3\ns_cbranch_scc1 L_bg3")
        for u in range(4):
            if u: a.label(f"L_bg{u}")
            self.bg_path(u)
            if u < 3: a("s_branch L_bg_done")
        a.label("L_bg_done")
        self.local_attn()
        self.g_apart()

    def bg_path(self, u):
        a = self.a
        rp = u & 1; cg = u >> 1
        tiles = list(range(0, 8)) if cg == 0 else list(range(7, 15))
        npc = 4 if u < 3 else 3
        bp = [[0], [1], [2], [3, 4]][u]
        work = [(t, xs) for t in tiles for xs in range(2) if t != 7 or xs == cg]
        pub = [w for w in work if rp == 1 and w[1] == 1 and w[0] >= 5]
        work = pub + [w for w in work if w not in pub]
        def reads(s):
            par = s & 1; b = GF[par]; sec = 2 if s >= 10 else 0; kb = (s % 10) >> 1; so = RING[s % 3] - R
            out = [f"ds_read_b128 v[{b}:{b+3}], v{gXF+sec+par} offset:{kb*8192}",
                   f"ds_read_b128 v[{b+4}:{b+7}], v{gXF+sec+par} offset:{kb*8192+2048}"]
            for j, t in enumerate(tiles):
                f = b + 12 + 4*j
                out.append(f"ds_read_b64_tr_b16 v[{f}:{f+1}], v{gWm} offset:{so+32*t}")
                out.append(f"ds_read_b64_tr_b16 v[{f+2}:{f+3}], v{gWm} offset:{so+32*t+3840}")
            return out
        def mfmas(s):
            b = GF[s & 1]; out = []
            for n, (t, xs) in enumerate(work):
                f = b + 12 + 4*tiles.index(t); x = b + 4*xs; c = ACCG + 4*n
                C = "0" if s == 0 else f"v[{c}:{c+3}]"
                out.append(f"v_mfma_f32_16x16x32_bf16 v[{c}:{c+3}], v[{f}:{f+3}], v[{x}:{x+3}], {C}" if ("nomfma" not in EXP or s == 0) else "s_uleep")
            return [o.replace("s_uleep", "s_sleep 1") for o in out]
        def wdma(s):
            out = []
            for i in range(npc):
                pre = f"s_add_u32 s10, s{8 + (s >= 10)}, {(s % 10)*122880}" if i == 0 else "s_nop 0"
                out.append(f"s_mov_b32 m0, {RING[s % 3] + 1024*u + 4096*i}\n{pre}\nbuffer_load_dwordx4 v{gWO+i}, s[{sWQKV}:{sWQKV+3}], s10 offen lds")
            return out
        def adma(idx):
            out = []
            for k, p in enumerate(bp):
                if idx < 4:
                    off = XH + idx*5120
                    t = f"s_mov_b32 m0, {off + 1024*p}\n" + (f"s_mov_b32 s11, {off*8}" if k == 0 else "s_nop 0")
                else:
                    base = 64 + (idx-4) // 8; off = ((idx-4) % 8) * 5120
                    t = f"s_add_u32 m0, s{base}, {off + 1024*p}\n" + (f"s_lshl3_add_u32 s11, s{base}, {off*8}" if k == 0 else "s_nop 0")
                out.append(t + f"\nbuffer_load_dwordx4 v{vW5+p}, s[{sAWO}:{sAWO+3}], s11 offen lds")
            return out
        def touch(srd, part, nparts):
            lo = 50*part // nparts; hi = 50*(part+1) // nparts
            mask = ((1 << hi) - 1) ^ ((1 << lo) - 1)
            return f"s_mov_b32 exec_lo, {mask & 0xffffffff}\ns_mov_b32 exec_hi, {mask >> 32}\nbuffer_load_dword v0, v{gTC}, s[{srd}:{srd+3}], 0 offen\ns_mov_b64 exec, -1"
        vm = []
        def emit_vm(text, tag):
            if "nodma" in EXP and tag[1] > 2: text = "s_nop 0"
            if "noadma" in EXP and tag[0] == "A": text = "s_nop 0"
            a(text); vm.append(tag)
        def arrive(s):
            last = max(k for k, t in enumerate(vm) if t == ("W", s))
            if self.stamps == 8: a(f"s_memrealtime s[100:101]\ns_waitcnt lgkmcnt(0)\ns_mov_b32 s99, s100")
            a(f"s_waitcnt vmcnt({len(vm) - 1 - last}) lgkmcnt(0)")
            if self.stamps == 8: a(f"s_memrealtime s[100:101]\ns_waitcnt lgkmcnt(0)\ns_sub_u32 s100, s100, s99\ns_setprio 2\nv_writelane_b32 v253, s100, {s}\ns_setprio {GP}")
            self.signal(CNTG)
        for l in reads(0): a(l)
        a(f"ds_read_b32 v9, v{vMISC} offset:{TAGO}\nds_read_b32 v7, v{vMISC} offset:{SAMEX}")
        self.srd(sAWO, 20, 819200)
        self.srd(sBWO, 30, 819200)
        self.stamp(5)
        a("s_waitcnt lgkmcnt(0)")
        m = mfmas(0); k = 0
        for st in (1, 2):
            for x in wdma(st):
                a(m[k]); k += 1
                emit_vm(x, ("W", st))
        if u == 3 and "noacq" not in EXP: emit_vm("buffer_inv sc1", ("I", 0))
        a(f"s_setprio 2\nv_readfirstlane_b32 s{sTAG}, v9\nv_readfirstlane_b32 s{sSX}, v7\ns_setprio {GP}")
        while k < PRE0: a(m[k]); k += 1
        arrive(1)
        pend = m[k:]
        for s in range(1, 20):
            m = pend if s == 1 else mfmas(s-1)
            k = 0
            a(m[k]); k += 1
            a(f"ds_read_b32 v{gFL}, v{vMISC} offset:{CNTG}")
            a(m[k]); k += 1
            if "nobar" not in EXP:
                a("s_waitcnt lgkmcnt(0)")
                self.check_fast(gFL, CNTG, 4*s, prio=GP)
            if self.stamps == 8: a(f"s_memrealtime s[100:101]\ns_waitcnt lgkmcnt(0)\ns_setprio 2\nv_writelane_b32 v254, s100, {s}\ns_setprio {GP}")
            r = reads(s)
            il = [(x, ("W", s+2)) for x in wdma(s+2)] if s + 2 < 20 else []
            items = []; n = 0
            while r or il:
                if il and (n in DSL[u] or not r): items.append(("V", il[0])); il = il[1:]
                else: items.append(("R", r[:RPI])); r = r[RPI:]
                n += 1
            items.append(("A", None))
            if s >= 2:
                idx = s - 2
                if idx >= 4:
                    v = (idx-4) % 8; need = 5*((idx-4)//8) + -(-5*(v+1) // 8)
                    assert s // 2 >= need, (s, idx, need)
                items += [("V", (x, ("A", s))) for x in adma(idx)]
            if s == 3 and "tlb" in EXP:
                srd, so = [(sOUT, f"s_mul_i32 s11, s{sRB}, 81920"), (sWS, f"s_mul_i32 s11, s{sRB}, 163840\ns_add_u32 s11, s11, {WS_OAB}"),
                           (sWS, f"s_mov_b32 s11, {WS_HALO}"), (sBWO, "s_mov_b32 s11, 0")][u]
                pre = f"s_mov_b32 s{sOUT}, s34\ns_mov_b32 s{sOUT+1}, s35\ns_mov_b32 s{sOUT+2}, 2621440\ns_mov_b32 s{sOUT+3}, 0x20000\n" if u == 0 else ""
                items.append(("V", (f"{pre}{so}\ns_mov_b64 exec, 1\nbuffer_load_dword v0, v{vLin}, s[{srd}:{srd+3}], s11 offen sc1\ns_mov_b64 exec, -1", ("T", s))))
            if s == WST and u < 3 and str(u) in WSU:
                if u == 0:
                    t = f"""v_and_b32 v{vT}, 7, v{vL}
v_lshlrev_b32 v{vT}, 7, v{vT}
v_lshrrev_b32 v{vT+1}, 3, v{vL}
v_min_u32 v{vT+2}, 2, v{vT+1}
v_lshl_add_u32 v{vT}, v{vT+2}, 17, v{vT}
v_cmp_eq_u32 vcc, 3, v{vT+1}
v_subrev_u32 v{vT+1}, 1024, v{vT}
v_cndmask_b32 v{vT}, v{vT}, v{vT+1}, vcc
s_lshl_b32 s11, s{sRB}, 10
s_add_u32 s11, s11, {WS_FA}"""; ex = "0"
                elif u == 1:
                    t = f"""v_and_b32 v{vT}, 1, v{vL}
v_lshlrev_b32 v{vT}, 7, v{vT}
v_bfe_u32 v{vT+1}, v{vL}, 1, 1
v_mul_u32_u24 v{vT+1}, 1280, v{vT+1}
v_lshrrev_b32 v{vT+2}, 2, v{vL}
v_mul_u32_u24 v{vT+2}, 20480, v{vT+2}
v_add3_u32 v{vT}, v{vT}, v{vT+1}, v{vT+2}
s_mul_i32 s11, s{sRB}, 163840
s_mul_i32 s{sT+2}, s{sHG}, 2560
s_add_u32 s11, s11, s{sT+2}
s_add_u32 s11, s11, {WS_OAB + 512}"""; ex = "0"
                else:
                    t = f"""v_lshlrev_b32 v{vT}, 7, v{vL}
s_lshl3_add_u32 s11, s{sRB}, s{sHG}
s_mul_i32 s11, s11, 5120
s_add_u32 s11, s11, {WS_HALO}"""; ex = "0xff"
                items.append(("V", (f"s_setprio 2\n{t}\ns_setprio {GP}\ns_mov_b32 exec_hi, {ex}\nbuffer_load_dword v0, v{vT}, s[{sWS}:{sWS+3}], s11 offen sc1\ns_mov_b32 exec_hi, -1", ("T", s))))
            if s == MW2 and u < 2:
                srd = [sAWO, sBWO][u]
                items.append(("V", (f"s_mul_i32 s11, s2, 3200\ns_setprio 2\nv_lshlrev_b32 v{vT}, 7, v{vL}\ns_setprio {GP}\ns_mov_b32 exec_lo, 0x1ffffff\ns_mov_b32 exec_hi, 0\nbuffer_load_dword v0, v{vT}, s[{srd}:{srd+3}], s11 offen\ns_mov_b64 exec, -1", ("T", s))))
            if s == WST2:
                t = f"""v_mul_u32_u24 v{vT+1}, 13, v{vL}
v_lshrrev_b32 v{vT+1}, 8, v{vT+1}
v_mul_u32_u24 v{vT+1}, {20480 - 2560}, v{vT+1}
v_lshl_add_u32 v{vT}, v{vL}, 7, v{vT+1}
s_mul_i32 s11, s{sRB}, 163840
s_mul_i32 s{sT+2}, s{sHG}, 2560
s_add_u32 s11, s11, s{sT+2}
s_add_u32 s11, s11, {WS_OAB + 40960*u}"""
                items.append(("V", (f"s_setprio 2\n{t}\ns_setprio {GP}\ns_mov_b32 exec_hi, 0xff\nbuffer_load_dword v0, v{vT}, s[{sWS}:{sWS+3}], s11 offen sc1\ns_mov_b32 exec_hi, -1", ("T", s))))
            if s in CPF and u == CPF.index(s) % 4:
                L = a.uid("Lpc")
                items.append(("V", (f"""s_getpc_b64 s[{sT+2}:{sT+3}]
{L}:
s_sub_u32 s{sT+2}, s{sT+2}, {L}-L_pc0
s_subb_u32 s{sT+3}, s{sT+3}, 0
s_lshr_b32 s11, s2, 3
s_lshl_b32 s11, s11, 7
s_mov_b32 exec_hi, 0
s_setprio 2
v_lshlrev_b32 v{vT}, 12, v{vL}
v_add_u32 v{vT}, s11, v{vT}
v_min_u32 v{vT}, L_code_end-L_pc0, v{vT}
v_mov_b32 v{vT+1}, s{sT+3}
v_add_co_u32 v{vT}, vcc, s{sT+2}, v{vT}
v_addc_co_u32 v{vT+1}, vcc, 0, v{vT+1}, vcc
s_setprio {GP}
global_load_dword v0, v[{vT}:{vT+1}], off
s_mov_b32 exec_hi, -1""", ("T", s))))
            if s in TOUCH: items.append(("V", (touch(sBWO, TOUCH.index(s), len(TOUCH)), ("T", s))))
            for kind, x in items:
                if kind == "R":
                    for l in x: a(l if "nords" not in EXP else "s_nop 0")
                elif kind == "V": emit_vm(*x)
                elif s < 19:
                    arrive(s+1)
                    if s == 2 and u == 3: self.signal(INVD)
                else:
                    a("s_waitcnt lgkmcnt(0)"); self.signal(GDONE)
                if k < len(m): a(m[k]); k += 1
            while k < len(m): a(m[k]); k += 1
        m = mfmas(19)
        if self.stamps == 8:
            a(f"s_lshl2_add_u32 s{sT}, s2, s{sU}\ns_lshl_b32 s{sT}, s{sT}, 9\ns_add_u32 s{sT}, s{sT}, {WS_DUMP}\nv_lshlrev_b32 v{vT}, 2, v{vL}\nbuffer_store_dword v254, v{vT}, s[{sWS}:{sWS+3}], s{sT} offen\nbuffer_store_dword v253, v{vT}, s[{sWS}:{sWS+3}], s{sT} offen offset:256")
        a(f"""
s_lshl3_add_u32 s{sT+8}, s{sRB}, s{sHG}
s_mul_i32 s{sT+9}, s{sT+8}, 5120
s_add_u32 s{sT+9}, s{sT+9}, {WS_HALO}
s_add_u32 s{sT+7}, s{sT+9}, 4096
s_lshl_b32 s{sT+8}, s{sT+8}, 7
s_add_u32 s{sT+8}, s{sT+8}, {WS_FH}
s_mov_b32 s{sT+10}, s{sSX}
s_and_b32 s{sT+11}, s{sRB}, 3
s_cmp_eq_u32 s{sT+11}, 3
s_cselect_b32 s{sSX}, 0, s{sSX}
""")
        def cvt(n):
            c = ACCG + 4*n
            a(f"s_setprio 2\nv_cvt_pk_bf16_f32 v{c}, v{c}, v{c+1}\nv_cvt_pk_bf16_f32 v{c+1}, v{c+2}, v{c+3}\ns_setprio {GP}")
        def wr(n):
            t, xs = work[n]; c = ACCG + 4*n
            off = [QA - R, KA - R + 2560, VA - R + 2560][t // 5] + 32*(t % 5) + (2*rp + xs) * 2560
            a(f"ds_write_b64 v{lPA}, v[{c}:{c+1}] offset:{off}")
        LAG = 3
        npub = len(pub)
        def hflag():
            a(f"s_setprio 2\nv_mov_b32 v{vT}, 0\nv_mov_b32 v{vT+1}, s{sTAG}\ns_setprio {GP}\ns_mov_b64 exec, 1\ns_waitcnt vmcnt(0)")
            n0 = len(a.ins)
            a(f"buffer_store_dword v{vT+1}, v{vT}, s[{sWS}:{sWS+3}], s{sT+8} offen offset:{4*cg} sc1")
            self.dup_stores(n0)
            a("s_mov_b64 exec, -1")
        nst = npub - 1 + LAG
        for n in range(len(m) + LAG):
            if n < len(m): a(m[n])
            if n == 1: a(f"ds_read_b32 v{gFL}, v{vMISC} offset:{GDONE}")
            if n == 2:
                a("s_waitcnt lgkmcnt(0)"); self.check_fast(gFL, GDONE, 4, prio=GP)
            if n == len(m): self.stamp(6)
            if n >= LAG:
                cvt(n - LAG); wr(n - LAG)
                if n - LAG < npub:
                    t = work[n-LAG][0]; c = ACCG + 4*(n-LAG)
                    so = f"s{sT+9}" if t < 13 else f"s{sT+7}"
                    a(f"buffer_store_dwordx2 v[{c}:{c+1}], v{lPH}, s[{sWS}:{sWS+3}], {so} offen offset:{(t-5)*512 - (0 if t < 13 else 4096)} sc1")
                if npub and n == nst + 3: hflag()
        self.signal(LA1)
        if not npub:
            H = GF[0]; L = a.uid("Lh"); D = a.uid("Lhd"); Z = a.uid("Lhz")
            a("s_setprio 2")
            for i in range(6): a(f"v_mov_b64 v[{H+2*i}:{H+2*i+1}], 0")
            a(f"""
v_add_u32 v{vT+2}, {[KA, VA][cg]}, v{lPH+1}
v_mov_b32 v{vT}, 0
s_cmp_eq_u32 s{sRB}, 0
s_cbranch_scc1 {Z}
s_sub_u32 s{sT+8}, s{sT+8}, 1024
s_sub_u32 s{sT+9}, s{sT+9}, {8*5120 - 2560*cg}
s_mov_b32 s{sCNT}, 0x8000
s_mov_b64 exec, 1
{L}:
buffer_load_dwordx2 v[{vT+4}:{vT+5}], v{vT}, s[{sWS}:{sWS+3}], s{sT+8} offen sc1
s_waitcnt vmcnt(0)
v_readfirstlane_b32 s{sT}, v{vT+4}
v_readfirstlane_b32 s{sT+1}, v{vT+5}
s_xor_b32 s{sT}, s{sT}, s{sTAG}
s_xor_b32 s{sT+1}, s{sT+1}, s{sTAG}
s_or_b32 s{sT}, s{sT}, s{sT+1}
s_cbranch_scc0 {D}
s_sub_u32 s{sCNT}, s{sCNT}, 1
s_cmp_lg_u32 s{sCNT}, 0
s_cbranch_scc1 {L}
{D}:
s_mov_b64 exec, -1
buffer_load_dwordx4 v[{H}:{H+3}], v{vLin}, s[{sWS}:{sWS+3}], s{sT+9} offen sc1
buffer_load_dwordx4 v[{H+4}:{H+7}], v{vLin}, s[{sWS}:{sWS+3}], s{sT+9} offen offset:1024 sc1
s_mov_b32 exec_hi, 0
buffer_load_dwordx4 v[{H+8}:{H+11}], v{vLin}, s[{sWS}:{sWS+3}], s{sT+9} offen offset:2048 sc1
s_mov_b32 exec_hi, -1
s_waitcnt vmcnt(0)
{Z}:
ds_write_b128 v{vT+2}, v[{H}:{H+3}]
ds_write_b128 v{vT+2}, v[{H+4}:{H+7}] offset:64
s_mov_b32 exec_hi, 0
ds_write_b128 v{vT+2}, v[{H+8}:{H+11}] offset:128
s_mov_b32 exec_hi, -1
""")
            self.signal(HL)
        a(f"s_mov_b32 s{sSX}, s{sT+10}\ns_waitcnt lgkmcnt(0)")
        for idx in range(18, 20):
            for x in adma(idx): a(x)

    def local_attn(self):
        a = self.a
        QF = 104; KF = 120; VF = 152; SD = 32; PB = 64; OD = 80; TM = 20; GV = 184
        units = self.units; U = range(4)
        a("s_setprio 2")
        for i in range(8): a(f"v_mov_b64 v[{QF+2*i}:{QF+2*i+1}], 0")
        a(f"ds_read_b64 v[{GV}:{GV+1}], v{lPA+2} offset:{GBUF}")
        a(f"""
s_mov_b32 s10, {CSC}
s_mul_i32 s64, s{sRB}, 163840
s_add_u32 s64, s64, {WS_OAB}
s_mul_i32 s{sT+8}, s{sU}, 40960
s_add_u32 s{sT+8}, s{sT+8}, s64
s_mul_i32 s{sT+2}, s{sHG}, 2560
s_add_u32 s64, s64, s{sT+2}
s_lshr_b32 s{sT+2}, s{sU}, 1
s_mul_i32 s{sT+2}, s{sT+2}, 1280
s_add_u32 s64, s64, s{sT+2}
s_and_b32 s{sT+2}, s{sU}, 1
s_mul_i32 s{sT+3}, s{sT+2}, 81920
s_add_u32 s64, s64, s{sT+3}
s_cmp_eq_u32 s{sT+2}, 1
s_cbranch_scc1 L_la_nh
""")
        self.poll(HL, 2)
        a.label("L_la_nh")
        self.poll(LA1, 4)
        self.stamp(7)
        off = [par*160 + hh*40 for hh, par in units]
        a("s_mov_b32 exec_hi, 0xffff")
        for ui in U: a(f"ds_read_b64 v[{QF+4*ui}:{QF+4*ui+1}], v{lQa} offset:{off[ui]}")
        a("s_mov_b32 exec_hi, 0")
        for ui in U: a(f"ds_read_b64 v[{QF+4*ui+2}:{QF+4*ui+3}], v{lQa} offset:{off[ui]+8}")
        a("s_mov_b32 exec_hi, -1")
        for ui in U:
            for tl in range(2):
                f = KF + 8*ui + 4*tl
                a(f"ds_read_b64 v[{f}:{f+1}], v{lKa+tl} offset:{off[ui] + 5120*tl}")
                a(f"ds_read_b64 v[{f+2}:{f+3}], v{lKa+tl} offset:{off[ui] + 5120*tl + 8}")
        for ui, (hh, par) in enumerate(units):
            a(f"s_waitcnt lgkmcnt(12)")
            for tl in range(2):
                f = KF + 8*ui + 4*tl; d = SD + 8*ui + 4*tl; mk = lMK + 4*tl
                a(f"v_mfma_f32_16x16x32_bf16 v[{d}:{d+3}], v[{f}:{f+3}], v[{QF+4*ui}:{QF+4*ui+3}], v[{mk}:{mk+3}]")
            o = off[ui] + 8*hh; f = VF + 8*ui
            a(f"ds_read_b64_tr_b16 v[{f}:{f+1}], v{lVt} offset:{o}")
            a(f"ds_read_b64_tr_b16 v[{f+2}:{f+3}], v{lVt+1} offset:{o+5120}")
            a(f"ds_read_b64_tr_b16 v[{f+4}:{f+5}], v{lVo+2*ui}")
            a(f"ds_read_b64_tr_b16 v[{f+6}:{f+7}], v{lVo+2*ui+1}")
        for st in range(4):
            for ui in U:
                d = SD + 8*ui; m = TM + 2*ui
                a([f"v_max3_f32 v{m}, v{d}, v{d+1}, v{d+2}", f"v_max3_f32 v{m}, v{m}, v{d+3}, v{d+4}", f"v_max3_f32 v{m}, v{m}, v{d+5}, v{d+6}", f"v_max_f32 v{m}, v{m}, v{d+7}"][st])
        for sw in ("v_permlane16_swap_b32", "v_permlane32_swap_b32"):
            for ui in U: a(f"v_mov_b32 v{TM+2*ui+1}, v{TM+2*ui}")
            for ui in U: a(f"{sw} v{TM+2*ui}, v{TM+2*ui+1}")
            for ui in U: a(f"v_max_f32 v{TM+2*ui}, v{TM+2*ui}, v{TM+2*ui+1}")
        for ui in U: a(f"v_mul_f32 v{TM+2*ui}, s10, v{TM+2*ui}")
        for ui in U:
            for i in range(8): a(f"v_fma_f32 v{SD+8*ui+i}, v{SD+8*ui+i}, s10, -v{TM+2*ui}")
        a("s_waitcnt lgkmcnt(0)")
        for ui in U:
            for i in range(8): a(f"v_exp_f32 v{SD+8*ui+i}, v{SD+8*ui+i}")
        for ui in U:
            for i in range(4): a(f"v_cvt_pk_bf16_f32 v{PB+4*ui+i}, v{SD+8*ui+2*i}, v{SD+8*ui+2*i+1}")
            for tl in (1, 0):
                f = VF + 8*ui + 4*tl; d = OD + 8*ui + 4*tl
                a(f"v_mfma_f32_16x16x32_bf16 v[{d}:{d+3}], v[{f}:{f+3}], v[{PB+4*ui}:{PB+4*ui+3}], 0")
        for ui in U: a(f"v_mov_b32 v{TM+2*ui}, v{OD+8*ui+4}\nv_mov_b32 v{TM+2*ui+1}, v{OD+8*ui+4}")
        for ui in U: a(f"v_permlane16_swap_b32 v{TM+2*ui}, v{TM+2*ui+1}")
        for ui in U: a(f"v_rcp_f32 v{TM+2*ui+1}, v{TM+2*ui+1}")
        for ui, (hh, par) in enumerate(units): a(f"v_mul_f32 v{TM+2*ui}, v{TM+2*ui+1}, v{GV+par}")
        for ui in U:
            for i in range(4): a(f"v_pk_mul_f32 v[{OD+8*ui+2*i}:{OD+8*ui+2*i+1}], v[{OD+8*ui+2*i}:{OD+8*ui+2*i+1}], v[{TM+2*ui}:{TM+2*ui+1}] op_sel_hi:[1,0]")
        for ui, (hh, par) in enumerate(units):
            d = SD + 4*hh + 2*par; h = SD + 16 + 4*par + 2*hh
            a(f"v_cvt_pk_bf16_f32 v{d}, v{OD+8*ui}, v{OD+8*ui+1}\nv_cvt_pk_bf16_f32 v{d+1}, v{OD+8*ui+2}, v{OD+8*ui+3}")
            a(f"v_cvt_pk_bf16_f32 v{h}, v{OD+8*ui+4}, v{OD+8*ui+5}\nv_cvt_pk_bf16_f32 v{h+1}, v{OD+8*ui+6}, v{OD+8*ui+7}")
        for hh in range(2):
            d = SD + 4*hh
            a(f"v_permlane16_swap_b32 v{d}, v{d+2}\nv_permlane16_swap_b32 v{d+1}, v{d+3}")
        h = SD + 16
        for i in range(4): a(f"v_permlane16_swap_b32 v{h+i}, v{h+4+i}")
        for hh in range(2):
            d = SD + 4*hh
            a(f"buffer_store_dwordx4 v[{d}:{d+3}], v{lPA+1}, s[{sWS}:{sWS+3}], s64 offen offset:{768*hh} sc1")
        a(f"s_mov_b32 exec_hi, 0\nbuffer_store_dwordx4 v[{h}:{h+3}], v{lPA+1}, s[{sWS}:{sWS+3}], s64 offen offset:512 sc1\ns_mov_b32 exec_hi, -1")

    def g_apart(self):
        a = self.a
        vWb = 20; OF = 32; ACC = 112; WF = 132; NW = 6
        def bk(ks_expr_base, lds0, stride_w):
            out = []
            for p in range(5):
                pre = f"s_add_u32 s{sT+4}, s{sT+10}, {ks_expr_base*40960}" if p == 0 else "s_nop 0"
                out.append(f"s_add_u32 m0, s{sT+9}, {lds0 + 1024*p}\n{pre}\nbuffer_load_dwordx4 v{vW5+p}, s[{sBWO}:{sBWO+3}], s{sT+4} offen lds")
            return out
        def guarded(items, lim):
            out = []
            for x in items:
                L = a.uid("Lbi"); out.append(f"s_cmp_ge_u32 s{sU}, {lim}\ns_cbranch_scc1 {L}\n{x}\n{L}:")
            return out
        def reads(ks):
            wb = vWb + (1 if ks >= 10 else 0); o = (ks % 10) * 5120; f = WF + 20 * (ks % NW); out = []
            for t in range(5):
                out.append(f"ds_read_b64_tr_b16 v[{f+4*t}:{f+4*t+1}], v{wb} offset:{o+32*t}")
                out.append(f"ds_read_b64_tr_b16 v[{f+4*t+2}:{f+4*t+3}], v{wb} offset:{o+32*t+1280}")
            return out
        self.tr_base(vWb, 160)
        a(f"""
v_add_u32 v{vWb+1}, 51200, v{vWb}
s_lshl_b32 s{sT+1}, s{sU}, 2
v_add_u32 v24, s{sT+1}, v{vSIG}
s_mul_i32 s{sT+1}, s{sU}, 5120
s_add_u32 s{sT+1}, s{sT+1}, {ACCAREA}
v_add_u32 v25, s{sT+1}, v{vLin}
""")
        self.flag_store(WS_FA, sU)
        self.signal(CNTA)
        self.stamp(8)
        if self.stop == "oab": return
        a(f"s_setprio 0\ns_mul_i32 s{sT+9}, s{sU}, 5120\ns_lshl_b32 s{sT+10}, s{sT+9}, 3")
        self.poll(CNTA, 4, prio=0)
        a(f"s_cmp_eq_u32 s{sU}, 3\ns_cbranch_scc1 L_ga_poll")
        for x in bk(0, R, 3) + bk(3, R + 15360, 3): a(x)
        for ks in range(NW):
            for l in reads(ks): a(l)
        self.signal(CNTA)
        self.poll(FAS, 1, prio=0)
        a("s_branch L_ga_go")
        a.label("L_ga_poll")
        for ks in range(NW):
            for l in reads(ks): a(l)
        self.signal(CNTA)
        a("s_setprio 2")
        self.flag_poll(WS_FA, 252)
        a("s_setprio 0")
        self.signal(FAS)
        a.label("L_ga_go")
        self.stamp(9)
        a(f"s_add_u32 s64, s{sT+8}, 4096\ns_add_u32 s65, s{sT+8}, 8192\ns_add_u32 s66, s{sT+8}, 12288\ns_add_u32 s67, s{sT+8}, 16384")
        def oload(ks): return f"buffer_load_dwordx4 v[{OF+4*ks}:{OF+4*ks+3}], v{vLin}, s[{sWS}:{sWS+3}], s{[sT+8, 64, 65, 66, 67][ks//4]} offen offset:{(ks%4)*1024} sc1"
        NPRE = 8
        for ks in range(NPRE): a(oload(ks))
        q = [("O", oload(ks)) for ks in range(NPRE, 20)]
        L = a.uid("Lb6")
        d2 = bk(7, 0, 4) + guarded(bk(11, 20480, 4), 2) + [f"s_cmp_lg_u32 s{sU}, 3\ns_cbranch_scc1 {L}\n" + "\n".join(bk(3, R + 15360, 4)) + f"\n{L}:"]
        d3 = bk(13, 30720, 4) + guarded(bk(17, 51200, 4), 3)
        nissued = NPRE
        for ks in range(20):
            if ks < 5: a(f"s_waitcnt vmcnt({nissued - 1 - ks})")
            if ks == 5:
                a("s_waitcnt vmcnt(0)"); self.poll(CNTA, 8, prio=0)
            if ks == 0: self.signal(BW0)
            if ks >= NW: a(f"s_waitcnt lgkmcnt({min(10, 10*(19-ks))})")
            if self.stamps == 5 and ks == 0: self.stamp(1)
            f = WF + 20 * (ks % NW)
            r = reads(ks + NW) if ks + NW < 20 else []
            for t in range(5):
                C = "0" if ks == 0 else f"v[{ACC+4*t}:{ACC+4*t+3}]"
                a(f"v_mfma_f32_16x16x32_bf16 v[{ACC+4*t}:{ACC+4*t+3}], v[{f+4*t}:{f+4*t+3}], v[{OF+4*ks}:{OF+4*ks+3}], {C}")
                for l in r[2*t:2*t+2]: a(l)
                if q and t != 4: a(q.pop(0)[1]); nissued += 1
                if ks >= 5 and d2 and t != 4: a(d2.pop(0))
                if ks >= 10 and d3 and t != 4: a(d3.pop(0))
            if ks == 6: self.signal(CNTA)
            if ks == 9:
                a("s_waitcnt vmcnt(0)"); self.signal(BWOL)
                self.poll(CNTA, 12, prio=0)
                if self.stamps == 5: self.stamp(2)
            if ks == 13: self.signal(CNTA)
            if ks == 17:
                a("s_waitcnt vmcnt(0)"); self.signal(LA2)
                a(f"ds_read_b32 v{vT}, v{vMISC} offset:{CNTA}")
        assert not d2 and not d3
        self.check_fast(vT, CNTA, 16, prio=0)
        for t in range(5): a(f"ds_write_b128 v25, v[{ACC+4*t}:{ACC+4*t+3}] offset:{1024*t}")
        a(f"ds_add_u32 v24, v{vONE} offset:{ACCA}")
        self.stamp(10)
```

```python
from asmlib import *
import struct, math

KNAME = "gated_mix__sliding_local_dilated__grouped_kv_mqa__prompt_kernel"
def f32bits(x): return struct.unpack("<I", struct.pack("<f", x))[0]
XM = 0; XH = 81920; R = 102400; MISC = R + 60416; LDS_SIZE = 163840
P0W = XH; GATE = R + 56320; QBUF = R + 46080
SLOT = [R+15360, R+25600, R+35840, R+46080, R+5120, XH, XH+10240, R+15360, R+25600, R+35840]
RING = [R, R+15360, R+30720]
QA = R; KA = R + 10240; VA = R + 23040
RED = R + 35840
ARING = [R, R+10240, R+20480]
ACCAREA = 81920
FLW = 0; FREE = 64; KVR = 40; P0D = 116; KMAX = 120; GDONE = 124; ONES = 128; CNTG = 144
SCR = R + 58368; GBUF = 256; SAMEX = 112; FAS = 592; BW0 = 596; INVD = 600; HL = 604; CNTA = 512; BWOL = 560; LA1 = 564; LA2 = 568; PAIR = 576; ACCA = 608; TAGO = 632
WS_GRAN = 0x1000; WS_G = 0x4000; WS_K = 0x40000; WS_V = 0x60000; WS_FA = 0x80000; WS_FB = 0xA0000; WS_FH = 0xC0000; WS_HALO = 0x1000000; WS_OAB = 0x100000
WS_DBG = 0x700000; WS_DUMP = 0x800000; WS_SIZE = 0x4000000
CSC = f32bits(20 ** -0.5 * math.log2(math.e))
LOG2E = f32bits(math.log2(math.e))
THR = f32bits(2.0 ** -64)
sW = 3; sRB = 4; sHG = 5; sTAG = 6; sCNT = 7; sK = 8; sV = 9; sKA = 12; sKB = 13; sTAU = 14; sU = 15; sSX = 39
sX = 40; sWQKV = 44; sAWO = 48; sWQ = 52; sWKV = 56; sBWO = 60; sGATE = 64; sOUT = 68; sWS = 72
sT = 76; sST = 88
vL = 1; vMISC = 2; vONE = 3; vSIG = 19; vT = 4
vW5 = 10; vXO = 15; vLin = 17
S_ = [20, 36, 52, 68]; O_ = [84, 100, 116, 132]; Q_ = [148, 154, 160, 166]; K_ = [172, 178, 184, 190]; V_ = [196, 204, 212, 220]
vIDX = 228; vKa = 229; vKb = 230; vVa = 231; vG = 232; vE = 234

import os
EXP = os.environ.get('EXP', '') + ',noacq,mw1,mw0'
GPOLL_AFTER = int(os.environ.get('GPA', '5'))
MSCHED = os.environ.get('MSCHED', 'old')
KVSC = '' if 'kvplain' in EXP else ' sc1'
MPRE = int(os.environ.get('MPRE', '6')); MIL = eval(os.environ.get('MIL', '(0, 2)'))
GSL = int(os.environ.get('GSL', '4'))
CPF = eval(os.environ.get('CPF', '[]'))
WST = int(os.environ.get('WST', '-1')); WSU = os.environ.get('WSU', '012')
WST2 = int(os.environ.get('WST2', '-1'))
SLW = ''; SLE = 56; SLO = 0
MW2 = int(os.environ.get('MW2', '1'))
PRE0 = 10
RPI = int(os.environ.get('RPI', '3'))
TOUCH = eval(os.environ.get('TOUCH', '[]'))
DSL = eval(os.environ.get('DSL', '[(2,5)]*4'))
GP = int(os.environ.get('GP', '0'))
gWO = 20; gXF = 24; gHF = 226; gWm = 28; gFL = 29; gTC = 30; ACCG = 32; GF = [104, 148]
lQa = 192; lKa = 193; lVt = 195; lVo = 197; lMK = 208; lPA = 205; lPH = 224

class Gen:
    def __init__(self, stamps=0, stop=None):
        self.a = Asm(); self.stamps = stamps; self.stop = stop; self.ool = []
    def stamp(self, i):
        if self.stamps: self.a(f"s_memrealtime s[100:101]\ns_waitcnt lgkmcnt(0)\ns_mov_b32 s{sST+i}, s100")
    def cstamp(self, i):
        if self.stamps: self.a(f"s_memtime s[100:101]\ns_waitcnt lgkmcnt(0)\ns_mov_b32 s{sST+i}, s100")
    def srd(self, d, ptr, size):
        self.a(f"s_mov_b32 s{d}, s{ptr}\ns_mov_b32 s{d+1}, s{ptr+1}\ns_mov_b32 s{d+2}, {size}\ns_mov_b32 s{d+3}, 0x20000")
    def poll(self, off, val, prio=None, tmp=vT, st=sT, vaddr=vMISC, sleep=0):
        a = self.a; L = a.uid("Lp"); D = a.uid("Lpd")
        a(f"s_mov_b32 s{sCNT}, 0x20000")
        a.label(L)
        a(f"ds_read_b32 v{tmp}, v{vaddr} offset:{off}\ns_waitcnt lgkmcnt(0)")
        if prio is not None: a("s_setprio 2")
        a(f"v_readfirstlane_b32 s{st}, v{tmp}")
        if prio is not None: a(f"s_setprio {prio}")
        a(f"s_cmp_ge_u32 s{st}, {val}\ns_cbranch_scc1 {D}")
        if sleep: a(f"s_sleep {sleep}")
        a(f"s_sub_u32 s{sCNT}, s{sCNT}, 1\ns_cmp_lg_u32 s{sCNT}, 0\ns_cbranch_scc1 {L}")
        a.label(D)
    def check_or_poll(self, vflag, off, val, prio=None):
        a = self.a; D = a.uid("Lck")
        if prio is not None: a("s_setprio 2")
        a(f"v_readfirstlane_b32 s{sT}, v{vflag}")
        if prio is not None: a(f"s_setprio {prio}")
        a(f"s_cmp_ge_u32 s{sT}, {val}\ns_cbranch_scc1 {D}")
        self.poll(off, val, prio=prio, tmp=vflag)
        a.label(D)
    def signal(self, off, vaddr=None):
        if vaddr is None:
            self.a(f"ds_add_u32 v{vSIG}, v{vONE} offset:{off}")
        else:
            self.a(f"s_mov_b64 exec, 1\nds_add_u32 v{vaddr}, v{vONE} offset:{off}\ns_mov_b64 exec, -1")
    def dup_stores(self, n0):
        a = self.a
        blk = a.ins[n0:]; del a.ins[n0:]
        X = a.uid("Lxs"); B = a.uid("Lxb")
        a(f"s_cmp_eq_u32 s{sSX}, 0\ns_cbranch_scc1 {X}")
        for i in blk: a(i.text.replace(" sc1", ""))
        a.label(B)
        self.ool += [Ins(X + ":")] + blk + [Ins(f"s_branch {B}")]
    def capture(self, fn):
        n = len(self.a.ins); fn(); out = self.a.ins[n:]; del self.a.ins[n:]; return out
    def check_fast(self, vflag, off, val, prio=None, vaddr=vMISC):
        a = self.a; S = a.uid("Lslow"); B = a.uid("Lback")
        if prio is not None: a("s_setprio 2")
        a(f"v_readfirstlane_b32 s{sT}, v{vflag}")
        if prio is not None: a(f"s_setprio {prio}")
        a(f"s_cmp_lt_u32 s{sT}, {val}\ns_cbranch_scc1 {S}")
        a.label(B)
        def slow():
            a.label(S); self.poll(off, val, prio=prio, tmp=vflag, vaddr=vaddr); a(f"s_branch {B}")
        self.ool += self.capture(slow)
    def xfrag_lane(self, d):
        self.a(f"""
v_and_b32 v{vT}, 15, v{vL}
v_lshrrev_b32 v{vT+1}, 1, v{vT}
v_lshrrev_b32 v{vT+2}, 4, v{vL}
v_xor_b32 v{vT+1}, v{vT+1}, v{vT+2}
v_lshlrev_b32 v{vT+1}, 4, v{vT+1}
v_lshl_add_u32 v{d}, v{vT}, 7, v{vT+1}
""")
    def tr_base(self, d, stride, swap=True):
        a = self.a
        if swap:
            a(f"v_lshrrev_b32 v{vT}, 5, v{vL}\nv_bfe_u32 v{vT+1}, v{vL}, 2, 3\nv_lshl_add_u32 v{vT}, v{vT}, 4, v{vT+1}")
        else:
            a(f"v_lshrrev_b32 v{vT}, 4, v{vL}\nv_bfe_u32 v{vT+1}, v{vL}, 2, 2\nv_lshl_add_u32 v{vT}, v{vT}, 3, v{vT+1}")
        a(f"v_mul_u32_u24 v{vT}, {stride}, v{vT}\nv_and_b32 v{vT+1}, 3, v{vL}\nv_lshl_add_u32 v{d}, v{vT+1}, 3, v{vT}")
    def swap23(self, d, s, t):
        self.a(f"""
v_and_b32 v{d}, 0x13, v{s}
v_and_b32 v{t}, 4, v{s}
v_lshl_or_b32 v{d}, v{t}, 1, v{d}
v_bfe_u32 v{t}, v{s}, 3, 1
v_lshl_or_b32 v{d}, v{t}, 2, v{d}
""")
    def dma(self, voff, srd, soff, m0expr):
        self.a(m0expr)
        self.a(f"buffer_load_dwordx4 v{voff}, s[{srd}:{srd+3}], {soff} offen lds")
    def issue_w160(self, srd, s_koff, lds_base, p0=0, p1=10):
        a = self.a
        for p in range(p0, p1):
            if p == 5 or (p == p0 and p0 > 5): a(f"s_add_u32 s{sT+3}, s{s_koff}, 40960")
            so = s_koff if p < 5 else sT + 3
            self.dma(vW5 + p % 5, srd, f"s{so}", f"s_mov_b32 m0, {lds_base + 1024*p}")

    def w160(self):
        a = self.a
        a(f"s_mul_i32 s{sT+7}, s{sHG}, 160")
        for p in range(5):
            a(f"""
v_add_u32 v{vT}, {64*p}, v{vL}
v_mul_u32_u24 v{vT+1}, 6554, v{vT}
v_lshrrev_b32 v{vT+1}, 16, v{vT+1}
v_mul_u32_u24 v{vT+2}, 10, v{vT+1}
v_sub_u32 v{vT}, v{vT}, v{vT+2}
""")
            self.swap23(vT+2, vT+1, vT+3)
            a(f"v_mul_u32_u24 v{vT+2}, 1280, v{vT+2}\nv_lshl_add_u32 v{vT}, v{vT}, 4, v{vT+2}\nv_add_u32 v{vW5+p}, s{sT+7}, v{vT}")

    def prologue(self):
        a = self.a
        a(f"""
s_cmp_ge_u32 s2, 256
s_cbranch_scc1 L_end
s_load_dwordx16 s[16:31], s[0:1], 0
s_load_dwordx8 s[32:39], s[0:1], 64
s_getpc_b64 s[8:9]
L_pc0:
""")
        if self.stamps: a("s_memrealtime s[100:101]")
        a(f"""
v_lshrrev_b32 v{vT}, 6, v0
v_and_b32 v{vL}, 63, v0
s_lshr_b32 s11, s2, 3
v_readfirstlane_b32 s{sW}, v{vT}
s_lshl_b32 s{sT}, s11, 7
s_cmp_lg_u32 s{sW}, 0
s_cbranch_scc1 L_nopf
s_mov_b32 exec_hi, 0
v_lshlrev_b32 v{vT}, 12, v{vL}
v_add_u32 v{vT}, s{sT}, v{vT}
v_min_u32 v{vT}, L_code_end-L_pc0, v{vT}
v_mov_b32 v{vT+1}, s9
v_add_co_u32 v{vT}, vcc, s8, v{vT}
v_addc_co_u32 v{vT+1}, vcc, 0, v{vT+1}, vcc
global_load_dword v0, v[{vT}:{vT+1}], off
s_mov_b64 exec, -1
L_nopf:
s_and_b32 s10, s2, 7
s_and_b32 s{sRB}, s11, 3
s_lshl2_add_u32 s{sRB}, s10, s{sRB}
s_lshr_b32 s{sHG}, s11, 2
s_and_b32 s{sKA}, s{sRB}, 1
s_mul_i32 s{sKA}, s{sKA}, 5
s_and_b32 s{sKB}, s{sRB}, 3
s_lshl_b32 s{sKB}, s{sKB}, 2
s_lshr_b32 s{sKB}, 0x8350, s{sKB}
s_and_b32 s{sKB}, s{sKB}, 15
s_lshr_b32 s{sTAU}, s{sHG}, 1
v_mov_b32 v{vMISC}, {MISC}
v_lshlrev_b32 v{vLin}, 4, v{vL}
v_lshrrev_b32 v{vT}, 3, v{vL}
v_mul_u32_u24 v{vT}, 1280, v{vT}
v_lshrrev_b32 v{vT+1}, 4, v{vL}
v_xor_b32 v{vT+1}, v{vT+1}, v{vL}
v_and_b32 v{vT+1}, 7, v{vT+1}
v_lshl_add_u32 v{vXO}, v{vT+1}, 4, v{vT}
v_xor_b32 v{vXO+1}, 64, v{vXO}
v_add_u32 v{vXO+1}, 10240, v{vXO+1}
s_lshl2_add_u32 s{sT+8}, s{sRB}, s{sTAU}
s_mul_i32 s{sT+9}, s{sT+8}, 20480
s_lshl_b32 s{sT+10}, s{sTAU}, 11
s_lshr_b32 s{sT}, s{sW}, 1
s_add_u32 s{sT}, s{sT}, 8                  ; kb = 8 + (w>>1)
s_lshl_b32 s{sT+1}, s{sT}, 7
s_add_u32 s{sT+1}, s{sT+1}, s{sT+9}        ; soffset (x)
s_lshl_b32 s{sT+2}, s{sT}, 13
s_add_u32 s{sT+2}, s{sT+2}, s{sT+10}
s_and_b32 s{sT+3}, s{sW}, 1
s_lshl_b32 s{sT+4}, s{sT+3}, 10
s_add_u32 s{sT+2}, s{sT+2}, s{sT+4}        ; m0 (x)
s_cmp_eq_u32 s{sT+3}, 1
s_cselect_b64 vcc, -1, 0
v_cndmask_b32 v18, v{vXO}, v{vXO+1}, vcc
s_xor_b32 s{sT+4}, s{sT+4}, 1024
s_add_u32 s{sT+5}, s{sT+4}, {GATE}
s_cmp_eq_u32 s{sW}, 4
s_cselect_b32 s{sT+4}, 24576, s{sT+4}
s_cselect_b32 s{sT+5}, {P0W+24576}, s{sT+5}
s_cmp_lt_u32 s{sW}, 4
s_cselect_b32 s{sT+1}, s{sT+1}, s{sT+4}
s_cselect_b32 s{sT+2}, s{sT+2}, s{sT+5}
s_cselect_b64 vcc, -1, 0
v_cndmask_b32 v18, v{vLin}, v18, vcc
s_lshl_b32 s{sT+4}, s{sW}, 7
s_add_u32 s{sT+4}, s{sT+4}, s{sT+9}
s_lshl_b32 s{sT+5}, s{sW}, 13
s_add_u32 s{sT+5}, s{sT+5}, s{sT+10}
s_lshl_b32 s{sT+6}, s{sW}, 10
""")
        a("s_waitcnt lgkmcnt(0)")
        if self.stamps: a(f"s_mov_b32 s{sST}, s100")
        if self.stamps == 4: self.stamp(5)
        if "mw0" in EXP:
            a(f"s_cmp_lg_u32 s{sW}, 6\ns_cbranch_scc1 L_nomw0")
            self.srd(sWQ, 24, 819200)
            a(f"""
s_mul_i32 s{sT+7}, s2, 3200
v_lshlrev_b32 v{vT}, 7, v{vL}
s_mov_b32 exec_lo, 0x1ffffff
s_mov_b32 exec_hi, 0
buffer_load_dword v0, v{vT}, s[{sWQ}:{sWQ+3}], s{sT+7} offen
s_mov_b64 exec, -1
L_nomw0:
""")
        self.srd(sX, 16, 2621440)
        a(f"""
s_mov_b32 m0, s{sT+5}
s_bitcmp1_b32 s{sHG}, 0
buffer_load_dwordx4 v{vXO}, s[{sX}:{sX+3}], s{sT+4} offen lds
s_cselect_b32 s{sWKV}, s28, s26
s_cselect_b32 s{sWKV+1}, s29, s27
s_add_u32 m0, s{sT+5}, 1024
s_mov_b32 s{sWKV+2}, 25600
buffer_load_dwordx4 v{vXO+1}, s[{sX}:{sX+3}], s{sT+4} offen lds
s_mov_b32 s{sWKV+3}, 0x20000
""")
        for i in range(3):
            a(f"s_add_u32 m0, s{sT+6}, {P0W}")
            a(f"s_nop 0\nbuffer_load_dwordx4 v{vLin}, s[{sWKV}:{sWKV+3}], s{sT+6} offen lds")
            if i < 2: a(f"s_add_u32 s{sT+6}, s{sT+6}, 8192")
        a(f"""
s_cmp_eq_u32 s{sW}, 4
s_cselect_b32 s{sGATE}, s{sWKV}, s32
s_cselect_b32 s{sGATE+1}, s{sWKV+1}, s33
s_cselect_b32 s{sGATE+2}, s{sWKV+2}, 1280
s_cmp_lt_u32 s{sW}, 4
s_cselect_b32 s{sGATE}, s16, s{sGATE}
s_cselect_b32 s{sGATE+1}, s17, s{sGATE+1}
s_cselect_b32 s{sGATE+2}, s{sX+2}, s{sGATE+2}
s_mov_b32 s{sGATE+3}, 0x20000
s_mov_b32 m0, s{sT+2}
""")
        self.srd(sWS, 38, WS_SIZE)
        a(f"""
buffer_load_dwordx4 v18, s[{sGATE}:{sGATE+3}], s{sT+1} offen lds
""")
        if self.stamps == 4: self.stamp(6)
        a(f"""
v_lshlrev_b32 v{vSIG}, 2, v{vL}
v_add_u32 v{vSIG}, {SCR}, v{vSIG}
v_cmp_eq_u32 vcc, 0, v{vL}
s_cmp_lt_u32 s{sW}, 4
v_cndmask_b32 v{vSIG}, v{vSIG}, v{vMISC}, vcc
v_cndmask_b32 v{vONE}, 0, 1, vcc
s_cbranch_scc1 L_M
""")

    def stouch(self, ptr, per_wg, starts, n, wreg, tmp=sT):
        a = self.a
        step = starts[1] - starts[0]
        a(f"""
s_mul_i32 s{tmp}, s{wreg}, {step}
s_min_u32 s{tmp}, s{tmp}, {starts[-1]}
s_mul_i32 s{tmp+1}, s2, {per_wg}
s_add_u32 s{tmp}, s{tmp}, s{tmp+1}
s_lshl_b32 s{tmp}, s{tmp}, 7
s_add_u32 s{tmp}, s{ptr}, s{tmp}
s_addc_u32 s{tmp+1}, s{ptr+1}, 0
""")
        return [f"s_load_dword s22, s[{tmp}:{tmp+1}], {128*i}" for i in range(n)]
    def kv_first(self):
        for l in self.loadK(0) + self.loadV(0): self.a(l)
    def kv_rest(self):
        return self.loadK(1) + self.loadV(1) + self.loadK(2) + self.loadV(2) + self.loadK(3)
    def m_setup2(self):
        a = self.a; ACC = 232
        a(f"""
v_and_b32 v{vT}, 31, v{vL}
v_lshrrev_b32 v{vT+1}, 5, v{vL}
v_min_u32 v{vKb}, 32, v{vL}
v_lshlrev_b32 v{vKb}, 3, v{vKb}
v_lshlrev_b32 v{vT+2}, 8, v{vT+1}
v_lshl_add_u32 v{vVa}, v{vT}, 4, v{vT+2}
v_lshlrev_b32 v{vT+2}, 7, v{vT+1}
v_lshl_add_u32 v{vT+2}, v{vT}, 4, v{vT+2}
v_add_u32 v{vT+2}, 256, v{vT+2}
v_cmp_lt_u32 vcc, 15, v{vT}
v_cndmask_b32 v{vVa}, v{vVa}, v{vT+2}, vcc
v_mov_b32 v{vT+3}, 0x7fffffff
v_cmp_lt_u32 vcc, 20, v{vT}
v_cndmask_b32 v{vVa}, v{vVa}, v{vT+3}, vcc
s_and_b32 s10, s{sW}, 1
s_mul_i32 s{sK}, s10, 45056
s_add_u32 s{sK}, s{sK}, {WS_K}
s_mul_i32 s{sV}, s10, 49152
s_add_u32 s{sV}, s{sV}, {WS_V}
v_mul_u32_u24 v{vT+2}, 160, v{vT}
v_lshl_add_u32 v{vT+2}, v{vT+1}, 4, v{vT+2}
s_lshr_b32 s{sT}, s{sW}, 1
s_mul_i32 s{sT}, s{sT}, 80
s_add_u32 s{sT}, s{sT}, {QBUF}
s_mul_i32 s{sT+1}, s10, 5120
v_add_u32 v{vT+2}, s{sT}, v{vT+2}
v_add_u32 v10, s{sT+1}, v{vT+2}
s_sub_u32 s{sT+1}, 5120, s{sT+1}
v_add_u32 v11, s{sT+1}, v{vT+2}
s_lshl_b32 s{sT+1}, s10, 7
v_lshl_add_u32 v12, v{vT}, 2, v{vMISC}
v_add_u32 v12, s{sT+1}, v12
v_mov_b32 v{vIDX}, 0xdddddddd
v_and_b32 v{vT}, 15, v{vL}
v_lshrrev_b32 v{vT+1}, 4, v{vL}
s_lshl_b32 s{sT+1}, s{sW}, 4
v_add_u32 v{vT}, s{sT+1}, v{vT}
v_mul_u32_u24 v13, 160, v{vT}
v_lshl_add_u32 v13, v{vT+1}, 3, v13
v_add_u32 v13, {QBUF}, v13
""")
        for i in range(84, 148, 2): a(f"v_mov_b64 v[{i}:{i+1}], 0")
        for i in range(4): a(f"v_mov_b64 v[{V_[3]+2*i}:{V_[3]+2*i+1}], 0")


    def kb_of(self, d, i):
        self.a(f"s_add_u32 s{d}, s{sKB}, {i}\ns_cmp_ge_u32 s{d}, 10\ns_cselect_b32 s{sT+1}, 10, 0\ns_sub_u32 s{d}, s{d}, s{sT+1}")
    def m_pre(self):
        a = self.a
        vXB = 76; vWa = 77; vWb = 78; vGB = 79; vFL = 80; ACC = 232
        a.label("L_M")
        a(f"""
s_lshl2_add_u32 s{sT+8}, s{sRB}, s{sW}
s_mul_i32 s{sT+8}, s{sT+8}, 20480
s_lshl_b32 s{sT+9}, s{sW}, 11
s_cmp_lg_u32 s{sW}, 0
s_cbranch_scc1 L_m_noinit
v_mov_b64 v[{vT}:{vT+1}], 0
v_mov_b64 v[{vT+2}:{vT+3}], 0
v_add_u32 v{vT+4}, v{vLin}, v{vMISC}
ds_write_b128 v{vT+4}, v[{vT}:{vT+3}]
v_mov_b32 v{vT}, 0x3f803f80
v_mov_b32 v{vT+1}, 0x3f803f80
ds_write_b64 v{vMISC}, v[{vT}:{vT+1}] offset:{ONES}
L_m_noinit:
""")
        def xissue(i):
            self.kb_of(sT+5, i)
            a(f"s_lshl_b32 s{sT+6}, s{sT+5}, 7\ns_add_u32 s{sT+6}, s{sT+6}, s{sT+8}\ns_lshl_b32 s{sT+7}, s{sT+5}, 13\ns_add_u32 s{sT+7}, s{sT+7}, s{sT+9}")
            for e in range(2):
                self.dma(vXO+e, sX, f"s{sT+6}", f"s_add_u32 m0, s{sT+7}, {XM + e*1024}")
        self.xfrag_lane(vXB)
        a(f"v_add_u32 v{vXB}, s{sT+9}, v{vXB}")
        self.tr_base(vWa, 160)
        a(f"""
v_add_u32 v{vWa}, {XH}, v{vWa}
""")
        AD = 148
        def setup():
            self.m_setup2()
            a(f"v_add_u32 v{vWb}, {R+35840-XH}, v{vWa}")
            for i in range(10):
                a(f"s_add_u32 s{sT+2}, s{sKB}, {i}\ns_cmp_ge_u32 s{sT+2}, 10\ns_cselect_b32 s{sT+3}, 10, 0\ns_sub_u32 s{sT+2}, s{sT+2}, s{sT+3}")
                a(f"""
s_lshl_b32 s{sT+3}, s{sT+2}, 13
v_add_u32 v{AD+2*i}, s{sT+3}, v{vXB}
v_xor_b32 v{AD+2*i+1}, 64, v{AD+2*i}
""")
        setup()
        a("s_waitcnt lgkmcnt(0)")
        if "st1" in EXP:
            for l in self.stouch(18, 75, [0, 19, 38, 56], 19, sW, tmp=sT+2): a(l)
        if "st2" in EXP:
            for l in self.stouch(20, 25, [0, 7, 14, 18], 7, sW, tmp=sT+2): a(l)
            for l in self.stouch(30, 25, [0, 7, 14, 18], 7, sW, tmp=sT+2): a(l)
        a(f"s_cmp_eq_u32 s{sW}, s{sTAU}\ns_cbranch_scc1 L_m_nox1")
        for i in range(5): xissue(i)
        if self.stamps == 4: self.stamp(7)
        a("s_waitcnt vmcnt(10)\ns_branch L_m_nox2")
        a.label("L_m_nox1")
        a("s_waitcnt vmcnt(0)")
        a.label("L_m_nox2")
        a("s_barrier")
        self.stamp(1)
        FB = [20, 48]
        def reads(j):
            i = j >> 1; hs = j & 1; f = FB[hs]; sl = SLOT[i]
            wb, woff = (vWb, sl - (R+35840)) if sl >= R+35840 else (vWa, sl - XH)
            g = []
            for t in range(5):
                ff = f + 4 + 4*t
                g.append(([f"ds_read_b128 v[{f}:{f+3}], v{AD+2*i+hs}"] if t == 0 else []) +
                         [f"ds_read_b64_tr_b16 v[{ff}:{ff+1}], v{wb} offset:{woff + hs*5120 + 32*t}",
                          f"ds_read_b64_tr_b16 v[{ff+2}:{ff+3}], v{wb} offset:{woff + hs*5120 + 32*t + 1280}"])
            return g
        def mfma(j, n):
            f = FB[j & 1]; t = n
            return f"v_mfma_f32_16x16x32_bf16 v[{ACC+4*t}:{ACC+4*t+3}], v[{f+4+4*t}:{f+7+4*t}], v[{f}:{f+3}], " + ("0" if j == 0 else f"v[{ACC+4*t}:{ACC+4*t+3}]")
        need_free = {0, 1, 2, 3, 4, 5}
        if self.stamps == 4: self.stamp(8)
        self.poll(FLW + 0, 1)
        if self.stamps == 4: self.stamp(9); self.cstamp(4)
        a("s_waitcnt vmcnt(8)")
        for g in reads(0):
            for l in g: a(l)
        a(f"ds_read_b32 v{vFL}, v{vMISC} offset:{FLW + 4}")
        for j in range(20):
            i = j >> 1
            nxt = reads(j+1) if j < 19 else None
            for n in range(5):
                a(f"s_waitcnt lgkmcnt({(8 if n == 0 else 9) if nxt else 8 - 2*n})")
                a(mfma(j, n))
                if n == 0 and (j & 1) and j < 19:
                    self.check_fast(vFL, FLW + 4*(i+1), 1)
                    if i + 1 < 5: a(f"s_waitcnt vmcnt({8 - 2*(i+1)})")
                if n == 0 and j == 19:
                    a(f"v_readfirstlane_b32 s11, v{vFL}\ns_cmp_eq_u32 s11, 0\ns_cbranch_scc1 L_m_nokv1")
                    self.kv_first()
                    a.label("L_m_nokv1")
                if nxt:
                    for l in nxt[n]: a(l)
                if self.stamps == 7 and n == 4 and j in (1, 5, 9, 13, 17): self.stamp(5 + j // 4)
                if n == 4 and (j & 1) and j < 19:
                    if i in need_free: self.signal(FREE + 4*i)
                    a(f"ds_read_b32 v{vFL}, v{vMISC} offset:{FLW + 4*(i+2)}")
                    if i == 8: a(f"ds_read_b32 v{vFL+1}, v{vMISC} offset:{FREE+12}")
        self.check_fast(vFL+1, FREE + 12, 4)
        if self.stamps == 4: self.cstamp(10)
        self.stamp(2)
        a(f"s_mov_b32 s{sT}, {CSC}")
        for b in range(4): a(f"v_mov_b64 v[{Q_[b]+4}:{Q_[b]+5}], 0")
        for t in range(5):
            c = ACC + 4*t
            for r in range(4): a(f"v_mul_f32 v{c+r}, s{sT}, v{c+r}")
            a(f"v_cvt_pk_bf16_f32 v{c}, v{c}, v{c+1}\nv_cvt_pk_bf16_f32 v{c+1}, v{c+2}, v{c+3}")
            a(f"ds_write_b64 v13, v[{c}:{c+1}] offset:{32*t}")
        a(f"""
ds_read_b32 v{vFL}, v{vMISC} offset:{KVR}
s_waitcnt lgkmcnt(0)
s_cmp_lg_u32 s11, 0
s_cbranch_scc1 L_m_nokv3
v_readfirstlane_b32 s11, v{vFL}
s_cmp_eq_u32 s11, 0
s_cbranch_scc1 L_m_nokv3
""")
        self.kv_first()
        a("L_m_nokv3:\ns_barrier")
        self.stamp(3)

    def g_pre(self):
        a = self.a
        a.label("L_G")
        a(f"s_setprio 1\ns_sub_u32 s{sU}, s{sW}, 4\ns_cmp_eq_u32 s{sW}, 7\ns_cbranch_scc1 L_P0")
        self.srd(sWQ, 24, 819200)
        self.w160()
        a(f"""
s_add_u32 s{sT+4}, s{sKB}, s{sU}
s_cmp_ge_u32 s{sT+4}, 10
s_cselect_b32 s{sT+1}, 10, 0
s_sub_u32 s{sT+4}, s{sT+4}, s{sT+1}
s_mul_i32 s{sT+4}, s{sT+4}, 81920
s_mul_i32 s{sT+5}, s{sU}, 10240
s_add_u32 s{sT+3}, s{sT+4}, 40960
""")
        gs = self.capture(self.g_setup)
        cuts = [k for k in range(1, len(gs)) if gs[k].mn in ("v_add_u32", "v_mov_b64", "v_mul_u32_u24") and not gs[k-1].mn.startswith(("s_cmp", "v_cmp"))
                and not any(gs[q].mn.startswith("s_cselect") for q in range(k, min(k+3, len(gs))))]
        pos = [min(cuts, key=lambda c: abs(c - (p+1)*len(gs)//10)) for p in range(9)] + [len(gs)]
        k = 0
        for p in range(10):
            self.dma(vW5 + p % 5, sWQ, f"s{sT+4 if p < 5 else sT+3}", f"s_add_u32 m0, s{sT+5}, {R+15360+1024*p}")
            a.ins += gs[k:pos[p]]; k = pos[p]
        if self.stamps == 4: self.stamp(7)
        a("s_waitcnt vmcnt(10)\ns_barrier")
        self.stamp(1)
        def issue(i):
            self.kb_of(sT+4, i)
            a(f"s_mul_i32 s{sT+4}, s{sT+4}, 81920")
            self.issue_w160(sWQ, sT+4, SLOT[i])
        def landed(i, cnt):
            a(f"s_waitcnt vmcnt({cnt})"); self.signal(FLW + 4*i)
            if self.stamps == 7: self.stamp({0:5,3:6,7:7,9:8, 1:5,4:6,8:7, 2:5,5:6,6:7}[i])
        a(f"s_cmp_eq_u32 s{sW}, 5\ns_cbranch_scc1 L_ld5\ns_cmp_eq_u32 s{sW}, 6\ns_cbranch_scc1 L_ld6")
        landed(0, 0); issue(3); landed(3, 0)
        self.poll(FREE + 0, 4); issue(7)
        self.poll(FREE + 4*2, 4); issue(9)
        landed(7, 10); landed(9, 0)
        a("s_branch L_g_join")
        a.label("L_ld5")
        issue(4); landed(1, 10); landed(4, 0)
        self.poll(FREE + 4*1, 4); issue(8); landed(8, 0)
        a("s_branch L_g_join")
        a.label("L_ld6")
        for rt in range(4):
            L = a.uid("Lxs")
            a(f"s_cmp_eq_u32 s{sTAU}, {rt}\ns_cbranch_scc1 {L}\ns_lshl_b32 s{sT+8}, s{sRB}, 2\ns_add_u32 s{sT+8}, s{sT+8}, {rt}\ns_mul_i32 s{sT+8}, s{sT+8}, 20480")
            for i in range(5, 10):
                self.kb_of(sT+5, i)
                a(f"s_lshl_b32 s{sT+6}, s{sT+5}, 7\ns_add_u32 s{sT+6}, s{sT+6}, s{sT+8}\ns_lshl_b32 s{sT+7}, s{sT+5}, 13")
                for e in range(2):
                    self.dma(vXO+e, sX, f"s{sT+6}", f"s_add_u32 m0, s{sT+7}, {XM + rt*2048 + e*1024}")
            a.label(L)
        landed(2, 30)
        self.poll(P0D, 1); issue(5); issue(6)
        landed(5, 10); landed(6, 0)
        a("s_branch L_g_join")
        a.label("L_P0")
        vEP = 249; vXF = 244; vWp = 248; T0 = 0;
        T0 = 240; T1 = 236; T2 = 232; vGp = 250
        a(f"v_mov_b32 v{vT+5}, 0\nbuffer_load_dword v{vEP}, v{vT+5}, s[{sWS}:{sWS+3}], 0 offen sc1")
        self.xfrag_lane(vXF)
        a(f"v_add_u32 v{vXF}, s{sT+10}, v{vXF}\nv_add_u32 v{vXF+2}, 40960, v{vXF}\nv_xor_b32 v{vXF+1}, 64, v{vXF}\nv_xor_b32 v{vXF+3}, 64, v{vXF+2}")
        self.tr_base(vWp, 40, swap=False)
        a(f"v_add_u32 v{vWp}, {P0W}, v{vWp}\nv_and_b32 v{vGp}, 48, v{vL}\nv_add_u32 v{vGp}, {GATE}, v{vGp}")
        a(f"s_lshl_b32 s{sT+8}, s{sT+8}, 4")
        if self.stamps == 4: self.stamp(7)
        a("s_waitcnt vmcnt(1)\ns_barrier")
        self.stamp(1)
        def fr(ks): return 20 + 16 * (ks % 12)
        def loop(isV):
            nr = 5 if isV else 6
            def reads(ks):
                f = fr(ks); kb = ks >> 1; hs = ks & 1
                xa = vXF + (2 if kb >= 5 else 0) + hs
                a(f"ds_read_b128 v[{f}:{f+3}], v{xa} offset:{(kb%5)*8192}")
                for t in range(2):
                    o = ks*1280 + 32*t
                    a(f"ds_read_b64_tr_b16 v[{f+4+4*t}:{f+5+4*t}], v{vWp} offset:{o}")
                    a(f"ds_read_b64_tr_b16 v[{f+6+4*t}:{f+7+4*t}], v{vWp} offset:{o+160}")
                if not isV: a(f"ds_read_b128 v[{f+12}:{f+15}], v{vGp} offset:{ks*64}")
            AHEAD = 3
            for ks in range(AHEAD): reads(ks)
            for ks in range(20):
                a(f"s_waitcnt lgkmcnt({nr*min(AHEAD-1, 19-ks)})")
                if ks == 19:
                    self.signal(P0D)
                    if self.stamps == 4: self.stamp(8)
                f = fr(ks)
                for t, T in ((0, T0), (1, T1), (2, T2)):
                    if t == 2 and isV: continue
                    xf = f"v[{f}:{f+3}]"; wf = f"v[{f+4+4*t}:{f+7+4*t}]"
                    A, B = (xf, wf) if isV else (wf, xf)
                    a(f"v_mfma_f32_16x16x32_bf16 v[{T}:{T+3}], {A}, {B}, " + ("0" if ks == 0 else f"v[{T}:{T+3}]"))
                if ks + AHEAD < 20: reads(ks + AHEAD)
        a(f"s_bitcmp1_b32 s{sHG}, 0\ns_cbranch_scc1 L_P0V")
        loop(False)
        a(f"""
v_and_b32 v{vT}, 15, v{vL}
s_and_b32 s{sT+1}, s{sT+8}, 16
v_add_u32 v{vT}, s{sT+1}, v{vT}
v_lshlrev_b32 v{vT+3}, 3, v{vT}
v_lshrrev_b32 v{vT+1}, 5, v{vL}
v_lshlrev_b32 v{vT+1}, 9, v{vT+1}
v_lshl_add_u32 v{vT}, v{vT}, 4, v{vT+1}
v_bfe_u32 v{vT+1}, v{vL}, 4, 1
v_lshl_add_u32 v{vT}, v{vT+1}, 3, v{vT}
s_lshr_b32 s{sT}, s{sT+8}, 5
s_mul_i32 s{sT}, s{sT}, 1408
s_add_u32 s{sT}, s{sT}, {WS_K}
v_mov_b32 v{vT+2}, 0
v_cvt_pk_bf16_f32 v{T0}, v{T0}, v{T0+1}
v_cvt_pk_bf16_f32 v{T0+1}, v{T0+2}, v{T0+3}
v_cvt_pk_bf16_f32 v{T1}, v{T1}, v{T1+1}
v_cvt_pk_bf16_f32 v{T1+1}, v{T1+2}, v{T1+3}
buffer_store_dwordx2 v[{T0}:{T0+1}], v{vT}, s[{sWS}:{sWS+3}], s{sT} offen sc1
s_mov_b32 exec_hi, 0
s_mov_b32 exec_lo, 0xffff0000
v_mov_b32 v{T1}, 0x3f803f80
v_mov_b32 v{T1+1}, 0x3f80
v_lshl_add_u32 v{vT+3}, v{vL}, 3, 64
v_add_u32 v{vT+3}, 64, v{vT+3}
s_mov_b32 exec_lo, -1
buffer_store_dwordx2 v[{T1}:{T1+1}], v{vT+3}, s[{sWS}:{sWS+3}], s{sT} offen offset:1024 sc1
s_mov_b32 exec_lo, 0xffff
v_mul_f32 v{T2}, {0x80000000 | LOG2E}, v{T2}
v_exp_f32 v{T2}, v{T2}
s_lshl_b32 s{sT+1}, s{sT+8}, 3
v_add_f32 v{T2}, 1.0, v{T2}
v_rcp_f32 v{T2}, v{T2}
s_add_u32 s{sT+1}, s{sT+1}, {WS_G}
v_lshlrev_b32 v{vT+4}, 3, v{vL}
buffer_store_dwordx2 v[{T2}:{T2+1}], v{vT+4}, s[{sWS}:{sWS+3}], s{sT+1} offen sc1
v_dot2_f32_bf16 v{vT+2}, v{T1}, v{T1}, v{vT+2}
v_dot2_f32_bf16 v{vT+2}, v{T1+1}, v{T1+1}, v{vT+2}
s_mov_b64 exec, -1
v_dot2_f32_bf16 v{vT+2}, v{T0}, v{T0}, v{vT+2}
v_dot2_f32_bf16 v{vT+2}, v{T0+1}, v{T0+1}, v{vT+2}
v_mov_b32 v{vT+3}, v{vT+2}
v_permlane16_swap_b32 v{vT+2}, v{vT+3}
v_add_f32 v{vT+2}, v{vT+2}, v{vT+3}
v_mov_b32 v{vT+3}, v{vT+2}
v_permlane32_swap_b32 v{vT+2}, v{vT+3}
v_add_f32 v{vT+2}, v{vT+2}, v{vT+3}
v_max_f32_dpp v{vT+2}, v{vT+2}, v{vT+2} row_ror:8 row_mask:0xf bank_mask:0xf
v_max_f32_dpp v{vT+2}, v{vT+2}, v{vT+2} row_ror:4 row_mask:0xf bank_mask:0xf
v_max_f32_dpp v{vT+2}, v{vT+2}, v{vT+2} row_ror:2 row_mask:0xf bank_mask:0xf
v_max_f32_dpp v{vT+2}, v{vT+2}, v{vT+2} row_ror:1 row_mask:0xf bank_mask:0xf
v_mov_b32 v{vT+5}, v{vT+2}
s_branch L_P0pub
""")
        a.label("L_P0V")
        loop(True)
        a(f"""
v_and_b32 v{vT}, 15, v{vL}
v_lshrrev_b32 v{vT+1}, 5, v{vL}
v_bfe_u32 v{vT+2}, v{vL}, 4, 1
v_lshlrev_b32 v{vT+2}, 3, v{vT+2}
v_lshl_add_u32 v{vT+2}, v{vT}, 4, v{vT+2}
v_lshl_add_u32 v{vT+3}, v{vT+1}, 7, v{vT+2}
v_lshl_add_u32 v{vT+1}, v{vT+1}, 8, v{vT+2}
s_mul_i32 s{sT}, s{sT+8}, 48
s_add_u32 s{sT}, s{sT}, {WS_V}
v_cvt_pk_bf16_f32 v{T0}, v{T0}, v{T0+1}
v_cvt_pk_bf16_f32 v{T0+1}, v{T0+2}, v{T0+3}
v_cvt_pk_bf16_f32 v{T1}, v{T1}, v{T1+1}
v_cvt_pk_bf16_f32 v{T1+1}, v{T1+2}, v{T1+3}
buffer_store_dwordx2 v[{T0}:{T0+1}], v{vT+1}, s[{sWS}:{sWS+3}], s{sT} offen sc1
s_mov_b32 exec_lo, 0x00f000f0
s_mov_b32 exec_hi, 0x00f000f0
v_mov_b32 v{T1}, 0x3f803f80
v_mov_b32 v{T1+1}, 0x3f803f80
s_mov_b32 exec_lo, 0x00ff00ff
s_mov_b32 exec_hi, 0x00ff00ff
buffer_store_dwordx2 v[{T1}:{T1+1}], v{vT+3}, s[{sWS}:{sWS+3}], s{sT} offen offset:512 sc1
s_mov_b64 exec, -1
v_mov_b32 v{vT+5}, 0
""")
        a.label("L_P0pub")
        a(f"""
s_waitcnt vmcnt(2)
v_readfirstlane_b32 s{sTAG}, v{vEP}
s_mul_i32 s{sTAG}, s{sTAG}, 0x41C64E6D
s_add_u32 s{sTAG}, s{sTAG}, 0x3039
v_mov_b32 v{vT+4}, s{sTAG}
s_getreg_b32 s{sT+11}, hwreg(HW_REG_XCC_ID, 0, 4)
v_add_u32 v{vT+5}, 15, v{vT+5}
v_and_b32 v{vT+5}, -16, v{vT+5}
v_or_b32 v{vT+5}, s{sT+11}, v{vT+5}
s_lshl_b32 s{sT}, s2, 3
s_add_u32 s{sT}, s{sT}, {WS_GRAN}
v_mov_b32 v{vT}, 0
s_waitcnt vmcnt(0)
s_mov_b64 exec, 1
buffer_store_dwordx2 v[{vT+4}:{vT+5}], v{vT}, s[{sWS}:{sWS+3}], s{sT} offen sc1
ds_write_b32 v{vMISC}, v{vT+4} offset:{TAGO}
s_mov_b64 exec, -1
""")
        self.stamp(2)
        self.w160()
        self.g_setup()
        if GPOLL_AFTER >= 4: self.w_stage0(3)
        self.poll(FREE + 4*GPOLL_AFTER, 4)
        a(f"""
v_lshlrev_b32 v{vT}, 5, v{vL}
s_movk_i32 s{sT}, {WS_GRAN}
s_mov_b32 s{sCNT}, 0x8000
""")
        if self.stamps == 7: self.stamp(5)
        a(f"""
L_gpoll:
buffer_load_dwordx4 v[120:123], v{vT}, s[{sWS}:{sWS+3}], s{sT} offen sc1
buffer_load_dwordx4 v[124:127], v{vT}, s[{sWS}:{sWS+3}], s{sT} offen offset:16 sc1
s_waitcnt vmcnt(0)
v_cmp_eq_u32 vcc, s{sTAG}, v120
v_cmp_eq_u32 s[{sT+2}:{sT+3}], s{sTAG}, v122
v_cmp_eq_u32 s[{sT+4}:{sT+5}], s{sTAG}, v124
v_cmp_eq_u32 s[{sT+6}:{sT+7}], s{sTAG}, v126
s_and_b64 vcc, vcc, s[{sT+2}:{sT+3}]
s_and_b64 s[{sT+4}:{sT+5}], s[{sT+4}:{sT+5}], s[{sT+6}:{sT+7}]
s_and_b64 vcc, vcc, s[{sT+4}:{sT+5}]
s_cmp_eq_u64 vcc, -1
s_cbranch_scc1 L_gdone
s_sleep {GSL}
s_sub_u32 s{sCNT}, s{sCNT}, 1
s_cmp_lg_u32 s{sCNT}, 0
s_cbranch_scc1 L_gpoll
L_gdone:
""")
        if self.stamps == 7: self.stamp(6); a(f"s_mov_b32 s{sST+10}, s{sCNT}")
        self.signal(KVR)
        a(f"""
s_lshl_b32 s{sT}, s{sRB}, 9
s_add_u32 s{sT}, s{sT}, {WS_G}
v_lshlrev_b32 v130, 3, v{vL}
buffer_load_dword v230, v130, s[{sWS}:{sWS+3}], s{sT} offen sc1
s_bitcmp1_b32 s2, 0
s_cselect_b64 vcc, -1, 0
v_cndmask_b32 v128, v121, v123, vcc
v_cndmask_b32 v129, v125, v127, vcc
s_bitcmp1_b32 s2, 1
s_cselect_b64 vcc, -1, 0
v_cndmask_b32 v128, v128, v129, vcc
v_and_b32 v128, 15, v128
v_cmp_ne_u32 vcc, s{sT+11}, v128
s_bfe_u32 s{sT+2}, s2, 0x10002
s_lshl_b32 s{sT+2}, 0x55555555, s{sT+2}
s_or_b32 s{sT+3}, vcc_lo, vcc_hi
s_and_b32 s{sT+3}, s{sT+3}, s{sT+2}
s_cselect_b32 s{sT+3}, 0, 1
v_mov_b32 v128, s{sT+3}
v_max3_f32 v121, v121, v123, v125
v_max_f32 v121, v121, v127
v_max_f32_dpp v121, v121, v121 row_ror:8 row_mask:0xf bank_mask:0xf
v_max_f32_dpp v121, v121, v121 row_ror:4 row_mask:0xf bank_mask:0xf
v_max_f32_dpp v121, v121, v121 row_ror:2 row_mask:0xf bank_mask:0xf
v_max_f32_dpp v121, v121, v121 row_ror:1 row_mask:0xf bank_mask:0xf
v_mov_b32 v122, v121
v_permlane16_swap_b32 v121, v122
v_max_f32 v121, v121, v122
v_mov_b32 v122, v121
v_permlane32_swap_b32 v121, v122
v_max_f32 v121, v121, v122
s_mov_b64 exec, 1
ds_write_b32 v{vMISC}, v121 offset:{KMAX}
ds_write_b32 v{vMISC}, v128 offset:{SAMEX}
s_cmp_lg_u32 s2, 0
s_cbranch_scc1 L_noepoch
v_mov_b32 v{vT}, 0
v_mov_b32 v{vT+4}, s{sTAG}
buffer_store_dword v{vT+4}, v{vT}, s[{sWS}:{sWS+3}], 0 offen sc1
L_noepoch:
s_mov_b64 exec, -1
""")
        if GPOLL_AFTER < 4: self.w_stage0(3)
        a("s_waitcnt lgkmcnt(0)\ns_branch L_g_join2")
        a.label("L_g_join")
        self.w_stage0(4)
        a("s_waitcnt vmcnt(0) lgkmcnt(0)")
        a.label("L_g_join2")
        self.stamp(4)
        a("s_setprio 0\ns_barrier")
        self.stamp(3)


    def w_stage0(self, npc):
        a = self.a
        if self.stop in ("pre", "nobg"): return
        self.srd(sWQKV, 18, 2457600)
        a(f"s_lshl_b32 s10, s{sU}, 10\ns_add_u32 s10, s10, {R}")
        if npc == 4 and "mw1" in EXP:
            a(f"""
s_mul_i32 s{sT+2}, s2, 3
s_add_u32 s{sT+2}, s{sT+2}, s{sU}
s_mul_i32 s{sT+2}, s{sT+2}, 3200
v_lshlrev_b32 v{vT}, 7, v{vL}
s_mov_b32 exec_lo, 0x1ffffff
s_mov_b32 exec_hi, 0
buffer_load_dword v0, v{vT}, s[{sWQKV}:{sWQKV+3}], s{sT+2} offen
s_mov_b64 exec, -1
""")
        self.poll(FREE + 4*4, 4)
        if npc == 4: self.poll(P0D, 1)
        for i in range(npc): self.dma(gWO+i, sWQKV, "s8", f"s_add_u32 m0, s10, {4096*i}")

    def g_setup(self):
        a = self.a
        a(f"s_mul_i32 s{sT}, s{sHG}, 160\ns_lshl_b32 s{sT+1}, s{sU}, 6")
        for i in range(4):
            a(f"""
v_add_u32 v{vT}, s{sT+1}, v{vL}
v_add_u32 v{vT}, {256*i}, v{vT}
v_mul_u32_u24 v{vT+1}, 2185, v{vT}
v_lshrrev_b32 v{vT+1}, 16, v{vT+1}
v_mul_u32_u24 v{vT+2}, 30, v{vT+1}
v_sub_u32 v{vT}, v{vT}, v{vT+2}
""")
            self.swap23(vT+2, vT+1, vT+3)
            a(f"""
v_mul_u32_u24 v{vT+2}, 3840, v{vT+2}
v_mul_u32_u24 v{vT+3}, 26, v{vT}
v_lshrrev_b32 v{vT+3}, 8, v{vT+3}
v_mul_u32_u24 v{vT+3}, 1120, v{vT+3}
v_lshl_add_u32 v{vT}, v{vT}, 4, v{vT+2}
v_add3_u32 v{gWO+i}, v{vT}, v{vT+3}, s{sT}
""")
        self.xfrag_lane(gHF)
        a(f"""
s_and_b32 s{sT}, s{sU}, 1
s_lshl_b32 s{sT}, s{sT}, 12
s_lshl_b32 s64, s{sKA}, 13
s_sub_u32 s65, 40960, s64
s_add_u32 s{sT+1}, s{sT}, s64
v_add_u32 v{gXF}, s{sT+1}, v{gHF}
s_add_u32 s{sT+1}, s{sT}, s65
v_add_u32 v{gXF+2}, s{sT+1}, v{gHF}
v_xor_b32 v{gXF+1}, 64, v{gXF}
v_xor_b32 v{gXF+3}, 64, v{gXF+2}
s_mul_i32 s8, s{sKA}, 245760
s_sub_u32 s9, 1228800, s8
s_lshr_b32 s{sT}, s2, 3
s_lshl2_add_u32 s{sT}, s{sT}, s{sU}
s_mul_i32 s{sT}, s{sT}, 6400
v_lshlrev_b32 v{gTC}, 7, v{vL}
v_add_u32 v{gTC}, s{sT}, v{gTC}
""")
        self.tr_base(gWm, 480)
        a(f"v_add_u32 v{gWm}, {R}, v{gWm}")
        BIG = f32bits(-1.0e30)
        a(f"""
v_and_b32 v{vT}, 15, v{vL}
v_lshrrev_b32 v{vT+1}, 4, v{vL}
s_lshr_b32 s{sT}, s{sU}, 1
s_mul_i32 s{sT}, s{sT}, 80
s_and_b32 s{sT+2}, s{sU}, 1
s_mul_i32 s{sT+1}, s{sT+2}, 5120
s_add_u32 s{sT}, s{sT}, s{sT+1}
v_mul_u32_u24 v{vT+2}, 320, v{vT}
v_lshl_add_u32 v{vT+2}, v{vT+1}, 4, v{vT+2}
s_add_u32 s{sT+1}, s{sT}, {QA}
v_add_u32 v{lQa}, s{sT+1}, v{vT+2}
s_add_u32 s{sT+1}, s{sT}, {KA}
v_add_u32 v{lKa}, s{sT+1}, v{vT+2}
v_min_u32 v{vT+3}, 7, v{vT}
v_mul_u32_u24 v{vT+3}, 320, v{vT+3}
v_lshl_add_u32 v{vT+3}, v{vT+1}, 4, v{vT+3}
v_add_u32 v{lKa+1}, s{sT+1}, v{vT+3}
v_lshrrev_b32 v{vT+2}, 2, v{vL}
v_and_b32 v{vT+3}, 3, v{vL}
v_mul_u32_u24 v{vT+4}, 320, v{vT+2}
v_lshl_add_u32 v{vT+4}, v{vT+3}, 3, v{vT+4}
s_add_u32 s{sT+1}, s{sT}, {VA}
v_add_u32 v{lVt}, s{sT+1}, v{vT+4}
v_min_u32 v{vT+2}, 7, v{vT+2}
v_mul_u32_u24 v{vT+4}, 320, v{vT+2}
v_lshl_add_u32 v{vT+4}, v{vT+3}, 3, v{vT+4}
v_add_u32 v{lVt+1}, s{sT+1}, v{vT+4}
v_cmp_eq_u32 vcc, 0, v{vT+3}
v_mov_b32 v{vT+2}, {MISC+ONES}
""")
        for ui, (hh, par) in enumerate(self.units):
            o = par*160 + 32 + 8*hh
            a(f"""
v_add_u32 v{vT+4}, {o}, v{lVt}
v_add_u32 v{vT+5}, {o+5120}, v{lVt+1}
v_cndmask_b32 v{lVo+2*ui}, v{vT+2}, v{vT+4}, vcc
v_cndmask_b32 v{lVo+2*ui+1}, v{vT+2}, v{vT+5}, vcc
""")
        a(f"""
v_mul_u32_u24 v{lPA}, 160, v{vT}
v_lshl_add_u32 v{lPA}, v{vT+1}, 3, v{lPA}
v_add_u32 v{lPA}, {R}, v{lPA}
s_lshl_b32 s{sT+1}, s{sT+2}, 7
v_lshl_add_u32 v{lPA+2}, v{vT}, 3, v{vMISC}
v_add_u32 v{lPA+2}, s{sT+1}, v{lPA+2}
v_lshrrev_b32 v{vT+2}, 3, v{vT}
v_mul_u32_u24 v{vT+2}, 40960, v{vT+2}
v_and_b32 v{vT+3}, 7, v{vT}
v_lshl_add_u32 v{vT+2}, v{vT+3}, 5, v{vT+2}
v_and_b32 v{vT+3}, 1, v{vT+1}
v_lshl_add_u32 v{vT+2}, v{vT+3}, 4, v{vT+2}
v_lshrrev_b32 v{vT+3}, 1, v{vT+1}
v_lshl_add_u32 v{lPA+1}, v{vT+3}, 8, v{vT+2}
v_lshlrev_b32 v{lPH}, 5, v{vT}
v_lshl_add_u32 v{lPH}, v{vT+1}, 3, v{lPH}
v_bfe_u32 v{vT+2}, v{vL}, 1, 4
v_mul_u32_u24 v{vT+2}, 160, v{vT+2}
v_lshrrev_b32 v{vT+3}, 5, v{vL}
v_lshl_add_u32 v{vT+2}, v{vT+3}, 5, v{vT+2}
v_and_b32 v{vT+3}, 1, v{vL}
v_lshl_add_u32 v{lPH+1}, v{vT+3}, 4, v{vT+2}
s_or_b32 s{sT+2}, s{sT+2}, s{sRB}
s_cselect_b32 s{sT+2}, 0, 8
v_lshlrev_b32 v{vT+1}, 2, v{vT+1}
v_sub_u32 v{vT+2}, v{vT+1}, v{vT}
v_mov_b32 v{vT+3}, {BIG}
""")
        for tl in range(2):
            for r in range(4):
                a(f"""
v_add_u32 v{vT+4}, {16*tl + r - 1}, v{vT+2}
v_cmp_gt_u32 vcc, 8, v{vT+4}
v_cndmask_b32 v{lMK+4*tl+r}, v{vT+3}, 0, vcc
""")
                if tl == 0:
                    a(f"""
v_add_u32 v{vT+4}, {r}, v{vT+1}
v_cmp_le_u32 vcc, s{sT+2}, v{vT+4}
v_cndmask_b32 v{lMK+r}, v{vT+3}, v{lMK+r}, vcc
""")
    units = [(hh, par) for hh in range(2) for par in range(2)]

    def loadK(self, b, KVSC=' sc1'):
        k = K_[b]
        return [f"buffer_load_dwordx4 v[{k}:{k+3}], v{vLin}, s[{sWS}:{sWS+3}], s{sK} offen{KVSC}",
                f"buffer_load_dwordx2 v[{k+4}:{k+5}], v{vKb}, s[{sWS}:{sWS+3}], s{sK} offen offset:1024{KVSC}\ns_add_u32 s{sK}, s{sK}, 1408"]
    def loadV(self, b, KVSC=' sc1'):
        v = V_[b]
        return [f"buffer_load_dwordx4 v[{v}:{v+3}], v{vVa}, s[{sWS}:{sWS+3}], s{sV} offen{KVSC}",
                f"buffer_load_dwordx4 v[{v+4}:{v+7}], v{vVa}, s[{sWS}:{sWS+3}], s{sV} offen offset:768{KVSC}\ns_add_u32 s{sV}, s{sV}, 1536"]
    def qk(self, Sn, K, Q):
        return [f"v_mfma_f32_32x32x16_bf16 v[{Sn}:{Sn+15}], v[{K}:{K+3}], v[{Q}:{Q+3}], 0",
                f"v_mfma_f32_32x32x8_bf16 v[{Sn}:{Sn+15}], v[{K+4}:{K+5}], v[{Q+4}:{Q+5}], v[{Sn}:{Sn+15}]"]
    def pv(self, O, V, P):
        return [f"v_smfmac_f32_32x32x32_bf16 v[{O}:{O+15}], v[{V}:{V+3}], v[{P}:{P+7}], v{vIDX}",
                f"v_smfmac_f32_32x32x32_bf16 v[{O}:{O+15}], v[{V+4}:{V+7}], v[{P+8}:{P+15}], v{vIDX}"]
    def flag_poll(self, ws_base, tmp):
        a = self.a; L = a.uid("Lf"); D = a.uid("Lfd")
        a(f"""
v_lshlrev_b32 v{vT}, 7, v{vL}
s_lshl_b32 s{sT}, s{sRB}, 10
s_add_u32 s{sT}, s{sT}, {ws_base}
s_mov_b32 s{sCNT}, 0x8000
s_mov_b64 exec, 0xff
{L}:
buffer_load_dwordx4 v[{tmp}:{tmp+3}], v{vT}, s[{sWS}:{sWS+3}], s{sT} offen sc1
s_waitcnt vmcnt(0)
v_cmp_eq_u32 vcc, s{sTAG}, v{tmp}
v_cmp_eq_u32 s[{sT+2}:{sT+3}], s{sTAG}, v{tmp+1}
v_cmp_eq_u32 s[{sT+4}:{sT+5}], s{sTAG}, v{tmp+2}
v_cmp_eq_u32 s[{sT+6}:{sT+7}], s{sTAG}, v{tmp+3}
s_and_b32 s{sT+2}, s{sT+2}, vcc_lo
s_and_b32 s{sT+4}, s{sT+4}, s{sT+6}
s_and_b32 s{sT+2}, s{sT+2}, s{sT+4}
s_cmp_eq_u32 s{sT+2}, 0xff
s_cbranch_scc1 {D}
s_sleep 2
s_sub_u32 s{sCNT}, s{sCNT}, 1
s_cmp_lg_u32 s{sCNT}, 0
s_cbranch_scc1 {L}
{D}:
s_mov_b64 exec, -1
""")
    def flag_store(self, ws_base, widx_sgpr):
        self.a(f"""
s_lshl_b32 s{sT}, s{sRB}, 3
s_add_u32 s{sT}, s{sT}, s{sHG}
s_lshl_b32 s{sT}, s{sT}, 7
s_lshl2_add_u32 s{sT}, s{widx_sgpr}, s{sT}
s_add_u32 s{sT}, s{sT}, {ws_base}
v_mov_b32 v{vT}, 0
v_mov_b32 v{vT+1}, s{sTAG}
s_mov_b64 exec, 1
s_waitcnt vmcnt(0)
""")
        n0 = len(self.a.ins)
        self.a(f"buffer_store_dword v{vT+1}, v{vT}, s[{sWS}:{sWS+3}], s{sT} offen sc1")
        self.dup_stores(n0)
        self.a("s_mov_b64 exec, -1")

    def m_main(self):
        a = self.a
        for b in range(4):
            q = Q_[b]; ad = 10 + (b >> 1); o = (b & 1) * 40
            a(f"ds_read_b64 v[{q}:{q+1}], v{ad} offset:{o}\nds_read_b64 v[{q+2}:{q+3}], v{ad} offset:{o+8}")
        a("s_mov_b32 exec_hi, 0")
        for b in range(4):
            q = Q_[b]; ad = 10 + (b >> 1); o = (b & 1) * 40
            a(f"ds_read_b64 v[{q+4}:{q+5}], v{ad} offset:{o+32}")
        a(f"""
s_mov_b32 exec_hi, -1
ds_read_b32 v13, v{vMISC} offset:{KMAX}
s_cmp_lg_u32 s11, 0
s_cbranch_scc1 L_m_nokv2
""")
        self.kv_first()
        a.label("L_m_nokv2")
        for l in self.kv_rest(): a(l)
        for i in range(68, 84, 2): a(f"v_mov_b64 v[{i}:{i+1}], 0")
        N = S_[1]
        for b in range(4): a(f"v_mov_b32 v{N+b}, 0")
        a("s_waitcnt lgkmcnt(0)")
        a(f"ds_read_b32 v15, v{vMISC} offset:{SAMEX}")
        a(f"ds_read_b32 v14, v{vMISC} offset:{TAGO}")
        for i in range(6):
            for b in range(4): a(f"v_dot2_f32_bf16 v{N+b}, v{Q_[b]+i}, v{Q_[b]+i}, v{N+b}")
        for b in range(4): a(f"v_mov_b32 v{N+4+b}, v{N+b}")
        for b in range(4): a(f"v_permlane32_swap_b32 v{N+b}, v{N+4+b}")
        for b in range(4): a(f"v_add_f32 v{N+b}, v{N+b}, v{N+4+b}")
        for b in range(4): a(f"v_mul_f32 v{N+b}, v{N+b}, v13")
        for b in range(4): a(f"v_sqrt_f32 v{N+b}, v{N+b}")
        a("s_mov_b32 exec_lo, 0")
        for b in range(4): a(f"v_mul_f32 v{N+b}, {f32bits(-(1.0 + 2.0**-6))}, v{N+b}")
        for b in range(4): a(f"v_lshrrev_b32 v{Q_[b]+4}, 16, v{N+b}")
        a("s_mov_b32 exec_lo, -1")
        eW = vE; eR = vE+1; ePs = vE+2; ePp = vE+3; eS4 = vE+4; eS2 = vE+5; eWb = vE+6; eO4 = vE+8; eO2 = vE+9; eAC = vE+10
        a(f"""
s_mul_i32 s{sT+1}, s{sW}, 6144
s_xor_b32 s{sT+2}, s{sW}, 1
s_mul_i32 s{sT+3}, s{sT+2}, 6144
s_add_u32 s{sT+1}, s{sT+1}, {RED}
s_add_u32 s{sT+3}, s{sT+3}, {RED}
v_add_u32 v{eW}, s{sT+1}, v{vLin}
v_add_u32 v{eR}, s{sT+3}, v{vLin}
s_lshl_b32 s{sT+1}, s{sW}, 2
s_lshl_b32 s{sT+2}, s{sT+2}, 2
v_add_u32 v{ePs}, s{sT+1}, v{vSIG}
v_add_u32 v{ePp}, s{sT+2}, v{vMISC}
v_add_u32 v{eAC+1}, s{sT+1}, v{vMISC}
v_and_b32 v{vT}, 15, v{vL}
v_bfe_u32 v{vT+1}, v{vL}, 4, 1
v_mul_u32_u24 v{vT+1}, 40960, v{vT+1}
v_lshl_add_u32 v{vT}, v{vT}, 4, v{vT+1}
v_lshrrev_b32 v{vT+1}, 5, v{vL}
v_lshl_add_u32 v{eS4}, v{vT+1}, 8, v{vT}
v_xor_b32 v{eS2}, 256, v{eS4}
s_mul_i32 s64, s{sRB}, 163840
s_mul_i32 s{sT+2}, s{sHG}, 2560
s_add_u32 s64, s64, s{sT+2}
s_lshr_b32 s{sT+2}, s{sW}, 1
s_mul_i32 s{sT+2}, s{sT+2}, 1280
s_add_u32 s64, s64, s{sT+2}
s_mul_i32 s{sT+2}, s10, 81920
s_add_u32 s64, s64, s{sT+2}
s_add_u32 s64, s64, {WS_OAB + 80*256}
s_waitcnt vmcnt(12) lgkmcnt(0)
""")
        for l in self.qk(S_[0], K_[0], Q_[0]): a(l)
        a(f"v_readfirstlane_b32 s{sTAG}, v14\nv_readfirstlane_b32 s{sSX}, v15")
        ACQ = "noacq" not in EXP
        if "st3" in EXP:
            for l in self.stouch(20, 25, [0, 7, 14, 18], 7, sW, tmp=sT+2): a(l)
            for l in self.stouch(30, 25, [0, 7, 14, 18], 7, sW, tmp=sT+2): a(l)
        a(f"s_mov_b32 s{sCNT}, {7 if ACQ else 8}")
        self.stamp(4)
        self.cstamp(9)
        STL = "stl" in EXP
        if STL:
            def pair(d, lo, hi, off): a(f"s_add_u32 s{d}, s{lo}, s{off}\ns_addc_u32 s{d+1}, s{hi}, 0")
            a(f"""
s_lshl2_add_u32 s{sT}, s{sRB}, s{sW}
s_mul_i32 s{sT}, s{sT}, 40960
s_mul_i32 s{sT+1}, s{sHG}, 2560
s_add_u32 s{sT}, s{sT}, s{sT+1}
s_add_u32 s{sT}, s{sT}, {WS_OAB}
""")
            pair(40, sWS, sWS+1, sT)
            a("s_add_u32 s42, s40, 512\ns_addc_u32 s43, s41, 0\ns_add_u32 s50, s40, 20480\ns_addc_u32 s51, s41, 0\ns_add_u32 s52, s40, 20992\ns_addc_u32 s53, s41, 0\ns_mov_b64 s[54:55], s[52:53]")
            a(f"s_lshr_b32 s{sT}, s2, 3\ns_lshl2_add_u32 s{sT}, s{sT}, s{sW}\ns_mul_i32 s{sT}, s{sT}, 6400")
            pair(44, 30, 31, sT)
            a("s_add_u32 s46, s44, 2176\ns_addc_u32 s47, s45, 0\ns_add_u32 s48, s44, 4352\ns_addc_u32 s49, s45, 0")
            a(f"""
s_lshl3_add_u32 s{sT}, s{sRB}, s{sHG}
s_mul_i32 s{sT+1}, s{sT}, 5120
s_mul_i32 s{sT+4}, s{sW}, 1280
s_add_u32 s{sT+1}, s{sT+1}, s{sT+4}
s_add_u32 s{sT+1}, s{sT+1}, {WS_HALO}
""")
            pair(sT+2, sWS, sWS+1, sT+1)
            for i in range(10): a(f"s_load_dword{SLW} s[56:{SLE}], s[{sT+2}:{sT+3}], {128*i + SLO}" if SLW else f"s_load_dword s56, s[{sT+2}:{sT+3}], {128*i}")
            a(f"s_lshl_b32 s{sT+1}, s{sT}, 7\ns_lshl_b32 s{sT+4}, s{sW}, 17\ns_min_u32 s{sT+4}, s{sT+4}, {2 << 17}\ns_add_u32 s{sT+1}, s{sT+1}, s{sT+4}\ns_add_u32 s{sT+1}, s{sT+1}, {WS_FA}")
            pair(sT+2, sWS, sWS+1, sT+1)
            a(f"s_load_dword s56, s[{sT+2}:{sT+3}], 0")
        a("s_nop 5")
        def body(sc, first):
            for kb in range(4):
                for j in range(4):
                    e = [f"v_exp_f32 v{S_[j]+i}, v{S_[j]+i}" for i in range(16)]
                    m = self.qk(S_[(j+1) % 4], K_[kb if j < 3 else (kb+1) % 4], Q_[(j+1) % 4]) + self.pv(O_[(j+3) % 4], V_[kb if j > 0 else (kb+3) % 4], S_[(j+3) % 4])
                    pre = [None]*4; post = [None]*4
                    if j == 1:
                        pre[2] = "s_waitcnt vmcnt(10)"
                        lv = self.loadV((kb+3) % 4, sc); post[2] = lv[0]; post[3] = lv[1]
                    if j == 3:
                        pre[0] = "s_waitcnt vmcnt(10)"
                        lk = self.loadK(kb, sc); post[2] = lk[0]; post[3] = lk[1]
                        if kb == 3 and not first:
                            post[0] = f"s_sub_u32 s{sCNT}, s{sCNT}, 1"
                            post[3] += f"\ns_cmp_lg_u32 s{sCNT}, 0"
                    if STL:
                        n = 4*kb + j
                        t = f"s_load_dword s56, s[40:41], {128*n + (128 if n == 15 and False else 0)}"
                        slot = 2 if j in (0, 2) else 0
                        post[slot] = (post[slot] + "\n" if post[slot] else "") + t
                        if n == 15: post[1] = "\n".join(f"s_mov_b64 s[{40+2*i}:{41+2*i}], s[{42+2*i}:{43+2*i}]" for i in range(7))
                    if first and kb == 3 and j == 2: post[2] = f"ds_read_b32 v14, v{vMISC} offset:{INVD}"
                    for x in range(4):
                        if pre[x]: a(pre[x])
                        a(m[x])
                        if post[x]: a(post[x])
                        for l in e[4*x:4*x+4]: a(l)
        if ACQ:
            body(" sc1", True)
            a("s_waitcnt lgkmcnt(0)")
            self.check_fast(14, INVD, 1)
            a(f"s_mov_b32 s{sCNT}, 7")
        a(".p2align 6")
        a.label("L_mqa")
        body("" if ACQ else " sc1", False)
        if self.stamps == 3:
            a(f"s_memrealtime s[100:101]\ns_waitcnt lgkmcnt(0)\ns_mov_b32 m0, s{sCNT}\nv_writelane_b32 v254, s100, m0\ns_memtime s[100:101]\ns_waitcnt lgkmcnt(0)\nv_writelane_b32 v253, s100, m0\ns_cmp_lg_u32 s{sCNT}, 0")
        a("s_cbranch_scc1 L_mqa")
        a(f"s_setprio 3\nds_read_b32 v14, v{vMISC} offset:{GDONE}")
        for l in self.pv(O_[3], V_[3], S_[3]): a(l)
        if self.stamps == 3:
            a(f"s_lshl2_add_u32 s{sT}, s2, s{sW}\ns_lshl_b32 s{sT}, s{sT}, 9\ns_add_u32 s{sT}, s{sT}, {WS_DUMP}\nv_lshlrev_b32 v{vT}, 2, v{vL}\nbuffer_store_dword v254, v{vT}, s[{sWS}:{sWS+3}], s{sT} offen\nbuffer_store_dword v253, v{vT}, s[{sWS}:{sWS+3}], s{sT} offen offset:256")
        self.stamp(5)
        self.cstamp(10)
        a("s_waitcnt lgkmcnt(0)")
        self.check_fast(14, GDONE, 4)
        a(f"ds_read_b32 v{vG}, v12 offset:{GBUF}")
        for b in range(2):
            for i in range(3):
                o = O_[2+b] + 4*i
                a(f"ds_write_b128 v{eW}, v[{o}:{o+3}] offset:{(3*b+i)*1024}")
        a(f"ds_add_u32 v{ePs}, v{vONE} offset:{PAIR}")
        self.poll(PAIR, 1, vaddr=ePp)
        a(f"v_sub_f32 v{vG}, 1.0, v{vG}")
        if self.stamps == 5: self.stamp(3)
        for b in range(2):
            for i in range(3):
                o = S_[b] + 4*i
                a(f"ds_read_b128 v[{o}:{o+3}], v{eR} offset:{(3*b+i)*1024}")
        for b in range(2):
            a(f"s_waitcnt lgkmcnt({3*(1-b)})")
            for i in range(0, 12, 2): a(f"v_pk_add_f32 v[{O_[b]+i}:{O_[b]+i+1}], v[{O_[b]+i}:{O_[b]+i+1}], v[{S_[b]+i}:{S_[b]+i+1}]")
        for b in range(2):
            a(f"v_mov_b32 v{S_[2]+2*b}, v{O_[b]+8}\nv_mov_b32 v{S_[2]+2*b+1}, v{O_[b]+8}")
        for b in range(2):
            a(f"v_permlane32_swap_b32 v{S_[2]+2*b}, v{S_[2]+2*b+1}")
        a(f"""
v_min_f32 v{vT}, v{S_[2]+1}, v{S_[2]+3}
v_add_f32 v{vT+1}, v{S_[2]+1}, v{S_[2]+3}
s_mov_b32 s{sT}, {THR}
v_cmp_nle_f32 vcc, s{sT}, v{vT}
s_mov_b32 s{sT+1}, {f32bits(1.0e30)}
v_cmp_ngt_f32 s[{sT+2}:{sT+3}], s{sT+1}, v{vT+1}
s_or_b64 vcc, vcc, s[{sT+2}:{sT+3}]
s_cbranch_vccnz L_fallback
L_m_norm:
v_rcp_f32 v{S_[2]+1}, v{S_[2]+1}
v_rcp_f32 v{S_[2]+3}, v{S_[2]+3}
v_mul_f32 v{S_[2]+1}, v{S_[2]+1}, v{vG}
v_mul_f32 v{S_[2]+3}, v{S_[2]+3}, v{vG}
""")
        for b in range(2):
            for i in range(0, 12, 2): a(f"v_pk_mul_f32 v[{O_[b]+i}:{O_[b]+i+1}], v[{O_[b]+i}:{O_[b]+i+1}], v[{S_[2]+2*b}:{S_[2]+2*b+1}] op_sel:[0,1] op_sel_hi:[1,1]")
        def cvt(d, s): a(f"v_cvt_pk_bf16_f32 v{d}, v{s}, v{s+1}\nv_cvt_pk_bf16_f32 v{d+1}, v{s+2}, v{s+3}")
        d0 = S_[0]; d1 = S_[1]
        cvt(d0, O_[0]); cvt(d0+2, O_[0]+4); cvt(d1+2, O_[1]+8); cvt(d1+4, O_[1]+4); cvt(d1, O_[1]); cvt(d0+4, O_[0]+8); cvt(d0+6, O_[1])
        a(f"v_permlane32_swap_b32 v{d0}, v{d0+2}\nv_permlane32_swap_b32 v{d0+1}, v{d0+3}")
        a(f"v_permlane32_swap_b32 v{d1+2}, v{d1+4}\nv_permlane32_swap_b32 v{d1+3}, v{d1+5}")
        a(f"buffer_store_dwordx4 v[{d0}:{d0+3}], v{eS4}, s[{sWS}:{sWS+3}], s64 offen sc1")
        a(f"v_permlane32_swap_b32 v{d1+4}, v{d1}\nv_permlane32_swap_b32 v{d1+5}, v{d1+1}")
        a(f"s_mov_b32 exec_hi, 0\nbuffer_store_dwordx4 v[{d0+4}:{d0+7}], v{eS4}, s[{sWS}:{sWS+3}], s64 offen offset:512 sc1\ns_mov_b32 exec_hi, -1")
        a(f"buffer_store_dwordx4 v[{d1}:{d1+3}], v{eS2}, s[{sWS}:{sWS+3}], s64 offen offset:768 sc1")
        a.label("L_m_pub")
        if self.stamps == 5: self.stamp(4)
        OF = 52; ACC = 132; WF = 152; NWF = 4
        a(f"ds_read_b32 v14, v{vMISC} offset:{BW0}")
        a(f"""
s_lshl2_add_u32 s{sT+8}, s{sRB}, s{sW}
s_lshl_b32 s{sT+10}, s{sT+8}, 4
s_mul_i32 s56, s{sT+8}, 40960
s_add_u32 s56, s56, {WS_OAB + 20480}
s_add_u32 s57, s56, 4096
s_add_u32 s58, s56, 8192
s_add_u32 s59, s56, 12288
s_add_u32 s60, s56, 16384
""")
        self.tr_base(eWb, 160)
        a(f"v_add_u32 v{eWb+1}, {R}, v{eWb}")
        self.srd(sOUT, 34, 2621440)
        a(f"""
v_and_b32 v{eO4}, 15, v{vL}
v_add_u32 v{eO4}, s{sT+10}, v{eO4}
v_mul_u32_u24 v{eO4}, 1280, v{eO4}
v_lshrrev_b32 v{vT+1}, 4, v{vL}
v_lshl_add_u32 v{eO2}, v{vT+1}, 3, v{eO4}
v_bfe_u32 v{vT+1}, v{vL}, 4, 1
v_lshl_add_u32 v{eO4}, v{vT+1}, 5, v{eO4}
v_lshrrev_b32 v{vT+1}, 5, v{vL}
v_lshl_add_u32 v{eO4}, v{vT+1}, 4, v{eO4}
s_mul_i32 s{sT+9}, s{sW}, 5120
s_add_u32 s{sT+9}, s{sT+9}, {ACCAREA}
v_add_u32 v{eAC}, s{sT+9}, v{vLin}
""")
        self.flag_store(WS_FB, sW)
        self.stamp(6)
        if self.stop not in ("oab", "nobg"):
            def oload(ks): return f"buffer_load_dwordx4 v[{OF+4*ks}:{OF+4*ks+3}], v{vLin}, s[{sWS}:{sWS+3}], s{56 + ks//4} offen offset:{(ks%4)*1024} sc1"
            a("s_waitcnt lgkmcnt(0)")
            self.check_fast(14, BW0, 4)
            def wreads(ks):
                wb, o = (eWb + 1, ks * 5120) if ks < 7 else (eWb, (ks - 7) * 5120); f = WF + 20 * (ks % NWF); out = []
                for t in range(5):
                    out.append(f"ds_read_b64_tr_b16 v[{f+4*t}:{f+4*t+1}], v{wb} offset:{o+32*t}")
                    out.append(f"ds_read_b64_tr_b16 v[{f+4*t+2}:{f+4*t+3}], v{wb} offset:{o+32*t+1280}")
                return out
            for ks in range(NWF):
                for l in wreads(ks): a(l)
            self.flag_poll(WS_FB, 20)
            self.stamp(7)
            nis = MPRE
            for ks in range(nis): a(oload(ks))
            for ks in range(20):
                a(f"s_waitcnt vmcnt({nis-1-ks})")
                if ks == 0: a("s_waitcnt lgkmcnt(0)")
                elif ks >= NWF: a(f"s_waitcnt lgkmcnt({min(10, 10*(19-ks))})")
                if self.stamps == 5 and ks == 0: self.stamp(1)
                if self.stamps == 5 and ks == 19: self.stamp(2)
                f = WF + 20 * (ks % NWF)
                r = wreads(ks + NWF) if ks + NWF < 20 else []
                for t in range(5):
                    C = "0" if ks == 0 else f"v[{ACC+4*t}:{ACC+4*t+3}]"
                    a(f"v_mfma_f32_16x16x32_bf16 v[{ACC+4*t}:{ACC+4*t+3}], v[{f+4*t}:{f+4*t+3}], v[{OF+4*ks}:{OF+4*ks+3}], {C}")
                    for l in r[2*t:2*t+2]: a(l)
                    if nis < 20 and t in MIL: a(oload(nis)); nis += 1
                if ks == 0: a(f"ds_read_b32 v14, v{vMISC} offset:{BWOL}")
                if ks == 1:
                    a("s_waitcnt lgkmcnt(10)"); self.check_fast(14, BWOL, 4)
                if ks == 6: a(f"ds_read_b32 v14, v{vMISC} offset:{LA2}")
                if ks == 8: self.check_fast(14, LA2, 4)
                if ks == 17: a(f"ds_read_b32 v14, v{eAC+1} offset:{ACCA}")
                if ks == 19:
                    self.check_fast(14, ACCA, 1, vaddr=eAC+1)
                    for t in range(5): a(f"ds_read_b128 v[{20+4*t}:{20+4*t+3}], v{eAC} offset:{1024*t}")
            self.stamp(8)
            a(f"s_mul_i32 s{sT+1}, s{sHG}, 160\ns_waitcnt lgkmcnt(0)")
            for i in range(0, 20, 2): a(f"v_pk_add_f32 v[{ACC+i}:{ACC+i+1}], v[{ACC+i}:{ACC+i+1}], v[{20+i}:{20+i+1}]")
            for t in range(5):
                d = 40 + 2*t
                a(f"v_cvt_pk_bf16_f32 v{d}, v{ACC+4*t}, v{ACC+4*t+1}\nv_cvt_pk_bf16_f32 v{d+1}, v{ACC+4*t+2}, v{ACC+4*t+3}")
            for p in range(2):
                d = 40 + 4*p
                a(f"v_permlane16_swap_b32 v{d}, v{d+2}\nv_permlane16_swap_b32 v{d+1}, v{d+3}")
            for p in range(2):
                d = 40 + 4*p
                a(f"buffer_store_dwordx4 v[{d}:{d+3}], v{eO4}, s[{sOUT}:{sOUT+3}], s{sT+1} offen offset:{64*p}")
            a(f"buffer_store_dwordx2 v[48:49], v{eO2}, s[{sOUT}:{sOUT+3}], s{sT+1} offen offset:128")
        a("s_branch L_fin")
        self.m_fallback()

    def m_fallback(self):
        a = self.a
        MX = S_[2] + 4
        a.label("L_fallback")
        a("s_mov_b32 exec_lo, 0")
        for b in range(2): a(f"v_mov_b32 v{Q_[b]+4}, 0\nv_mov_b32 v{Q_[b]+5}, 0")
        a("s_mov_b32 exec_lo, -1")
        a(f"v_mov_b32 v{MX}, 0xff7fffff\nv_mov_b32 v{MX+1}, 0xff7fffff")
        a(f"s_mov_b32 s{sK}, {WS_K}\ns_mov_b32 s{sCNT}, 64\ns_waitcnt vmcnt(0)")
        a.label("L_fb1")
        for l in self.loadK(0): a(l)
        a("s_waitcnt vmcnt(0)")
        for b in range(2):
            for l in self.qk(S_[b], K_[0], Q_[b]): a(l)
        for b in range(2):
            for i in range(8): a(f"v_max3_f32 v{MX+b}, v{S_[b]+2*i}, v{S_[b]+2*i+1}, v{MX+b}")
        a(f"s_sub_u32 s{sCNT}, s{sCNT}, 1\ns_cmp_lg_u32 s{sCNT}, 0\ns_cbranch_scc1 L_fb1")
        for b in range(2):
            m = MX + b; t = MX + 2
            a(f"""
v_mov_b32 v{t}, v{m}
v_permlane32_swap_b32 v{m}, v{t}
v_max_f32 v{m}, v{m}, v{t}
v_sub_f32 v{m}, 0, v{m}
v_and_b32 v{t}, 0xffff0000, v{m}
v_sub_f32 v{m}, v{m}, v{t}
v_and_b32 v{t+1}, 0xffff0000, v{m}
v_sub_f32 v{m}, v{m}, v{t+1}
s_mov_b32 exec_lo, 0
v_lshrrev_b32 v{t}, 16, v{t}
v_or_b32 v{Q_[b]+4}, v{t}, v{t+1}
v_lshrrev_b32 v{Q_[b]+5}, 16, v{m}
s_mov_b32 exec_lo, -1
""")
        for i in range(16): a(f"v_mov_b64 v[{O_[0]+2*i}:{O_[0]+2*i+1}], 0")
        a(f"s_mov_b32 s{sK}, {WS_K}\ns_mov_b32 s{sV}, {WS_V}\ns_mov_b32 s{sCNT}, 64")
        a.label("L_fb2")
        for l in self.loadK(0) + self.loadV(0): a(l)
        a("s_waitcnt vmcnt(0)")
        for b in range(2):
            for l in self.qk(S_[b], K_[0], Q_[b]): a(l)
        for b in range(2):
            for i in range(16): a(f"v_exp_f32 v{S_[b]+i}, v{S_[b]+i}")
        for b in range(2):
            for l in self.pv(O_[b], V_[0], S_[b]): a(l)
        a(f"s_nop 15\ns_sub_u32 s{sCNT}, s{sCNT}, 1\ns_cmp_lg_u32 s{sCNT}, 0\ns_cbranch_scc1 L_fb2")
        for b in range(2):
            a(f"v_mov_b32 v{S_[2]+2*b}, v{O_[b]+8}\nv_mov_b32 v{S_[2]+2*b+1}, v{O_[b]+8}")
        for b in range(2): a(f"v_permlane32_swap_b32 v{S_[2]+2*b}, v{S_[2]+2*b+1}")
        a("s_nop 1\ns_branch L_m_norm")

    def g_main(self):
        a = self.a
        if self.stop == "nobg":
            self.signal(GDONE); return
        a(f"s_cmp_eq_u32 s{sU}, 1\ns_cbranch_scc1 L_bg1\ns_cmp_eq_u32 s{sU}, 2\ns_cbranch_scc1 L_bg2\ns_cmp_eq_u32 s{sU}, 3\ns_cbranch_scc1 L_bg3")
        for u in range(4):
            if u: a.label(f"L_bg{u}")
            self.bg_path(u)
            if u < 3: a("s_branch L_bg_done")
        a.label("L_bg_done")
        self.local_attn()
        self.g_apart()

    def bg_path(self, u):
        a = self.a
        rp = u & 1; cg = u >> 1
        tiles = list(range(0, 8)) if cg == 0 else list(range(7, 15))
        npc = 4 if u < 3 else 3
        bp = [[0], [1], [2], [3, 4]][u]
        work = [(t, xs) for t in tiles for xs in range(2) if t != 7 or xs == cg]
        pub = [w for w in work if rp == 1 and w[1] == 1 and w[0] >= 5]
        work = pub + [w for w in work if w not in pub]
        def reads(s):
            par = s & 1; b = GF[par]; sec = 2 if s >= 10 else 0; kb = (s % 10) >> 1; so = RING[s % 3] - R
            out = [f"ds_read_b128 v[{b}:{b+3}], v{gXF+sec+par} offset:{kb*8192}",
                   f"ds_read_b128 v[{b+4}:{b+7}], v{gXF+sec+par} offset:{kb*8192+2048}"]
            for j, t in enumerate(tiles):
                f = b + 12 + 4*j
                out.append(f"ds_read_b64_tr_b16 v[{f}:{f+1}], v{gWm} offset:{so+32*t}")
                out.append(f"ds_read_b64_tr_b16 v[{f+2}:{f+3}], v{gWm} offset:{so+32*t+3840}")
            return out
        def mfmas(s):
            b = GF[s & 1]; out = []
            for n, (t, xs) in enumerate(work):
                f = b + 12 + 4*tiles.index(t); x = b + 4*xs; c = ACCG + 4*n
                C = "0" if s == 0 else f"v[{c}:{c+3}]"
                out.append(f"v_mfma_f32_16x16x32_bf16 v[{c}:{c+3}], v[{f}:{f+3}], v[{x}:{x+3}], {C}" if ("nomfma" not in EXP or s == 0) else "s_uleep")
            return [o.replace("s_uleep", "s_sleep 1") for o in out]
        def wdma(s):
            out = []
            for i in range(npc):
                pre = f"s_add_u32 s10, s{8 + (s >= 10)}, {(s % 10)*122880}" if i == 0 else "s_nop 0"
                out.append(f"s_mov_b32 m0, {RING[s % 3] + 1024*u + 4096*i}\n{pre}\nbuffer_load_dwordx4 v{gWO+i}, s[{sWQKV}:{sWQKV+3}], s10 offen lds")
            return out
        def adma(idx):
            out = []
            for k, p in enumerate(bp):
                if idx < 4:
                    off = XH + idx*5120
                    t = f"s_mov_b32 m0, {off + 1024*p}\n" + (f"s_mov_b32 s11, {off*8}" if k == 0 else "s_nop 0")
                else:
                    base = 64 + (idx-4) // 8; off = ((idx-4) % 8) * 5120
                    t = f"s_add_u32 m0, s{base}, {off + 1024*p}\n" + (f"s_lshl3_add_u32 s11, s{base}, {off*8}" if k == 0 else "s_nop 0")
                out.append(t + f"\nbuffer_load_dwordx4 v{vW5+p}, s[{sAWO}:{sAWO+3}], s11 offen lds")
            return out
        def touch(srd, part, nparts):
            lo = 50*part // nparts; hi = 50*(part+1) // nparts
            mask = ((1 << hi) - 1) ^ ((1 << lo) - 1)
            return f"s_mov_b32 exec_lo, {mask & 0xffffffff}\ns_mov_b32 exec_hi, {mask >> 32}\nbuffer_load_dword v0, v{gTC}, s[{srd}:{srd+3}], 0 offen\ns_mov_b64 exec, -1"
        vm = []
        def emit_vm(text, tag):
            if "nodma" in EXP and tag[1] > 2: text = "s_nop 0"
            if "noadma" in EXP and tag[0] == "A": text = "s_nop 0"
            a(text); vm.append(tag)
        def arrive(s):
            last = max(k for k, t in enumerate(vm) if t == ("W", s))
            if self.stamps == 8: a(f"s_memrealtime s[100:101]\ns_waitcnt lgkmcnt(0)\ns_mov_b32 s99, s100")
            a(f"s_waitcnt vmcnt({len(vm) - 1 - last}) lgkmcnt(0)")
            if self.stamps == 8: a(f"s_memrealtime s[100:101]\ns_waitcnt lgkmcnt(0)\ns_sub_u32 s100, s100, s99\ns_setprio 2\nv_writelane_b32 v253, s100, {s}\ns_setprio {GP}")
            self.signal(CNTG)
        for l in reads(0): a(l)
        a(f"ds_read_b32 v9, v{vMISC} offset:{TAGO}\nds_read_b32 v7, v{vMISC} offset:{SAMEX}")
        self.srd(sAWO, 20, 819200)
        self.srd(sBWO, 30, 819200)
        self.stamp(5)
        a("s_waitcnt lgkmcnt(0)")
        m = mfmas(0); k = 0
        for st in (1, 2):
            for x in wdma(st):
                a(m[k]); k += 1
                emit_vm(x, ("W", st))
        if u == 3 and "noacq" not in EXP: emit_vm("buffer_inv sc1", ("I", 0))
        a(f"s_setprio 2\nv_readfirstlane_b32 s{sTAG}, v9\nv_readfirstlane_b32 s{sSX}, v7\ns_setprio {GP}")
        while k < PRE0: a(m[k]); k += 1
        arrive(1)
        if u == 3: a(f"s_setprio 2\nv_lshl_add_u32 v{vT}, v{vL}, 2, v{vMISC}\ns_setprio {GP}\nds_write_b32 v{vT}, v230 offset:{GBUF}")
        pend = m[k:]
        for s in range(1, 20):
            m = pend if s == 1 else mfmas(s-1)
            k = 0
            a(m[k]); k += 1
            a(f"ds_read_b32 v{gFL}, v{vMISC} offset:{CNTG}")
            a(m[k]); k += 1
            if "nobar" not in EXP:
                a("s_waitcnt lgkmcnt(0)")
                self.check_fast(gFL, CNTG, 4*s, prio=GP)
            if self.stamps == 8: a(f"s_memrealtime s[100:101]\ns_waitcnt lgkmcnt(0)\ns_setprio 2\nv_writelane_b32 v254, s100, {s}\ns_setprio {GP}")
            r = reads(s)
            il = [(x, ("W", s+2)) for x in wdma(s+2)] if s + 2 < 20 else []
            items = []; n = 0
            while r or il:
                if il and (n in DSL[u] or not r): items.append(("V", il[0])); il = il[1:]
                else: items.append(("R", r[:RPI])); r = r[RPI:]
                n += 1
            items.append(("A", None))
            if s >= 2:
                idx = s - 2
                if idx >= 4:
                    v = (idx-4) % 8; need = 5*((idx-4)//8) + -(-5*(v+1) // 8)
                    assert s // 2 >= need, (s, idx, need)
                items += [("V", (x, ("A", s))) for x in adma(idx)]
            if s == 3 and "tlb" in EXP:
                srd, so = [(sOUT, f"s_mul_i32 s11, s{sRB}, 81920"), (sWS, f"s_mul_i32 s11, s{sRB}, 163840\ns_add_u32 s11, s11, {WS_OAB}"),
                           (sWS, f"s_mov_b32 s11, {WS_HALO}"), (sBWO, "s_mov_b32 s11, 0")][u]
                pre = f"s_mov_b32 s{sOUT}, s34\ns_mov_b32 s{sOUT+1}, s35\ns_mov_b32 s{sOUT+2}, 2621440\ns_mov_b32 s{sOUT+3}, 0x20000\n" if u == 0 else ""
                items.append(("V", (f"{pre}{so}\ns_mov_b64 exec, 1\nbuffer_load_dword v0, v{vLin}, s[{srd}:{srd+3}], s11 offen sc1\ns_mov_b64 exec, -1", ("T", s))))
            if s == WST and u < 3 and str(u) in WSU:
                if u == 0:
                    t = f"""v_and_b32 v{vT}, 7, v{vL}
v_lshlrev_b32 v{vT}, 7, v{vT}
v_lshrrev_b32 v{vT+1}, 3, v{vL}
v_min_u32 v{vT+2}, 2, v{vT+1}
v_lshl_add_u32 v{vT}, v{vT+2}, 17, v{vT}
v_cmp_eq_u32 vcc, 3, v{vT+1}
v_subrev_u32 v{vT+1}, 1024, v{vT}
v_cndmask_b32 v{vT}, v{vT}, v{vT+1}, vcc
s_lshl_b32 s11, s{sRB}, 10
s_add_u32 s11, s11, {WS_FA}"""; ex = "0"
                elif u == 1:
                    t = f"""v_and_b32 v{vT}, 1, v{vL}
v_lshlrev_b32 v{vT}, 7, v{vT}
v_bfe_u32 v{vT+1}, v{vL}, 1, 1
v_mul_u32_u24 v{vT+1}, 1280, v{vT+1}
v_lshrrev_b32 v{vT+2}, 2, v{vL}
v_mul_u32_u24 v{vT+2}, 20480, v{vT+2}
v_add3_u32 v{vT}, v{vT}, v{vT+1}, v{vT+2}
s_mul_i32 s11, s{sRB}, 163840
s_mul_i32 s{sT+2}, s{sHG}, 2560
s_add_u32 s11, s11, s{sT+2}
s_add_u32 s11, s11, {WS_OAB + 512}"""; ex = "0"
                else:
                    t = f"""v_lshlrev_b32 v{vT}, 7, v{vL}
s_lshl3_add_u32 s11, s{sRB}, s{sHG}
s_mul_i32 s11, s11, 5120
s_add_u32 s11, s11, {WS_HALO}"""; ex = "0xff"
                items.append(("V", (f"s_setprio 2\n{t}\ns_setprio {GP}\ns_mov_b32 exec_hi, {ex}\nbuffer_load_dword v0, v{vT}, s[{sWS}:{sWS+3}], s11 offen sc1\ns_mov_b32 exec_hi, -1", ("T", s))))
            if s == MW2 and u < 2:
                srd = [sAWO, sBWO][u]
                items.append(("V", (f"s_mul_i32 s11, s2, 3200\ns_setprio 2\nv_lshlrev_b32 v{vT}, 7, v{vL}\ns_setprio {GP}\ns_mov_b32 exec_lo, 0x1ffffff\ns_mov_b32 exec_hi, 0\nbuffer_load_dword v0, v{vT}, s[{srd}:{srd+3}], s11 offen\ns_mov_b64 exec, -1", ("T", s))))
            if s == WST2:
                t = f"""v_mul_u32_u24 v{vT+1}, 13, v{vL}
v_lshrrev_b32 v{vT+1}, 8, v{vT+1}
v_mul_u32_u24 v{vT+1}, {20480 - 2560}, v{vT+1}
v_lshl_add_u32 v{vT}, v{vL}, 7, v{vT+1}
s_mul_i32 s11, s{sRB}, 163840
s_mul_i32 s{sT+2}, s{sHG}, 2560
s_add_u32 s11, s11, s{sT+2}
s_add_u32 s11, s11, {WS_OAB + 40960*u}"""
                items.append(("V", (f"s_setprio 2\n{t}\ns_setprio {GP}\ns_mov_b32 exec_hi, 0xff\nbuffer_load_dword v0, v{vT}, s[{sWS}:{sWS+3}], s11 offen sc1\ns_mov_b32 exec_hi, -1", ("T", s))))
            if s in CPF and u == CPF.index(s) % 4:
                L = a.uid("Lpc")
                items.append(("V", (f"""s_getpc_b64 s[{sT+2}:{sT+3}]
{L}:
s_sub_u32 s{sT+2}, s{sT+2}, {L}-L_pc0
s_subb_u32 s{sT+3}, s{sT+3}, 0
s_lshr_b32 s11, s2, 3
s_lshl_b32 s11, s11, 7
s_mov_b32 exec_hi, 0
s_setprio 2
v_lshlrev_b32 v{vT}, 12, v{vL}
v_add_u32 v{vT}, s11, v{vT}
v_min_u32 v{vT}, L_code_end-L_pc0, v{vT}
v_mov_b32 v{vT+1}, s{sT+3}
v_add_co_u32 v{vT}, vcc, s{sT+2}, v{vT}
v_addc_co_u32 v{vT+1}, vcc, 0, v{vT+1}, vcc
s_setprio {GP}
global_load_dword v0, v[{vT}:{vT+1}], off
s_mov_b32 exec_hi, -1""", ("T", s))))
            if s in TOUCH: items.append(("V", (touch(sBWO, TOUCH.index(s), len(TOUCH)), ("T", s))))
            for kind, x in items:
                if kind == "R":
                    for l in x: a(l if "nords" not in EXP else "s_nop 0")
                elif kind == "V": emit_vm(*x)
                elif s < 19:
                    arrive(s+1)
                    if s == 2 and u == 3: self.signal(INVD)
                else:
                    a("s_waitcnt lgkmcnt(0)"); self.signal(GDONE)
                if k < len(m): a(m[k]); k += 1
            while k < len(m): a(m[k]); k += 1
        m = mfmas(19)
        if self.stamps == 8:
            a(f"s_lshl2_add_u32 s{sT}, s2, s{sU}\ns_lshl_b32 s{sT}, s{sT}, 9\ns_add_u32 s{sT}, s{sT}, {WS_DUMP}\nv_lshlrev_b32 v{vT}, 2, v{vL}\nbuffer_store_dword v254, v{vT}, s[{sWS}:{sWS+3}], s{sT} offen\nbuffer_store_dword v253, v{vT}, s[{sWS}:{sWS+3}], s{sT} offen offset:256")
        a(f"""
s_lshl3_add_u32 s{sT+8}, s{sRB}, s{sHG}
s_mul_i32 s{sT+9}, s{sT+8}, 5120
s_add_u32 s{sT+9}, s{sT+9}, {WS_HALO}
s_add_u32 s{sT+7}, s{sT+9}, 4096
s_lshl_b32 s{sT+8}, s{sT+8}, 7
s_add_u32 s{sT+8}, s{sT+8}, {WS_FH}
s_mov_b32 s{sT+10}, s{sSX}
s_and_b32 s{sT+11}, s{sRB}, 3
s_cmp_eq_u32 s{sT+11}, 3
s_cselect_b32 s{sSX}, 0, s{sSX}
""")
        def cvt(n):
            c = ACCG + 4*n
            a(f"s_setprio 2\nv_cvt_pk_bf16_f32 v{c}, v{c}, v{c+1}\nv_cvt_pk_bf16_f32 v{c+1}, v{c+2}, v{c+3}\ns_setprio {GP}")
        def wr(n):
            t, xs = work[n]; c = ACCG + 4*n
            off = [QA - R, KA - R + 2560, VA - R + 2560][t // 5] + 32*(t % 5) + (2*rp + xs) * 2560
            a(f"ds_write_b64 v{lPA}, v[{c}:{c+1}] offset:{off}")
        LAG = 3
        npub = len(pub)
        def hflag():
            a(f"s_setprio 2\nv_mov_b32 v{vT}, 0\nv_mov_b32 v{vT+1}, s{sTAG}\ns_setprio {GP}\ns_mov_b64 exec, 1\ns_waitcnt vmcnt(0)")
            n0 = len(a.ins)
            a(f"buffer_store_dword v{vT+1}, v{vT}, s[{sWS}:{sWS+3}], s{sT+8} offen offset:{4*cg} sc1")
            self.dup_stores(n0)
            a("s_mov_b64 exec, -1")
        nst = npub - 1 + LAG
        for n in range(len(m) + LAG):
            if n < len(m): a(m[n])
            if n == 1: a(f"ds_read_b32 v{gFL}, v{vMISC} offset:{GDONE}")
            if n == 2:
                a("s_waitcnt lgkmcnt(0)"); self.check_fast(gFL, GDONE, 4, prio=GP)
            if n == len(m): self.stamp(6)
            if n >= LAG:
                cvt(n - LAG); wr(n - LAG)
                if n - LAG < npub:
                    t = work[n-LAG][0]; c = ACCG + 4*(n-LAG)
                    so = f"s{sT+9}" if t < 13 else f"s{sT+7}"
                    a(f"buffer_store_dwordx2 v[{c}:{c+1}], v{lPH}, s[{sWS}:{sWS+3}], {so} offen offset:{(t-5)*512 - (0 if t < 13 else 4096)} sc1")
                if npub and n == nst + 3: hflag()
        self.signal(LA1)
        if not npub:
            H = GF[0]; L = a.uid("Lh"); D = a.uid("Lhd"); Z = a.uid("Lhz")
            a("s_setprio 2")
            for i in range(6): a(f"v_mov_b64 v[{H+2*i}:{H+2*i+1}], 0")
            a(f"""
v_add_u32 v{vT+2}, {[KA, VA][cg]}, v{lPH+1}
v_mov_b32 v{vT}, 0
s_cmp_eq_u32 s{sRB}, 0
s_cbranch_scc1 {Z}
s_sub_u32 s{sT+8}, s{sT+8}, 1024
s_sub_u32 s{sT+9}, s{sT+9}, {8*5120 - 2560*cg}
s_mov_b32 s{sCNT}, 0x8000
s_mov_b64 exec, 1
{L}:
buffer_load_dwordx2 v[{vT+4}:{vT+5}], v{vT}, s[{sWS}:{sWS+3}], s{sT+8} offen sc1
s_waitcnt vmcnt(0)
v_readfirstlane_b32 s{sT}, v{vT+4}
v_readfirstlane_b32 s{sT+1}, v{vT+5}
s_xor_b32 s{sT}, s{sT}, s{sTAG}
s_xor_b32 s{sT+1}, s{sT+1}, s{sTAG}
s_or_b32 s{sT}, s{sT}, s{sT+1}
s_cbranch_scc0 {D}
s_sub_u32 s{sCNT}, s{sCNT}, 1
s_cmp_lg_u32 s{sCNT}, 0
s_cbranch_scc1 {L}
{D}:
s_mov_b64 exec, -1
buffer_load_dwordx4 v[{H}:{H+3}], v{vLin}, s[{sWS}:{sWS+3}], s{sT+9} offen sc1
buffer_load_dwordx4 v[{H+4}:{H+7}], v{vLin}, s[{sWS}:{sWS+3}], s{sT+9} offen offset:1024 sc1
s_mov_b32 exec_hi, 0
buffer_load_dwordx4 v[{H+8}:{H+11}], v{vLin}, s[{sWS}:{sWS+3}], s{sT+9} offen offset:2048 sc1
s_mov_b32 exec_hi, -1
s_waitcnt vmcnt(0)
{Z}:
ds_write_b128 v{vT+2}, v[{H}:{H+3}]
ds_write_b128 v{vT+2}, v[{H+4}:{H+7}] offset:64
s_mov_b32 exec_hi, 0
ds_write_b128 v{vT+2}, v[{H+8}:{H+11}] offset:128
s_mov_b32 exec_hi, -1
""")
            self.signal(HL)
        a(f"s_mov_b32 s{sSX}, s{sT+10}\ns_waitcnt lgkmcnt(0)")
        for idx in range(18, 20):
            for x in adma(idx): a(x)

    def local_attn(self):
        a = self.a
        QF = 104; KF = 120; VF = 152; SD = 32; PB = 64; OD = 80; TM = 20; GV = 184
        units = self.units; U = range(4)
        a("s_setprio 2")
        for i in range(8): a(f"v_mov_b64 v[{QF+2*i}:{QF+2*i+1}], 0")
        a(f"ds_read_b64 v[{GV}:{GV+1}], v{lPA+2} offset:{GBUF}")
        a(f"""
s_mov_b32 s10, {CSC}
s_mul_i32 s64, s{sRB}, 163840
s_add_u32 s64, s64, {WS_OAB}
s_mul_i32 s{sT+8}, s{sU}, 40960
s_add_u32 s{sT+8}, s{sT+8}, s64
s_mul_i32 s{sT+2}, s{sHG}, 2560
s_add_u32 s64, s64, s{sT+2}
s_lshr_b32 s{sT+2}, s{sU}, 1
s_mul_i32 s{sT+2}, s{sT+2}, 1280
s_add_u32 s64, s64, s{sT+2}
s_and_b32 s{sT+2}, s{sU}, 1
s_mul_i32 s{sT+3}, s{sT+2}, 81920
s_add_u32 s64, s64, s{sT+3}
s_cmp_eq_u32 s{sT+2}, 1
s_cbranch_scc1 L_la_nh
""")
        self.poll(HL, 2)
        a.label("L_la_nh")
        self.poll(LA1, 4)
        self.stamp(7)
        off = [par*160 + hh*40 for hh, par in units]
        a("s_mov_b32 exec_hi, 0xffff")
        for ui in U: a(f"ds_read_b64 v[{QF+4*ui}:{QF+4*ui+1}], v{lQa} offset:{off[ui]}")
        a("s_mov_b32 exec_hi, 0")
        for ui in U: a(f"ds_read_b64 v[{QF+4*ui+2}:{QF+4*ui+3}], v{lQa} offset:{off[ui]+8}")
        a("s_mov_b32 exec_hi, -1")
        for ui in U:
            for tl in range(2):
                f = KF + 8*ui + 4*tl
                a(f"ds_read_b64 v[{f}:{f+1}], v{lKa+tl} offset:{off[ui] + 5120*tl}")
                a(f"ds_read_b64 v[{f+2}:{f+3}], v{lKa+tl} offset:{off[ui] + 5120*tl + 8}")
        for ui, (hh, par) in enumerate(units):
            a(f"s_waitcnt lgkmcnt(12)")
            for tl in range(2):
                f = KF + 8*ui + 4*tl; d = SD + 8*ui + 4*tl; mk = lMK + 4*tl
                a(f"v_mfma_f32_16x16x32_bf16 v[{d}:{d+3}], v[{f}:{f+3}], v[{QF+4*ui}:{QF+4*ui+3}], v[{mk}:{mk+3}]")
            o = off[ui] + 8*hh; f = VF + 8*ui
            a(f"ds_read_b64_tr_b16 v[{f}:{f+1}], v{lVt} offset:{o}")
            a(f"ds_read_b64_tr_b16 v[{f+2}:{f+3}], v{lVt+1} offset:{o+5120}")
            a(f"ds_read_b64_tr_b16 v[{f+4}:{f+5}], v{lVo+2*ui}")
            a(f"ds_read_b64_tr_b16 v[{f+6}:{f+7}], v{lVo+2*ui+1}")
        for st in range(4):
            for ui in U:
                d = SD + 8*ui; m = TM + 2*ui
                a([f"v_max3_f32 v{m}, v{d}, v{d+1}, v{d+2}", f"v_max3_f32 v{m}, v{m}, v{d+3}, v{d+4}", f"v_max3_f32 v{m}, v{m}, v{d+5}, v{d+6}", f"v_max_f32 v{m}, v{m}, v{d+7}"][st])
        for sw in ("v_permlane16_swap_b32", "v_permlane32_swap_b32"):
            for ui in U: a(f"v_mov_b32 v{TM+2*ui+1}, v{TM+2*ui}")
            for ui in U: a(f"{sw} v{TM+2*ui}, v{TM+2*ui+1}")
            for ui in U: a(f"v_max_f32 v{TM+2*ui}, v{TM+2*ui}, v{TM+2*ui+1}")
        for ui in U: a(f"v_mul_f32 v{TM+2*ui}, s10, v{TM+2*ui}")
        for ui in U:
            for i in range(8): a(f"v_fma_f32 v{SD+8*ui+i}, v{SD+8*ui+i}, s10, -v{TM+2*ui}")
        a("s_waitcnt lgkmcnt(0)")
        for ui in U:
            for i in range(8): a(f"v_exp_f32 v{SD+8*ui+i}, v{SD+8*ui+i}")
        for ui in U:
            for i in range(4): a(f"v_cvt_pk_bf16_f32 v{PB+4*ui+i}, v{SD+8*ui+2*i}, v{SD+8*ui+2*i+1}")
            for tl in (1, 0):
                f = VF + 8*ui + 4*tl; d = OD + 8*ui + 4*tl
                a(f"v_mfma_f32_16x16x32_bf16 v[{d}:{d+3}], v[{f}:{f+3}], v[{PB+4*ui}:{PB+4*ui+3}], 0")
        for ui in U: a(f"v_mov_b32 v{TM+2*ui}, v{OD+8*ui+4}\nv_mov_b32 v{TM+2*ui+1}, v{OD+8*ui+4}")
        for ui in U: a(f"v_permlane16_swap_b32 v{TM+2*ui}, v{TM+2*ui+1}")
        for ui in U: a(f"v_rcp_f32 v{TM+2*ui+1}, v{TM+2*ui+1}")
        for ui, (hh, par) in enumerate(units): a(f"v_mul_f32 v{TM+2*ui}, v{TM+2*ui+1}, v{GV+par}")
        for ui in U:
            for i in range(4): a(f"v_pk_mul_f32 v[{OD+8*ui+2*i}:{OD+8*ui+2*i+1}], v[{OD+8*ui+2*i}:{OD+8*ui+2*i+1}], v[{TM+2*ui}:{TM+2*ui+1}] op_sel_hi:[1,0]")
        for ui, (hh, par) in enumerate(units):
            d = SD + 4*hh + 2*par; h = SD + 16 + 4*par + 2*hh
            a(f"v_cvt_pk_bf16_f32 v{d}, v{OD+8*ui}, v{OD+8*ui+1}\nv_cvt_pk_bf16_f32 v{d+1}, v{OD+8*ui+2}, v{OD+8*ui+3}")
            a(f"v_cvt_pk_bf16_f32 v{h}, v{OD+8*ui+4}, v{OD+8*ui+5}\nv_cvt_pk_bf16_f32 v{h+1}, v{OD+8*ui+6}, v{OD+8*ui+7}")
        for hh in range(2):
            d = SD + 4*hh
            a(f"v_permlane16_swap_b32 v{d}, v{d+2}\nv_permlane16_swap_b32 v{d+1}, v{d+3}")
        h = SD + 16
        for i in range(4): a(f"v_permlane16_swap_b32 v{h+i}, v{h+4+i}")
        for hh in range(2):
            d = SD + 4*hh
            a(f"buffer_store_dwordx4 v[{d}:{d+3}], v{lPA+1}, s[{sWS}:{sWS+3}], s64 offen offset:{768*hh} sc1")
        a(f"s_mov_b32 exec_hi, 0\nbuffer_store_dwordx4 v[{h}:{h+3}], v{lPA+1}, s[{sWS}:{sWS+3}], s64 offen offset:512 sc1\ns_mov_b32 exec_hi, -1")

    def g_apart(self):
        a = self.a
        vWb = 20; OF = 32; ACC = 112; WF = 132; NW = 6
        def bk(ks_expr_base, lds0, stride_w):
            out = []
            for p in range(5):
                pre = f"s_add_u32 s{sT+4}, s{sT+10}, {ks_expr_base*40960}" if p == 0 else "s_nop 0"
                out.append(f"s_add_u32 m0, s{sT+9}, {lds0 + 1024*p}\n{pre}\nbuffer_load_dwordx4 v{vW5+p}, s[{sBWO}:{sBWO+3}], s{sT+4} offen lds")
            return out
        def guarded(items, lim):
            out = []
            for x in items:
                L = a.uid("Lbi"); out.append(f"s_cmp_ge_u32 s{sU}, {lim}\ns_cbranch_scc1 {L}\n{x}\n{L}:")
            return out
        def reads(ks):
            wb = vWb + (1 if ks >= 10 else 0); o = (ks % 10) * 5120; f = WF + 20 * (ks % NW); out = []
            for t in range(5):
                out.append(f"ds_read_b64_tr_b16 v[{f+4*t}:{f+4*t+1}], v{wb} offset:{o+32*t}")
                out.append(f"ds_read_b64_tr_b16 v[{f+4*t+2}:{f+4*t+3}], v{wb} offset:{o+32*t+1280}")
            return out
        self.tr_base(vWb, 160)
        a(f"""
v_add_u32 v{vWb+1}, 51200, v{vWb}
s_lshl_b32 s{sT+1}, s{sU}, 2
v_add_u32 v24, s{sT+1}, v{vSIG}
s_mul_i32 s{sT+1}, s{sU}, 5120
s_add_u32 s{sT+1}, s{sT+1}, {ACCAREA}
v_add_u32 v25, s{sT+1}, v{vLin}
""")
        self.flag_store(WS_FA, sU)
        self.signal(CNTA)
        self.stamp(8)
        if self.stop == "oab": return
        a(f"s_setprio 0\ns_mul_i32 s{sT+9}, s{sU}, 5120\ns_lshl_b32 s{sT+10}, s{sT+9}, 3")
        self.poll(CNTA, 4, prio=0)
        a(f"s_cmp_eq_u32 s{sU}, 3\ns_cbranch_scc1 L_ga_poll")
        for x in bk(0, R, 3) + bk(3, R + 15360, 3): a(x)
        for ks in range(NW):
            for l in reads(ks): a(l)
        self.signal(CNTA)
        self.poll(FAS, 1, prio=0)
        a("s_branch L_ga_go")
        a.label("L_ga_poll")
        for ks in range(NW):
            for l in reads(ks): a(l)
        self.signal(CNTA)
        a("s_setprio 2")
        self.flag_poll(WS_FA, 252)
        a("s_setprio 0")
        self.signal(FAS)
        a.label("L_ga_go")
        self.stamp(9)
        a(f"s_add_u32 s64, s{sT+8}, 4096\ns_add_u32 s65, s{sT+8}, 8192\ns_add_u32 s66, s{sT+8}, 12288\ns_add_u32 s67, s{sT+8}, 16384")
        def oload(ks): return f"buffer_load_dwordx4 v[{OF+4*ks}:{OF+4*ks+3}], v{vLin}, s[{sWS}:{sWS+3}], s{[sT+8, 64, 65, 66, 67][ks//4]} offen offset:{(ks%4)*1024} sc1"
        NPRE = 8
        for ks in range(NPRE): a(oload(ks))
        q = [("O", oload(ks)) for ks in range(NPRE, 20)]
        L = a.uid("Lb6")
        d2 = bk(7, 0, 4) + guarded(bk(11, 20480, 4), 2) + [f"s_cmp_lg_u32 s{sU}, 3\ns_cbranch_scc1 {L}\n" + "\n".join(bk(3, R + 15360, 4)) + f"\n{L}:"]
        d3 = bk(13, 30720, 4) + guarded(bk(17, 51200, 4), 3)
        nissued = NPRE
        for ks in range(20):
            if ks < 5: a(f"s_waitcnt vmcnt({nissued - 1 - ks})")
            if ks == 5:
                a("s_waitcnt vmcnt(0)"); self.poll(CNTA, 8, prio=0)
            if ks == 0: self.signal(BW0)
            if ks >= NW: a(f"s_waitcnt lgkmcnt({min(10, 10*(19-ks))})")
            if self.stamps == 5 and ks == 0: self.stamp(1)
            f = WF + 20 * (ks % NW)
            r = reads(ks + NW) if ks + NW < 20 else []
            for t in range(5):
                C = "0" if ks == 0 else f"v[{ACC+4*t}:{ACC+4*t+3}]"
                a(f"v_mfma_f32_16x16x32_bf16 v[{ACC+4*t}:{ACC+4*t+3}], v[{f+4*t}:{f+4*t+3}], v[{OF+4*ks}:{OF+4*ks+3}], {C}")
                for l in r[2*t:2*t+2]: a(l)
                if q and t != 4: a(q.pop(0)[1]); nissued += 1
                if ks >= 5 and d2 and t != 4: a(d2.pop(0))
                if ks >= 10 and d3 and t != 4: a(d3.pop(0))
            if ks == 6: self.signal(CNTA)
            if ks == 9:
                a("s_waitcnt vmcnt(0)"); self.signal(BWOL)
                self.poll(CNTA, 12, prio=0)
                if self.stamps == 5: self.stamp(2)
            if ks == 13: self.signal(CNTA)
            if ks == 17:
                a("s_waitcnt vmcnt(0)"); self.signal(LA2)
                a(f"ds_read_b32 v{vT}, v{vMISC} offset:{CNTA}")
        assert not d2 and not d3
        self.check_fast(vT, CNTA, 16, prio=0)
        for t in range(5): a(f"ds_write_b128 v25, v[{ACC+4*t}:{ACC+4*t+3}] offset:{1024*t}")
        a(f"ds_add_u32 v24, v{vONE} offset:{ACCA}")
        self.stamp(10)
```
